```python
import torch

def _softmax(x, axis=-1):
    return torch.softmax(x, dim=axis)
def _gelu(x):
    return torch.nn.functional.gelu(x, approximate="tanh")
def _silu(x):
    return torch.nn.functional.silu(x)
def _sigmoid(x):
    return torch.sigmoid(x)
def _layernorm(x, axis=-1, eps=1e-5):
    m = x.mean(dim=axis, keepdim=True)
    v = x.var(dim=axis, keepdim=True, unbiased=False)
    return (x - m) / torch.sqrt(v + eps)
def _scatter_add(tgt, idx, src, axis=0):
    return tgt.clone().index_add_(axis, idx, src)
def _segment_sum(src, seg, n):
    out = torch.zeros((n,) + src.shape[1:], dtype=src.dtype)
    return out.index_add_(0, seg, src)
def _pad(x, pw):
    flat = tuple(v for pair in reversed(pw) for v in pair)
    return torch.nn.functional.pad(x, flat)

kernel_name = 'sequential_preLN__grouped_kv_mqa__dense_activation_gelu__prompt'

def setup_inputs():

    _w = (lambda a: (lambda t: t.to(torch.bfloat16) if t.is_floating_point() else t)(torch.as_tensor(a)))
    def _A_setup():
        B, S, D, H = 1, 2048, 512, 32
        Dh = D // H
        return {
            "x": _w((lambda *s: torch.randn(*s, dtype=torch.bfloat16) * 0.05)(B, S, D)),
            "wq": _w((lambda *s: torch.randn(*s, dtype=torch.bfloat16) * 0.05)(D, H * Dh)),
            "wk": _w((lambda *s: torch.randn(*s, dtype=torch.bfloat16) * 0.05)(D, Dh)),
            "wv": _w((lambda *s: torch.randn(*s, dtype=torch.bfloat16) * 0.05)(D, Dh)),
            "wo": _w((lambda *s: torch.randn(*s, dtype=torch.bfloat16) * 0.05)(H * Dh, D)),
        }
    _A_in = _A_setup()

    def _B_setup():
        B, S, D, F = 1, 2048, 512, 1376
        return {
            "x": _w((lambda *s: torch.randn(*s, dtype=torch.bfloat16) * 0.05)(B, S, D)),
            "w1": _w((lambda *s: torch.randn(*s, dtype=torch.bfloat16) * 0.8)(D, F) * (D ** -0.5)),
            "b1": _w((lambda *s: torch.randn(*s, dtype=torch.bfloat16) * 0.8)(F) * 0.01),
            "w2": _w((lambda *s: torch.randn(*s, dtype=torch.bfloat16) * 0.2)(F, D) * (F ** -0.5)),
            "b2": _w((lambda *s: torch.randn(*s, dtype=torch.bfloat16) * 0.2)(D) * 0.01),
        }
    _B_in = _B_setup()

    return {
        "A_x": _A_in["x"],
        "A_wq": _A_in["wq"],
        "A_wk": _A_in["wk"],
        "A_wv": _A_in["wv"],
        "A_wo": _A_in["wo"],
        "B_x": _B_in["x"],
        "B_w1": _B_in["w1"],
        "B_b1": _B_in["b1"],
        "B_w2": _B_in["w2"],
        "B_b2": _B_in["b2"],
    }

def reference(A_x, A_wq, A_wk, A_wv, A_wo, B_x, B_w1, B_b1, B_w2, B_b2):
    def _A_ref(x, wq, wk, wv, wo):
        B, S, D = x.shape
        H = 32
        Dh = D // H
        q = (lambda x, *d: x.permute(*d))((x @ wq).reshape(B, S, H, Dh), 0, 2, 1, 3)
        k = x @ wk
        v = x @ wv
        scores = torch.einsum("bhqd,bkd->bhqk", q, k) * (Dh ** -0.5)
        p = _softmax(scores, axis=-1)
        o = torch.einsum("bhqk,bkd->bhqd", p, v)
        return (lambda x, *d: x.permute(*d))(o, 0, 2, 1, 3).reshape(B, S, H * Dh) @ wo

    def _B_ref(x, w1, b1, w2, b2):
        h = torch.einsum("bsd,df->bsf", x, w1) + b1
        h = _gelu(h)
        return torch.einsum("bsf,fd->bsd", h, w2) + b2

    x = A_x
    h = x + _A_ref(_layernorm(x, axis=-1), A_wq, A_wk, A_wv, A_wo)
    h2 = h + _B_ref(_layernorm(h, axis=-1), B_w1, B_b1, B_w2, B_b2)
    return h2
```

```python
from lib import *
import math

K1_LDS_X = 0
K1_LDS_W = 65536
K1_LDS_EX = 131072
K1_LDS_ST = 131072 + 16384
K1_LDS = K1_LDS_ST + 1024
QSCALE = 0.25 * math.log2(math.e)

def load_ptrs(a):
    a("s_load_dwordx16 s[16:31], s[0:1], 0",
      "s_load_dwordx8 s[32:39], s[0:1], 64",
      "s_load_dwordx2 s[40:41], s[0:1], 96")

def sigma_lane(a, d, src, t):
    a(f"v_and_b32 v{d}, 0x13, v{src}",
      f"v_and_b32 v{t}, 4, v{src}",
      f"v_lshl_or_b32 v{d}, v{t}, 1, v{d}",
      f"v_and_b32 v{t}, 8, v{src}",
      f"v_lshrrev_b32 v{t}, 1, v{t}",
      f"v_or_b32 v{d}, v{d}, v{t}")

def gen_k1(name):
    a = A()
    kernel_begin(a, name)
    Lend = "L_k1_end"
    a("s_cmp_ge_u32 s2, 256", f"s_cbranch_scc1 {Lend}")
    load_ptrs(a)
    a("v_lshrrev_b32 v2, 6, v0", "v_and_b32 v1, 63, v0")
    a("s_and_b32 s4, s2, 7", "s_lshl_b32 s4, s4, 2", "s_lshr_b32 s5, s2, 3", "s_and_b32 s5, s5, 3")
    a("v_readfirstlane_b32 s3, v2")
    a("s_add_u32 s4, s4, s5")
    a("s_lshr_b32 s5, s2, 5")
    a("s_waitcnt lgkmcnt(0)")
    srd(a, 44, 16, 2048*1024)
    srd(a, 48, 18, 512*1024)
    srd(a, 52, 40, WS_BYTES)
    a("s_cmp_eq_u32 s3, 8", "s_cbranch_scc1 L_k1_kv")
    a.c("x DMA: row = 8w + (l>>3), piece = (l&7) ^ ((row>>1)&7)")
    a("v_lshrrev_b32 v2, 3, v1",
      "s_lshl_b32 s6, s3, 3",
      "v_add_u32 v3, s6, v2",
      "v_bfe_u32 v4, v3, 1, 3",
      "v_and_b32 v5, 7, v1",
      "v_xor_b32 v4, v4, v5",
      "v_lshlrev_b32 v4, 4, v4",
      "v_lshl_or_b32 v6, v3, 10, v4")
    a.c("wq DMA: krow=l>>3, piece=(l&7)^(((krow>>1)&1)<<2)")
    a("v_bfe_u32 v4, v2, 1, 1",
      "v_lshlrev_b32 v4, 2, v4",
      "v_xor_b32 v4, v4, v5",
      "v_lshlrev_b32 v4, 4, v4",
      "v_lshl_or_b32 v7, v3, 10, v4")
    a("s_lshl_b32 s7, s4, 16",
      "s_lshl_b32 s8, s3, 10",
      "s_lshl_b32 s9, s5, 7",
      f"s_add_u32 s10, s8, {K1_LDS_W}")
    for i in range(8):
        a(f"s_add_u32 m0, s8, {i*8064}", "s_nop 0",
          f"buffer_load_dwordx4 v6, s[44:47], s7 offen offset:{i*128} lds")
        a(f"s_add_u32 m0, s10, {i*8192}", "s_nop 0",
          f"buffer_load_dwordx4 v7, s[48:51], s9 offen lds")
        if i < 7:
            a("s_add_u32 s9, s9, 0x10000")
    a.c("role C decode")
    a("s_lshl_b32 s6, s2, 3", "s_add_u32 s6, s6, s3")
    a("s_cmp_ge_u32 s6, 512", "s_cbranch_scc1 L_k1_c1")
    srd(a, 56, 24, 512*1024)
    a("s_mov_b32 s11, 1024", "s_lshr_b32 s12, s6, 5", "s_and_b32 s13, s6, 31",
      "s_lshl_b32 s14, s6, 10", f"s_add_u32 s14, s14, {WOF:#x}", "s_branch L_k1_cgo")
    a("L_k1_c1:")
    a("s_cmp_ge_u32 s6, 1888", "s_cbranch_scc1 L_k1_c2")
    srd(a, 56, 28, 512*2752)
    a("s_sub_u32 s15, s6, 512", "s_mov_b32 s11, 2752", "s_lshr_b32 s12, s15, 5", "s_and_b32 s13, s15, 31",
      "s_lshl_b32 s14, s15, 10", f"s_add_u32 s14, s14, {W1F:#x}", "s_branch L_k1_cgo")
    a("L_k1_c2:")
    srd(a, 56, 32, 1376*1024)
    a("s_sub_u32 s15, s6, 1888", "s_mov_b32 s11, 1024", "s_and_b32 s12, s15, 15", "s_lshr_b32 s13, s15, 4",
      "s_mul_i32 s14, s12, 86", "s_add_u32 s14, s14, s13", "s_lshl_b32 s14, s14, 10", f"s_add_u32 s14, s14, {W2F:#x}")
    a("L_k1_cgo:")
    srd(a, 60, 32, 1376*1024)
    sigma_lane(a, 4, 1, 5)
    a("v_lshlrev_b32 v4, 1, v4",
      "v_lshrrev_b32 v5, 5, v1",
      "s_lshl_b32 s15, s11, 3",
      "v_mad_u32_u24 v108, v5, s15, v4",
      "v_lshl_or_b32 v109, v5, 13, v4")
    a("s_mul_i32 s64, s13, s11", "s_lshl_b32 s64, s64, 4", "s_lshl_b32 s65, s12, 6", "s_add_u32 s64, s64, s65")
    for i in range(8):
        op = "buffer_load_short_d16" if i % 2 == 0 else "buffer_load_short_d16_hi"
        a(f"{op} v{112+i}, v108, s[56:59], s64 offen")
        if i < 7:
            a("s_add_u32 s64, s64, s11")
    a("s_add_u32 s15, s6, 160", "s_and_b32 s12, s15, 15", "s_lshr_b32 s13, s15, 4",
      "s_mul_i32 s66, s12, 86", "s_add_u32 s66, s66, s13", "s_lshl_b32 s66, s66, 10", f"s_add_u32 s66, s66, {W2F:#x}",
      "s_lshl_b32 s64, s13, 14", "s_lshl_b32 s65, s12, 6", "s_add_u32 s64, s64, s65", "s_add_u32 s65, s64, 4096")
    for i in range(8):
        op = "buffer_load_short_d16" if i % 2 == 0 else "buffer_load_short_d16_hi"
        so = "s64" if i < 4 else "s65"
        a(f"{op} v{120+i}, v109, s[60:63], {so} offen offset:{(i&3)*1024}")
    a("v_lshlrev_b32 v2, 2, v0", "v_mov_b32 v3, 0",
      "v_cmp_gt_u32 vcc, 256, v0", "s_and_saveexec_b64 s[68:69], vcc",
      f"v_add_u32 v2, {K1_LDS_ST}, v2", "ds_write_b32 v2, v3", "s_mov_b64 exec, s[68:69]")
    a("s_and_b32 s70, s3, 1", "s_bfe_u32 s71, s3, 0x10001", "s_lshr_b32 s72, s3, 2",
      "s_lshl_b32 s73, s70, 1", "s_add_u32 s73, s73, s71")
    a("v_and_b32 v2, 31, v1",
      "v_lshrrev_b32 v3, 5, v1",
      "v_bfe_u32 v4, v2, 1, 3",
      "s_lshl_b32 s74, s70, 12", "s_lshl_b32 s75, s72, 15", "s_add_u32 s74, s74, s75",
      "v_lshl_add_u32 v5, v2, 7, s74")
    for j in range(4):
        a(f"s_xor_b32 s76, s73, {j}", "s_lshl_b32 s76, s76, 1",
          "v_add_u32 v6, s76, v3",
          "v_xor_b32 v6, v6, v4",
          f"v_lshl_add_u32 v{8+j}, v6, 4, v5")
    a("v_bfe_u32 v2, v1, 4, 1",
      "v_xor_b32 v2, s72, v2",
      "v_and_b32 v4, 1, v1",
      "v_lshl_or_b32 v2, v2, 1, v4",
      "s_lshl_b32 s76, s71, 2",
      "v_or_b32 v2, s76, v2",
      "v_bfe_u32 v4, v1, 3, 1",
      "v_lshlrev_b32 v4, 2, v4",
      "v_xor_b32 v2, v2, v4",
      "v_lshlrev_b32 v2, 4, v2",
      "v_bfe_u32 v4, v1, 1, 1",
      "v_lshl_or_b32 v2, v4, 3, v2",
      "v_bfe_u32 v4, v1, 2, 2",
      "v_lshl_or_b32 v2, v4, 7, v2",
      "v_lshl_or_b32 v2, v3, 10, v2",
      f"s_add_u32 s75, s75, {K1_LDS_W}")
    for j in range(4):
        a(f"s_xor_b32 s76, s73, {j}", "s_lshl_b32 s76, s76, 11", "s_add_u32 s76, s76, s75",
          f"v_add_u32 v{12+j}, s76, v2")
    a("v_mov_b32 v96, 0", "v_mov_b32 v97, 0", "v_mov_b32 v98, 0", "s_mov_b32 s77, 0x3f803f80")
    a("s_waitcnt vmcnt(16) lgkmcnt(0)", "s_barrier")
    def issue(grp):
        b = 32 + 32 * (grp & 1)
        for j in range(4):
            a(f"ds_read_b128 {vr(b+4*j,4)}, v{8+j} offset:{grp*8192}")
            a(f"ds_read_b64_tr_b16 {vr(b+16+4*j,2)}, v{12+j} offset:{grp*8192}")
            a(f"ds_read_b64_tr_b16 {vr(b+16+4*j+2,2)}, v{12+j} offset:{grp*8192+512}")
    issue(0)
    for grp in range(4):
        if grp < 3:
            issue(grp + 1)
            a("s_waitcnt lgkmcnt(12)")
        else:
            a("s_waitcnt lgkmcnt(0)")
        b = 32 + 32 * (grp & 1)
        for j in range(4):
            mfma32(a, 16, b + 16 + 4 * j, b + 4 * j, None if (grp == 0 and j == 0) else 16)
            if j % 2 == 0:
                for e in range(4):
                    a(f"v_dot2c_f32_bf16 v96, s77, v{b+4*j+e}", f"v_dot2c_f32_bf16 v97, v{b+4*j+e}, v{b+4*j+e}")
            if j < 2:
                for e in range(4):
                    a(f"v_dot2c_f32_bf16 v98, s77, v{b+16+4*j+e}")
    a("v_and_b32 v2, 31, v1", "s_lshl_b32 s76, s70, 7", f"s_add_u32 s76, s76, {K1_LDS_ST}",
      "v_lshl_add_u32 v4, v2, 2, s76")
    sigma_lane(a, 5, 1, 6)
    a("s_lshl_b32 s76, s72, 4", "v_xor_b32 v5, s76, v5",
      "s_lshl_b32 s76, s71, 7", f"s_add_u32 s76, s76, {K1_LDS_ST+512}",
      "v_lshl_add_u32 v5, v5, 2, s76")
    a("ds_add_f32 v4, v96", "ds_add_f32 v4, v97 offset:256", "ds_add_f32 v5, v98")
    a("s_lshl_b32 s76, s3, 11", f"s_add_u32 s76, s76, {K1_LDS_EX}", "v_lshl_add_u32 v6, v1, 4, s76",
      "s_xor_b32 s76, s76, 0x2000", "v_lshl_add_u32 v7, v1, 4, s76",
      "s_nop 4")
    a("ds_write_b128 v6, v[24:27]", "ds_write_b128 v6, v[28:31] offset:1024")
    a("s_lshl_b32 s76, s71, 5", "s_lshl_b32 s78, s72, 4", "s_add_u32 s76, s76, s78", "s_lshl_b32 s76, s76, 2",
      f"s_add_u32 s76, s76, {K1_LDS_ST+512}", "v_lshl_add_u32 v5, v3, 5, s76")
    a("s_waitcnt lgkmcnt(0)", "s_barrier")
    a("ds_read_b32 v40, v4", "ds_read_b32 v41, v4 offset:256",
      "ds_read_b128 v[32:35], v7", "ds_read_b128 v[36:39], v7 offset:1024",
      "ds_read_b128 v[44:47], v5", "ds_read_b128 v[48:51], v5 offset:16")
    a("s_waitcnt lgkmcnt(4)")
    a(f"v_mul_f32 v40, {f32(1/512)}, v40",
      f"v_mul_f32 v41, {f32(1/512)}, v41",
      "v_fma_f32 v41, -v40, v40, v41",
      "v_max_f32 v41, 0, v41",
      f"v_add_f32 v41, {f32(1e-5)}, v41",
      "v_rsq_f32 v41, v41",
      "s_nop 0",
      f"v_mul_f32 v41, {f32(QSCALE)}, v41")
    a("s_waitcnt lgkmcnt(0)")
    for i in range(8):
        a(f"v_add_f32 v{16+i}, v{16+i}, v{32+i}")
    for i in range(8):
        a(f"v_fma_f32 v{16+i}, -v40, v{44+i}, v{16+i}")
    for i in range(8):
        a(f"v_mul_f32 v{16+i}, v41, v{16+i}")
    for i in range(4):
        a(f"v_cvt_pk_bf16_f32 v{24+i}, v{16+2*i}, v{17+2*i}")
    a("s_lshl_b32 s76, s4, 1", "s_add_u32 s76, s76, s70", "s_lshl_b32 s76, s76, 5",
      "s_lshl_b32 s78, s5, 2", "s_add_u32 s76, s76, s78", "s_lshl_b32 s78, s71, 1", "s_add_u32 s76, s76, s78",
      "s_add_u32 s76, s76, s72", "s_lshl_b32 s76, s76, 10", "v_lshlrev_b32 v2, 4, v1")
    if QF:
        a(f"s_add_u32 s76, s76, {QF:#x}")
    a("buffer_store_dwordx4 v[24:27], v2, s[52:55], s76 offen")
    a("s_mov_b32 s78, 0x07060100", "s_waitcnt vmcnt(1)")
    for i in range(8):
        a(f"v_perm_b32 v{100+i}, v{113+2*i}, v{112+2*i}, s78")
    a("buffer_store_dwordx4 v[100:103], v2, s[52:55], s14 offen")
    a("s_cmp_ge_u32 s6, 1216", f"s_cbranch_scc1 {Lend}")
    a("buffer_store_dwordx4 v[104:107], v2, s[52:55], s66 offen")
    a(f"s_branch {Lend}")

    a("L_k1_kv:")
    a("s_and_b32 s70, s5, 1", "s_lshr_b32 s71, s5, 1")
    a("s_cmp_eq_u32 s70, 0", "s_cbranch_scc0 L_k1_kv_v")
    srd(a, 56, 20, 512*32)
    a("s_branch L_k1_kv_go")
    a("L_k1_kv_v:")
    srd(a, 56, 22, 512*32)
    a("L_k1_kv_go:")
    a("v_and_b32 v2, 15, v1", "v_lshrrev_b32 v3, 4, v1",
      "v_lshlrev_b32 v4, 4, v1")
    for i in range(16):
        a(f"s_mov_b32 m0, {K1_LDS_EX + (i>>2)*4096}", f"s_mov_b32 s60, {(i>>2)*4096}",
          f"buffer_load_dwordx4 v4, s[56:59], s60 offen offset:{(i&3)*1024} lds")
    a("s_lshl_b32 s72, s71, 4", "v_add_u32 v5, s72, v2",
      "v_bfe_u32 v6, v5, 1, 3",
      "v_xor_b32 v6, v6, v3",
      "v_lshlrev_b32 v7, 7, v5",
      "v_lshl_or_b32 v8, v6, 4, v7",
      "v_xor_b32 v9, 64, v8",
      "v_mov_b32 v10, 0", "s_mov_b32 s77, 0x3f803f80",
      "v_lshlrev_b32 v4, 3, v2", "v_lshl_or_b32 v4, v3, 8, v4", f"v_add_u32 v4, {K1_LDS_EX}, v4")
    a("s_waitcnt vmcnt(0)")
    for kt in range(16):
        for e in range(2):
            a(f"ds_read_b64_tr_b16 {vr(32+4*kt+2*e,2)}, v4 offset:{kt*1024+e*128}")
    a("s_waitcnt lgkmcnt(0)", "s_barrier")
    for kt in range(16):
        a(f"ds_read_b128 {vr(96+4*kt,4)}, v{8+(kt&1)} offset:{(kt>>1)*8192}")
    a("s_waitcnt lgkmcnt(0)")
    a("s_cmp_eq_u32 s70, 0", "s_cbranch_scc0 L_k1_kv_v2")
    for which in range(2):
        if which == 1:
            a("L_k1_kv_v2:")
        for kt in range(16):
            if which == 0:
                mfma16(a, 16, 32+4*kt, 96+4*kt, None if kt == 0 else 16)
            else:
                mfma16(a, 16, 96+4*kt, 32+4*kt, None if kt == 0 else 16)
            for e in range(4):
                a(f"v_dot2c_f32_bf16 v10, s77, v{32+4*kt+e}")
        a("v_lshlrev_b32 v11, 2, v2", f"v_add_u32 v11, {K1_LDS_ST+768}, v11", "s_nop 1", "ds_add_f32 v11, v10")
        a("s_waitcnt lgkmcnt(0)", "s_barrier")
        if which == 0:
            a(f"v_lshlrev_b32 v12, 2, v5", f"v_add_u32 v12, {K1_LDS_ST}, v12",
              "v_lshlrev_b32 v13, 4, v3", f"v_add_u32 v13, {K1_LDS_ST+768}, v13",
              "ds_read_b32 v40, v12", "ds_read_b32 v41, v12 offset:256", "ds_read_b128 v[44:47], v13",
              "s_waitcnt lgkmcnt(0)")
            a(f"v_mul_f32 v40, {f32(1/512)}, v40", f"v_mul_f32 v41, {f32(1/512)}, v41",
              "v_fma_f32 v41, -v40, v40, v41", "v_max_f32 v41, 0, v41", f"v_add_f32 v41, {f32(1e-5)}, v41",
              "v_rsq_f32 v41, v41")
            for i in range(4):
                a(f"v_fma_f32 v{16+i}, -v40, v{44+i}, v{16+i}")
            for i in range(4):
                a(f"v_mul_f32 v{16+i}, v41, v{16+i}")
            a("v_cvt_pk_bf16_f32 v20, v16, v17", "v_cvt_pk_bf16_f32 v21, v18, v19")
            a("s_lshl_b32 s73, s4, 1", "s_lshr_b32 s74, s71, 1", "s_add_u32 s73, s73, s74", "s_lshl_b32 s73, s73, 11",
              "s_and_b32 s74, s71, 1", "s_lshl_b32 s74, s74, 8", "s_add_u32 s73, s73, s74", f"s_add_u32 s73, s73, {KVF:#x}",
              "v_lshrrev_b32 v14, 1, v3", "v_lshlrev_b32 v14, 9, v14", "v_lshl_or_b32 v14, v2, 4, v14",
              "v_and_b32 v15, 1, v3", "v_lshl_or_b32 v14, v15, 3, v14")
            a("buffer_store_dwordx2 v[20:21], v14, s[52:55], s73 offen")
            a("v_mov_b32 v22, 0", "s_nop 0", "v_dot2c_f32_bf16 v22, v20, v20", "v_dot2c_f32_bf16 v22, v21, v21", "s_nop 2",
              "v_mov_b32 v23, v22", "s_nop 1", "v_permlane32_swap_b32 v22, v23", "s_nop 1", "v_add_f32 v22, v22, v23",
              "v_mov_b32 v23, v22", "s_nop 1", "v_permlane16_swap_b32 v22, v23", "s_nop 1", "v_add_f32 v22, v22, v23")
            for sh in (8, 4, 2, 1):
                a("s_nop 1", f"v_max_f32_dpp v22, v22, v22 row_ror:{sh} row_mask:0xf bank_mask:0xf")
            a("s_lshl_b32 s73, s4, 2", "s_add_u32 s73, s73, s71", "s_lshl_b32 s73, s73, 2", f"s_add_u32 s73, s73, {KMAX:#x}",
              "v_mov_b32 v23, 0", "s_mov_b64 exec, 1",
              "buffer_store_dword v22, v23, s[52:55], s73 offen")
            a(f"s_branch {Lend}")
        else:
            a("s_lshl_b32 s72, s71, 6", f"s_add_u32 s72, s72, {K1_LDS_ST}", "v_lshl_add_u32 v12, v3, 4, s72",
              "ds_read_b128 v[40:43], v12", "ds_read_b128 v[44:47], v12 offset:256", "ds_read_b32 v48, v11",
              "s_waitcnt lgkmcnt(0)")
            for i in range(4):
                a(f"v_mul_f32 v{40+i}, {f32(1/512)}, v{40+i}", f"v_mul_f32 v{44+i}, {f32(1/512)}, v{44+i}",
                  f"v_fma_f32 v{44+i}, -v{40+i}, v{40+i}, v{44+i}", f"v_max_f32 v{44+i}, 0, v{44+i}",
                  f"v_add_f32 v{44+i}, {f32(1e-5)}, v{44+i}", f"v_rsq_f32 v{44+i}, v{44+i}")
            for i in range(4):
                a(f"v_fma_f32 v{16+i}, -v{40+i}, v48, v{16+i}")
            for i in range(4):
                a(f"v_mul_f32 v{16+i}, v{44+i}, v{16+i}")
            a("v_cvt_pk_bf16_f32 v20, v16, v17", "v_cvt_pk_bf16_f32 v21, v18, v19")
            sigma_lane(a, 14, 2, 15)
            a("s_lshl_b32 s73, s4, 1", "s_lshr_b32 s74, s71, 1", "s_add_u32 s73, s73, s74", "s_lshl_b32 s73, s73, 11",
              "s_and_b32 s74, s71, 1", "s_xor_b32 s74, s74, 1", "s_lshl_b32 s74, s74, 8", "s_add_u32 s73, s73, s74",
              f"s_add_u32 s73, s73, {KVF+1024:#x}",
              "v_lshlrev_b32 v14, 4, v14", "v_and_b32 v15, 1, v3", "v_lshl_or_b32 v14, v15, 9, v14",
              "v_lshrrev_b32 v15, 1, v3", "v_lshl_or_b32 v14, v15, 3, v14")
            a("buffer_store_dwordx2 v[20:21], v14, s[52:55], s73 offen")
    a(f"{Lend}:", "s_endpgm")
    return a.text() + kernel_desc(name, 160), f"; @launch kernel={name} grid=(256,1,1) block=(576,1,1) lds={K1_LDS}"
```

```python
from lib import *

K2_LDS = 132 * 1024
SM_THR = 40.0

def wg_decode(a):
    a("v_lshrrev_b32 v2, 6, v0", "v_and_b32 v1, 63, v0")
    a("s_and_b32 s4, s2, 7", "s_lshl_b32 s4, s4, 2", "s_lshr_b32 s5, s2, 3", "s_and_b32 s5, s5, 3")
    a("v_readfirstlane_b32 s3, v2")
    a("s_add_u32 s4, s4, s5", "s_lshr_b32 s5, s2, 5")

VQ, VK, VV, VP, VC, VO, VS = 4, 8, 12, 28, 36, 52, 68

def attn_body(a, u, first_off):
    cur = u & 1
    nxt = cur ^ 1
    S = VS + 16 * cur
    Sn = VS + 16 * nxt
    def e(i): a(f"v_exp_f32 v{S+i}, v{S+i}")
    def p(i): a(f"v_cvt_pk_bf16_f32 v{VP+i//2}, v{S+i}, v{S+i+1}")
    a("s_waitcnt lgkmcnt(0)")
    mfma32(a, Sn, VK, VQ, VC)
    a(f"ds_read_b128 {vr(VK,4)}, v2 offset:{(u+2)*2048}")
    e(0); e(1); e(2); e(3); p(0)
    mfma32(a, VO, VV + 8 * nxt + 4, VP + 4, VO)
    a("s_mov_b64 exec, s[60:61]")
    a(f"ds_read_b128 {vr(VV+8*nxt,4)}, v2 offset:{(u+1)*2048+1024}")
    a(f"ds_read_b128 {vr(VV+8*nxt+4,4)}, v2 offset:{(u+1)*2048+768}")
    a("s_mov_b64 exec, -1")
    e(4); e(5); p(2); e(6); e(7); p(4); e(8); e(9); p(6); e(10); e(11)
    mfma32(a, VO, VV + 8 * cur, VP, VO)
    p(8); e(12); e(13); p(10); e(14); e(15); p(12); p(14)

def gen_k2(name):
    a = A()
    kernel_begin(a, name)
    Lend = "L_k2_end"
    a("s_cmp_ge_u32 s2, 256", f"s_cbranch_scc1 {Lend}")
    a("s_load_dwordx2 s[40:41], s[0:1], 96")
    wg_decode(a)
    a("v_lshlrev_b32 v2, 4, v1", "v_lshlrev_b32 v3, 3, v1")
    a("s_and_b32 s6, s3, 1", "s_lshl_b32 s7, s4, 1", "s_add_u32 s7, s7, s6", "s_lshl_b32 s7, s7, 5",
      "s_lshl_b32 s8, s5, 2", "s_add_u32 s7, s7, s8", "s_lshr_b32 s8, s3, 1", "s_add_u32 s7, s7, s8",
      "s_lshl_b32 s7, s7, 10")
    a(f"s_mov_b32 s9, {KMAX:#x}", "s_lshl_b32 s10, s3, 10", f"s_add_u32 s11, s10, {KVF:#x}")
    a("s_waitcnt lgkmcnt(0)")
    srd(a, 52, 40, WS_BYTES)
    if QF:
        a(f"s_add_u32 s12, s7, {QF:#x}")
    else:
        a("s_mov_b32 s12, s7")
    a(f"buffer_load_dwordx4 {vr(VQ,4)}, v2, s[52:55], s12 offen")
    a("buffer_load_dwordx2 v[28:29], v3, s[52:55], s9 offen")
    for n in range(16):
        a(f"s_add_u32 m0, s10, {n*8192}", f"s_add_u32 s13, s11, {n*8192}",
          "buffer_load_dwordx4 v2, s[52:55], s13 offen lds")
    a("s_mov_b32 s60, 0xffff0000", "s_mov_b32 s61, 0xffff0000", "s_mov_b32 s62, 0x3f803f80")
    for i in range(16):
        a(f"v_mov_b32 v{VV+i}, s62")
    for i in range(16):
        a(f"v_mov_b32 v{VO+i}, 0")
    for i in range(4):
        a(f"v_mov_b32 v{VP+4+i}, 0")
    a("v_mov_b32 v30, 0")
    a("s_waitcnt vmcnt(16)")
    for i in range(4):
        a(f"v_dot2c_f32_bf16 v30, v{VQ+i}, v{VQ+i}")
    a("v_max_f32 v28, v28, v29")
    for sh in (8, 4, 2, 1):
        a("s_nop 1", f"v_max_f32_dpp v28, v28, v28 row_ror:{sh} row_mask:0xf bank_mask:0xf")
    a("v_mov_b32 v29, v28", "v_mov_b32 v31, v30", "s_nop 1",
      "v_permlane32_swap_b32 v28, v29", "v_permlane32_swap_b32 v30, v31", "s_nop 1",
      "v_max_f32 v28, v28, v29", "v_add_f32 v30, v30, v31",
      "v_mov_b32 v29, v28", "s_nop 1", "v_permlane16_swap_b32 v28, v29", "s_nop 1",
      "v_max_f32 v28, v28, v29", "v_mul_f32 v30, v30, v28", "v_sqrt_f32 v30, v30", "s_nop 0")
    a(f"v_cmp_nge_f32 vcc, {f32(SM_THR)}, v30", "s_cmp_eq_u64 vcc, 0", "s_cbranch_scc1 L_k2_fast")
    a(f"s_mov_b32 s14, {KVF:#x}", f"v_mov_b32 v30, {f32(-3.0e38)}")
    a("L_k2_mx:")
    a(f"buffer_load_dwordx4 {vr(VK,4)}, v2, s[52:55], s14 offen", "s_waitcnt vmcnt(0)")
    mfma32(a, VS, VK, VQ, None)
    a("s_nop 7", "s_nop 4")
    for i in range(8):
        a(f"v_max3_f32 v30, v{VS+2*i}, v{VS+2*i+1}, v30")
    a("s_add_u32 s14, s14, 2048", f"s_cmp_lt_u32 s14, {KVF+64*2048:#x}", "s_cbranch_scc1 L_k2_mx")
    a("v_mov_b32 v31, v30", "s_nop 1", "v_permlane32_swap_b32 v30, v31", "s_nop 1", "v_max_f32 v30, v30, v31")
    a("L_k2_fast:")
    for i in range(16):
        a(f"v_sub_f32 v{VC+i}, 0, v30")
    a("s_waitcnt vmcnt(13)", "s_barrier")
    a(f"ds_read_b128 {vr(VK,4)}, v2")
    a("s_mov_b64 exec, s[60:61]",
      f"ds_read_b128 {vr(VV,4)}, v2 offset:1024", f"ds_read_b128 {vr(VV+4,4)}, v2 offset:768",
      "s_mov_b64 exec, -1")
    a("s_waitcnt lgkmcnt(2)")
    mfma32(a, VS, VK, VQ, VC)
    a(f"ds_read_b128 {vr(VK,4)}, v2 offset:2048")
    a("s_mov_b32 s14, 0", "s_nop 7", "s_nop 1")
    a(".p2align 6")
    a("L_k2_loop:")
    a("s_cmp_eq_u32 s14, 2", "s_cbranch_scc0 L_k2_nosync", "s_waitcnt vmcnt(0)", "s_barrier", "L_k2_nosync:")
    for u in range(4):
        attn_body(a, u, 0)
    a("v_add_u32 v2, 0x2000, v2", "s_add_u32 s14, s14, 1", "s_cmp_lt_u32 s14, 16", "s_cbranch_scc1 L_k2_loop")
    mfma32(a, VO, VV + 8 + 4, VP + 4, VO)
    a("v_lshlrev_b32 v2, 4, v1", f"s_add_u32 s12, s7, {OF:#x}", "s_nop 7", "s_nop 3")
    a(f"v_rcp_f32 v3, v{VO}", "s_nop 0")
    for i in range(8):
        a(f"v_mul_f32 v{VO+8+i}, v3, v{VO+8+i}")
    for i in range(4):
        a(f"v_cvt_pk_bf16_f32 v{VP+i}, v{VO+8+2*i}, v{VO+9+2*i}")
    a(f"buffer_store_dwordx4 {vr(VP,4)}, v2, s[52:55], s12 offen")
    a(f"{Lend}:", "s_endpgm")
    return a.text() + kernel_desc(name, 100), f"; @launch kernel={name} grid=(256,1,1) block=(512,1,1) lds={K2_LDS}"
```

```python
from lib import *
from k1 import load_ptrs, sigma_lane
from k2 import wg_decode

def unpack_add(a, acc, src, tmp):
    for i in range(4):
        a(f"v_lshlrev_b32 v{tmp}, 16, v{src+i}", f"v_and_b32 v{tmp+1}, 0xffff0000, v{src+i}",
          f"v_add_f32 v{acc+2*i}, v{acc+2*i}, v{tmp}", f"v_add_f32 v{acc+2*i+1}, v{acc+2*i+1}, v{tmp+1}")

def gen_gemm64(name, tag, KT, ABASE, BBASE, mode):
    NS = 5
    NC = (KT + 7) // 8
    lds = 32768 * min(NS, NC)
    a = A()
    kernel_begin(a, name)
    Lend = f"L_{tag}_end"
    a("s_cmp_ge_u32 s2, 256", f"s_cbranch_scc1 {Lend}")
    load_ptrs(a)
    wg_decode(a)
    a("s_and_b32 s70, s3, 1", "s_bfe_u32 s71, s3, 0x10001", "s_lshr_b32 s72, s3, 2")
    a("v_lshlrev_b32 v2, 4, v1")
    a(f"s_mul_i32 s6, s5, {2*KT*1024}", "s_lshl_b32 s10, s3, 10", "s_add_u32 s6, s6, s10", f"s_add_u32 s6, s6, {ABASE:#x}",
      f"s_add_u32 s7, s6, {KT*1024}",
      f"s_mul_i32 s8, s4, {2*KT*1024}", "s_add_u32 s8, s8, s10", f"s_add_u32 s8, s8, {BBASE:#x}",
      f"s_add_u32 s9, s8, {KT*1024}")
    a("s_lshl_b32 s11, s5, 1", "s_add_u32 s11, s11, s70", "s_lshl_b32 s11, s11, 1", "s_add_u32 s11, s11, s72")
    a("s_lshl_b32 s12, s4, 1", "s_add_u32 s12, s12, s71")
    a("s_lshl_b32 s13, s12, 15", "s_lshl_b32 s14, s11, 5", "s_add_u32 s13, s13, s14")
    a("v_and_b32 v3, 31, v1", "v_lshrrev_b32 v4, 5, v1", "v_lshlrev_b32 v4, 4, v4", "v_lshl_or_b32 v3, v3, 10, v4")
    a("s_lshl_b32 s15, s12, 5", "s_add_u32 s15, s15, s11", "s_lshl_b32 s15, s15, 10", f"s_add_u32 s15, s15, {HF:#x}")
    a("s_waitcnt lgkmcnt(0)")
    srd(a, 52, 40, WS_BYTES)
    if mode == "oproj":
        srd(a, 44, 16, 2048*1024)
        a("buffer_load_dwordx4 v[8:11], v3, s[44:47], s13 offen")
    else:
        srd(a, 44, 36, 2048*1024)
        srd(a, 48, 34, 1024)
        a("buffer_load_dwordx4 v[8:11], v2, s[52:55], s15 offen")
        a("buffer_load_dwordx4 v[12:15], v4, s[48:51], s14 offen")
    def issue(c):
        slot = c % NS
        for st in range(4):
            a(f"s_add_u32 m0, s10, {slot*32768+st*8192}", f"s_add_u32 s73, s{6+st}, {c*8192}",
              "buffer_load_dwordx4 v2, s[52:55], s73 offen lds")
    for c in range(min(NS, NC)):
        issue(c)
    a("s_lshl_b32 s73, s72, 8", "v_xor_b32 v5, s73, v2",
      "s_lshl_b32 s73, s70, 13", "s_lshl_b32 s74, s72, 10", "s_add_u32 s73, s73, s74", "v_add_u32 v32, s73, v5",
      "s_lshl_b32 s73, s71, 13", "s_add_u32 s73, s73, s74", "s_add_u32 s73, s73, 16384", "v_add_u32 v35, s73, v2")
    for b in (1, 2):
        a(f"v_add_u32 v{32+b}, {b*65536:#x}, v32", f"v_add_u32 v{35+b}, {b*65536:#x}, v35")
    last = min(NS, NC) - 1
    first = True
    for c in range(NC):
        a(f"s_waitcnt vmcnt({4*(last-c)})", "s_barrier")
        if c >= 1 and c - 1 + NS < NC:
            issue(c - 1 + NS)
            last = c - 1 + NS
        slot = c % NS
        nk = min(8, KT - 8 * c) // 2
        for i in range(nk):
            off = (slot & 1) * 32768 + i * 2048
            a(f"ds_read_b128 {vr(40+8*i,4)}, v{32+slot//2} offset:{off}")
            a(f"ds_read_b128 {vr(44+8*i,4)}, v{35+slot//2} offset:{off}")
        for i in range(nk):
            a(f"s_waitcnt lgkmcnt({2*(nk-1-i)})")
            mfma32(a, 16, 40 + 8 * i, 44 + 8 * i, None if first else 16)
            first = False
    exslot = ((NC - 1) % NS + 1) % min(NS, NC)
    a("s_lshl_b32 s73, s3, 11", f"s_add_u32 s73, s73, {exslot*32768}", "v_add_u32 v6, s73, v2",
      "s_xor_b32 s73, s73, 0x2000", "v_add_u32 v7, s73, v2", "s_nop 7")
    a("ds_write_b128 v6, v[24:27]", "ds_write_b128 v6, v[28:31] offset:1024")
    unpack_add(a, 16, 8, 38)
    if mode != "oproj":
        unpack_add(a, 16, 12, 38)
    a("s_waitcnt lgkmcnt(0)", "s_barrier")
    a("ds_read_b128 v[40:43], v7", "ds_read_b128 v[44:47], v7 offset:1024", "s_waitcnt lgkmcnt(0)")
    for i in range(8):
        a(f"v_add_f32 v{16+i}, v{16+i}, v{40+i}")
    for i in range(4):
        a(f"v_cvt_pk_bf16_f32 v{24+i}, v{16+2*i}, v{17+2*i}")
    if mode == "oproj":
        a("buffer_store_dwordx4 v[24:27], v2, s[52:55], s15 offen")
    else:
        a("buffer_store_dwordx4 v[24:27], v3, s[44:47], s13 offen")
    a(f"{Lend}:", "s_endpgm")
    return a.text() + kernel_desc(name, 72), f"; @launch kernel={name} grid=(256,1,1) block=(512,1,1) lds={lds}"
```

```python
from lib import *
from k1 import load_ptrs, sigma_lane
import math

K4_EX = 98304
K4_ST = K4_EX + 49152
K4_LDS = K4_ST + 2048
GK1 = -2.0 * math.sqrt(2.0 / math.pi) * math.log2(math.e)
GK2 = GK1 * 0.044715

def gen_k4(name):
    a = A()
    kernel_begin(a, name)
    Lend = "L_k4_end"
    a("s_cmp_ge_u32 s2, 240", f"s_cbranch_scc1 {Lend}")
    load_ptrs(a)
    a("v_lshrrev_b32 v2, 6, v0", "v_and_b32 v1, 63, v0")
    a("s_and_b32 s4, s2, 7", "s_lshl_b32 s4, s4, 1", "s_bfe_u32 s5, s2, 0x10003")
    a("v_readfirstlane_b32 s3, v2")
    a("s_add_u32 s4, s4, s5", "s_lshr_b32 s5, s2, 4")
    a("s_and_b32 s70, s3, 3", "s_lshr_b32 s72, s3, 2")
    a("v_lshlrev_b32 v2, 4, v1")
    a("s_lshl_b32 s6, s72, 4", "s_add_u32 s6, s6, s70", "s_lshl_b32 s6, s6, 10",
      "s_mul_i32 s7, s5, 98304", "s_add_u32 s7, s7, s6", f"s_add_u32 s7, s7, {W1F:#x}")
    a("s_lshl_b32 s12, s4, 2", "s_add_u32 s12, s12, s70",
      "s_lshl_b32 s8, s12, 5", "s_lshl_b32 s9, s72, 4", "s_add_u32 s8, s8, s9", "s_lshl_b32 s8, s8, 10",
      f"s_add_u32 s8, s8, {HF:#x}")
    for p in range(4):
        a(f"s_xor_b32 s{60+p}, s70, {p}", f"s_lshl_b32 s{60+p}, s{60+p}, 10")
    a("s_mul_i32 s10, s5, 192", "s_lshl_b32 s9, s72, 5", "s_add_u32 s10, s10, s9",
      "v_lshrrev_b32 v4, 5, v1", "v_lshlrev_b32 v5, 4, v4")
    a("s_waitcnt lgkmcnt(0)")
    srd(a, 52, 40, WS_BYTES)
    srd(a, 48, 30, 2752)
    for nt in range(3):
        a(f"buffer_load_dwordx4 {vr(192+4*nt,4)}, v5, s[48:51], s10 offen offset:{64*nt}")
    for c in range(4):
        for nt in range(3):
            a(f"s_add_u32 m0, s6, {nt*32768+c*4096}", f"s_add_u32 s73, s7, {nt*32768+c*4096}",
              "buffer_load_dwordx4 v2, s[52:55], s73 offen lds")
        for p in range(4):
            a(f"s_add_u32 s73, s8, s{60+p}", f"s_add_u32 s73, s73, {c*4096}",
              f"buffer_load_dwordx4 {vr(64+16*c+4*p,4)}, v2, s[52:55], s73 offen")
    a("v_lshlrev_b32 v6, 2, v0", "v_mov_b32 v7, 0", f"v_add_u32 v6, {K4_ST}, v6", "ds_write_b32 v6, v7")
    a("s_lshl_b32 s73, s72, 8", "v_xor_b32 v6, s73, v2", "s_lshl_b32 s74, s72, 14")
    for p in range(4):
        a(f"s_add_u32 s73, s74, s{60+p}", f"v_add_u32 v{176+p}, s73, v6", f"v_add_u32 v{180+p}, 0x10000, v{176+p}")
    for i in range(5):
        a(f"v_mov_b32 v{184+i}, 0")
    a("s_mov_b32 s77, 0x3f803f80")
    for c in range(4):
        a(f"s_waitcnt vmcnt({7*(3-c)}) lgkmcnt(0)", "s_barrier")
        for p in range(4):
            for nt in range(3):
                if nt < 2:
                    a(f"ds_read_b128 {vr(128+12*p+4*nt,4)}, v{176+p} offset:{nt*32768+c*4096}")
                else:
                    a(f"ds_read_b128 {vr(128+12*p+4*nt,4)}, v{180+p} offset:{c*4096}")
        for p in range(4):
            B = 64 + 16 * c + 4 * p
            for nt in range(3):
                a(f"s_waitcnt lgkmcnt({11-(3*p+nt)})")
                mfma32(a, 16 + 16 * nt, 128 + 12 * p + 4 * nt, B, None if (c == 0 and p == 0) else 16 + 16 * nt)
                if p == 0:
                    for e in range(4):
                        a(f"v_dot2c_f32_bf16 v{186+nt}, s77, v{128+4*nt+e}")
                if nt == 1:
                    for e in range(4):
                        a(f"v_dot2c_f32_bf16 v184, s77, v{B+e}")
                if nt == 2:
                    for e in range(4):
                        a(f"v_dot2c_f32_bf16 v185, v{B+e}, v{B+e}")
    a("v_and_b32 v6, 31, v1", "s_lshl_b32 s73, s70, 7", f"s_add_u32 s73, s73, {K4_ST}", "v_lshl_add_u32 v6, v6, 2, s73")
    sigma_lane(a, 7, 1, 8)
    a("s_lshl_b32 s73, s72, 4", "v_xor_b32 v7, s73, v7", "v_lshlrev_b32 v7, 2, v7", f"v_add_u32 v7, {K4_ST+1024}, v7")
    a("ds_add_f32 v6, v184", "ds_add_f32 v6, v185 offset:512")
    for nt in range(3):
        a(f"ds_add_f32 v7, v{186+nt} offset:{128*nt}")
    a("s_mul_i32 s73, s3, 6144", f"s_add_u32 s73, s73, {K4_EX}", "v_add_u32 v8, s73, v2",
      "s_xor_b32 s74, s3, 4", "s_mul_i32 s73, s74, 6144", f"s_add_u32 s73, s73, {K4_EX}", "v_add_u32 v9, s73, v2")
    for nt in range(3):
        a(f"ds_write_b128 v8, {vr(24+16*nt,4)} offset:{2048*nt}", f"ds_write_b128 v8, {vr(28+16*nt,4)} offset:{2048*nt+1024}")
    a("s_lshl_b32 s73, s72, 6", f"s_add_u32 s73, s73, {K4_ST+1024}", "v_lshl_add_u32 v7, v4, 5, s73")
    for nt in range(3):
        for i in range(4):
            a(f"v_lshlrev_b32 v{128+8*nt+2*i}, 16, v{192+4*nt+i}", f"v_and_b32 v{129+8*nt+2*i}, 0xffff0000, v{192+4*nt+i}")
    a(f"v_mov_b32 v12, {f32(GK2)}", f"v_mov_b32 v13, {f32(GK1)}")
    a("s_waitcnt lgkmcnt(0)", "s_barrier")
    a("ds_read_b32 v10, v6", "ds_read_b32 v11, v6 offset:512")
    for nt in range(3):
        a(f"ds_read_b128 {vr(64+8*nt,4)}, v9 offset:{2048*nt}", f"ds_read_b128 {vr(68+8*nt,4)}, v9 offset:{2048*nt+1024}")
        a(f"ds_read_b128 {vr(96+8*nt,4)}, v7 offset:{128*nt}", f"ds_read_b128 {vr(100+8*nt,4)}, v7 offset:{128*nt+16}")
    a("s_waitcnt lgkmcnt(12)")
    a(f"v_mul_f32 v10, {f32(1/512)}, v10", f"v_mul_f32 v11, {f32(1/512)}, v11",
      "v_fma_f32 v11, -v10, v10, v11", "v_max_f32 v11, 0, v11", f"v_add_f32 v11, {f32(1e-5)}, v11", "v_rsq_f32 v11, v11")
    a("s_mul_i32 s73, s12, 86", "s_mul_i32 s74, s5, 6", "s_add_u32 s73, s73, s74", "s_add_u32 s73, s73, s72",
      "s_lshl_b32 s73, s73, 10", f"s_add_u32 s73, s73, {FF:#x}")
    for nt in range(3):
        X = 16 + 16 * nt
        T = X + 8
        a(f"s_waitcnt lgkmcnt({4*(2-nt)})")
        for i in range(8):
            a(f"v_add_f32 v{X+i}, v{X+i}, v{64+8*nt+i}")
        for i in range(8):
            a(f"v_fma_f32 v{X+i}, -v10, v{96+8*nt+i}, v{X+i}")
        for i in range(8):
            a(f"v_fma_f32 v{X+i}, v{X+i}, v11, v{128+8*nt+i}")
        for i in range(8):
            a(f"v_mul_f32 v{T+i}, v{X+i}, v{X+i}")
        for i in range(8):
            a(f"v_fma_f32 v{T+i}, v{T+i}, v12, v13")
        for i in range(8):
            a(f"v_mul_f32 v{T+i}, v{T+i}, v{X+i}")
        for i in range(8):
            a(f"v_exp_f32 v{T+i}, v{T+i}")
        for i in range(8):
            a(f"v_add_f32 v{T+i}, 1.0, v{T+i}")
        for i in range(8):
            a(f"v_rcp_f32 v{T+i}, v{T+i}")
        for i in range(8):
            a(f"v_mul_f32 v{X+i}, v{X+i}, v{T+i}")
        for i in range(4):
            a(f"v_cvt_pk_bf16_f32 v{T+i}, v{X+2*i}, v{X+2*i+1}")
        a(f"buffer_store_dwordx4 {vr(T,4)}, v2, s[52:55], s73 offen offset:{2048*nt}" if nt < 2 else
          f"s_add_u32 s73, s73, 4096\nbuffer_store_dwordx4 {vr(T,4)}, v2, s[52:55], s73 offen")
        if nt == 0:
            a("s_cmp_eq_u32 s5, 14", f"s_cbranch_scc1 {Lend}")
    a(f"{Lend}:", "s_endpgm")
    return a.text() + kernel_desc(name, 204), f"; @launch kernel={name} grid=(240,1,1) block=(512,1,1) lds={K4_LDS}"
```

```python
class A:
    def __init__(self):
        self.lines = []
        self.uid = 0
    def __call__(self, s, *more):
        for t in (s,) + more:
            for l in t.split("\n"):
                l = l.rstrip()
                if l.strip() == "":
                    continue
                if l.strip().endswith(":") or l.startswith("."):
                    self.lines.append(l.strip())
                else:
                    self.lines.append("    " + l.strip())
    def c(self, s):
        self.lines.append("    ; " + s)
    def label(self, base):
        self.uid += 1
        return f"L_{base}_{self.uid}"
    def text(self):
        return "\n".join(self.lines) + "\n"

def vr(a, n):
    return f"v[{a}:{a+n-1}]" if n > 1 else f"v{a}"
def sr(a, n):
    return f"s[{a}:{a+n-1}]" if n > 1 else f"s{a}"

def kernel_begin(a, name):
    a(".text", f".globl {name}", ".p2align 8", f".type {name},@function", f"{name}:")

def kernel_desc(name, nvgpr, nsgpr=96, accum=None):
    if accum is None:
        accum = (nvgpr + 3) // 4 * 4
    return f""".section .rodata,"a"
.p2align 6
.amdhsa_kernel {name}
  .amdhsa_next_free_vgpr {nvgpr}
  .amdhsa_next_free_sgpr {nsgpr}
  .amdhsa_accum_offset {accum}
  .amdhsa_group_segment_fixed_size 0
  .amdhsa_kernarg_size 104
  .amdhsa_user_sgpr_count 2
  .amdhsa_user_sgpr_kernarg_segment_ptr 1
  .amdhsa_system_sgpr_workgroup_id_x 1
.end_amdhsa_kernel
"""

def srd(a, d, base, nbytes):
    a(f"s_mov_b32 s{d}, s{base}", f"s_and_b32 s{d+1}, s{base+1}, 0xffff",
      f"s_mov_b32 s{d+2}, {nbytes:#x}", f"s_mov_b32 s{d+3}, 0x00020000")

def mfma32(a, d, A_, B_, c):
    cs = "0" if c is None else vr(c, 16)
    a(f"v_mfma_f32_32x32x16_bf16 {vr(d,16)}, {vr(A_,4)}, {vr(B_,4)}, {cs}")
def mfma16(a, d, A_, B_, c):
    cs = "0" if c is None else vr(c, 4)
    a(f"v_mfma_f32_16x16x32_bf16 {vr(d,4)}, {vr(A_,4)}, {vr(B_,4)}, {cs}")

import struct
def f32(x):
    return "0x%08x" % struct.unpack("<I", struct.pack("<f", x))[0]

QF   = 0x000000
KVF  = 0x200000
KMAX = 0x220000
WOF  = 0x240000
W1F  = 0x2C0000
W2F  = 0x440000
OF   = 0x600000
HF   = 0x800000
FF   = 0xA00000
WS_BYTES = 0x1000000
KA = dict(x=0, wq=8, wk=16, wv=24, wo=32, bx=40, w1=48, b1=56, w2=64, b2=72, out=80, dbg=88, ws=96)
```

```python
import sys
from lib import *
from k1 import gen_k1
from k2 import gen_k2
from k35 import gen_gemm64
from k4 import gen_k4
NAME = "sequential_preLN__grouped_kv_mqa__dense_activation_gelu__prompt"
ref = open(f"cdna_kernels/{NAME}.s.ref").read().split("\n")
head = [l for l in ref if l.startswith(";") and "@launch" not in l and "Override launch" not in l and "grid=ceil" not in l]
parts = [gen_k1("qkv_kernel"), gen_k2("attn_kernel"),
         gen_gemm64("oproj_kernel", "k3", 32, WOF, OF, "oproj"),
         gen_k4("ffn1_kernel"),
         gen_gemm64("ffn2_kernel", "k5", 86, W2F, FF, "ffn2")]
out = "\n".join(head) + "\n" + "\n".join(p[1] for p in parts) + "\n"
out += '.amdgcn_target "amdgcn-amd-amdhsa--gfx950"\n'
out += "".join(p[0] for p in parts)
dst = sys.argv[1] if len(sys.argv) > 1 else f"cdna_kernels/{NAME}.s"
open(dst, "w").write(out)
print("wrote", dst, len(out))
```

```python
from lib import *
import math, os

K1_LDS_X = 0
K1_LDS_W = 65536
K1_LDS_EX = 131072
K1_LDS_ST = 131072 + 16384
K1_LDS = K1_LDS_ST + 1024
QSCALE = 0.25 * math.log2(math.e)

def load_ptrs(a):
    a("s_load_dwordx16 s[16:31], s[0:1], 0",
      "s_load_dwordx8 s[32:39], s[0:1], 64",
      "s_load_dwordx2 s[40:41], s[0:1], 96")

def sigma_lane(a, d, src, t):
    a(f"v_and_b32 v{d}, 0x13, v{src}",
      f"v_and_b32 v{t}, 4, v{src}",
      f"v_lshl_or_b32 v{d}, v{t}, 1, v{d}",
      f"v_and_b32 v{t}, 8, v{src}",
      f"v_lshrrev_b32 v{t}, 1, v{t}",
      f"v_or_b32 v{d}, v{d}, v{t}")

def gen_k1(name):
    a = A()
    kernel_begin(a, name)
    Lend = "L_k1_end"
    a("s_cmp_ge_u32 s2, 256", f"s_cbranch_scc1 {Lend}")
    stamp(a, 0, True); stamp(a, 1)
    load_ptrs(a)
    a("v_lshrrev_b32 v2, 6, v0", "v_and_b32 v1, 63, v0")
    a("s_and_b32 s4, s2, 7", "s_lshl_b32 s4, s4, 2", "s_lshr_b32 s5, s2, 3", "s_and_b32 s5, s5, 3")
    a("v_readfirstlane_b32 s3, v2")
    a("s_add_u32 s4, s4, s5")
    a("s_lshr_b32 s5, s2, 5")
    a("s_waitcnt lgkmcnt(0)")
    stamp(a, 2)
    srd(a, 44, 16, 2048*1024)
    srd(a, 48, 18, 512*1024)
    srd(a, 52, 40, WS_BYTES)
    a("s_cmp_eq_u32 s3, 8", "s_cbranch_scc1 L_k1_kv")
    a.c("x DMA: row = 8w + (l>>3), piece = (l&7) ^ ((row>>1)&7)")
    a("v_lshrrev_b32 v2, 3, v1",
      "s_lshl_b32 s6, s3, 3",
      "v_add_u32 v3, s6, v2",
      "v_bfe_u32 v4, v3, 1, 3",
      "v_and_b32 v5, 7, v1",
      "v_xor_b32 v4, v4, v5",
      "v_lshlrev_b32 v4, 4, v4",
      "v_lshl_or_b32 v6, v3, 10, v4")
    a.c("wq DMA: krow=l>>3, piece=(l&7)^(((krow>>1)&1)<<2)")
    a("v_bfe_u32 v4, v2, 1, 1",
      "v_lshlrev_b32 v4, 2, v4",
      "v_xor_b32 v4, v4, v5",
      "v_lshlrev_b32 v4, 4, v4",
      "v_lshl_or_b32 v7, v3, 10, v4")
    a("s_lshl_b32 s7, s4, 16",
      "s_lshl_b32 s8, s3, 10",
      "s_lshl_b32 s9, s5, 7",
      f"s_add_u32 s10, s8, {K1_LDS_W}")
    for i in range(8):
        a(f"s_add_u32 m0, s8, {i*8064}", "s_nop 0",
          f"buffer_load_dwordx4 v6, s[44:47], s7 offen offset:{i*128} lds")
        a(f"s_add_u32 m0, s10, {i*8192}", "s_nop 0",
          f"buffer_load_dwordx4 v7, s[48:51], s9 offen lds")
        if i < 7:
            a("s_add_u32 s9, s9, 0x10000")
    a.c("role C decode")
    a("s_lshl_b32 s6, s2, 3", "s_add_u32 s6, s6, s3")
    a("s_cmp_ge_u32 s6, 512", "s_cbranch_scc1 L_k1_c1")
    srd(a, 56, 24, 512*1024)
    a("s_mov_b32 s11, 1024", "s_lshr_b32 s12, s6, 5", "s_and_b32 s13, s6, 31",
      "s_lshl_b32 s14, s6, 10", f"s_add_u32 s14, s14, {WOF:#x}", "s_branch L_k1_cgo")
    a("L_k1_c1:")
    a("s_cmp_ge_u32 s6, 1888", "s_cbranch_scc1 L_k1_c2")
    srd(a, 56, 28, 512*2752)
    a("s_sub_u32 s15, s6, 512", "s_mov_b32 s11, 2752", "s_lshr_b32 s12, s15, 5", "s_and_b32 s13, s15, 31",
      "s_lshl_b32 s14, s15, 10", f"s_add_u32 s14, s14, {W1F:#x}", "s_branch L_k1_cgo")
    a("L_k1_c2:")
    srd(a, 56, 32, 1376*1024)
    a("s_sub_u32 s15, s6, 1888", "s_mov_b32 s11, 1024", "s_and_b32 s12, s15, 15", "s_lshr_b32 s13, s15, 4",
      "s_mul_i32 s14, s12, 86", "s_add_u32 s14, s14, s13", "s_lshl_b32 s14, s14, 10", f"s_add_u32 s14, s14, {W2F:#x}")
    a("L_k1_cgo:")
    srd(a, 60, 32, 1376*1024)
    sigma_lane(a, 4, 1, 5)
    a("v_lshlrev_b32 v4, 1, v4",
      "v_lshrrev_b32 v5, 5, v1",
      "s_lshl_b32 s15, s11, 3",
      "v_mad_u32_u24 v108, v5, s15, v4",
      "v_lshl_or_b32 v109, v5, 13, v4")
    a("s_mul_i32 s64, s13, s11", "s_lshl_b32 s64, s64, 4", "s_lshl_b32 s65, s12, 6", "s_add_u32 s64, s64, s65")
    NOC = os.environ.get("NOC", "0") == "1"
    if NOC: a("s_branch L_k1_noc")
    for i in range(8):
        op = "buffer_load_short_d16" if i % 2 == 0 else "buffer_load_short_d16_hi"
        a(f"{op} v{112+i}, v108, s[56:59], s64 offen")
        if i < 7:
            a("s_add_u32 s64, s64, s11")
    a("s_add_u32 s15, s6, 160", "s_and_b32 s12, s15, 15", "s_lshr_b32 s13, s15, 4",
      "s_mul_i32 s66, s12, 86", "s_add_u32 s66, s66, s13", "s_lshl_b32 s66, s66, 10", f"s_add_u32 s66, s66, {W2F:#x}",
      "s_lshl_b32 s64, s13, 14", "s_lshl_b32 s65, s12, 6", "s_add_u32 s64, s64, s65", "s_add_u32 s65, s64, 4096")
    for i in range(8):
        op = "buffer_load_short_d16" if i % 2 == 0 else "buffer_load_short_d16_hi"
        so = "s64" if i < 4 else "s65"
        a(f"{op} v{120+i}, v109, s[60:63], {so} offen offset:{(i&3)*1024}")
    a("L_k1_noc:")
    a("v_lshlrev_b32 v2, 2, v0", "v_mov_b32 v3, 0",
      "v_cmp_gt_u32 vcc, 256, v0", "s_and_saveexec_b64 s[68:69], vcc",
      f"v_add_u32 v2, {K1_LDS_ST}, v2", "ds_write_b32 v2, v3", "s_mov_b64 exec, s[68:69]")
    a("s_and_b32 s70, s3, 1", "s_bfe_u32 s71, s3, 0x10001", "s_lshr_b32 s72, s3, 2",
      "s_lshl_b32 s73, s70, 1", "s_add_u32 s73, s73, s71")
    a("v_and_b32 v2, 31, v1",
      "v_lshrrev_b32 v3, 5, v1",
      "v_bfe_u32 v4, v2, 1, 3",
      "s_lshl_b32 s74, s70, 12", "s_lshl_b32 s75, s72, 15", "s_add_u32 s74, s74, s75",
      "v_lshl_add_u32 v5, v2, 7, s74")
    for j in range(4):
        a(f"s_xor_b32 s76, s73, {j}", "s_lshl_b32 s76, s76, 1",
          "v_add_u32 v6, s76, v3",
          "v_xor_b32 v6, v6, v4",
          f"v_lshl_add_u32 v{8+j}, v6, 4, v5")
    a("v_bfe_u32 v2, v1, 4, 1",
      "v_xor_b32 v2, s72, v2",
      "v_and_b32 v4, 1, v1",
      "v_lshl_or_b32 v2, v2, 1, v4",
      "s_lshl_b32 s76, s71, 2",
      "v_or_b32 v2, s76, v2",
      "v_bfe_u32 v4, v1, 3, 1",
      "v_lshlrev_b32 v4, 2, v4",
      "v_xor_b32 v2, v2, v4",
      "v_lshlrev_b32 v2, 4, v2",
      "v_bfe_u32 v4, v1, 1, 1",
      "v_lshl_or_b32 v2, v4, 3, v2",
      "v_bfe_u32 v4, v1, 2, 2",
      "v_lshl_or_b32 v2, v4, 7, v2",
      "v_lshl_or_b32 v2, v3, 10, v2",
      f"s_add_u32 s75, s75, {K1_LDS_W}")
    for j in range(4):
        a(f"s_xor_b32 s76, s73, {j}", "s_lshl_b32 s76, s76, 11", "s_add_u32 s76, s76, s75",
          f"v_add_u32 v{12+j}, s76, v2")
    a("v_mov_b32 v96, 0", "v_mov_b32 v97, 0", "v_mov_b32 v98, 0", "s_mov_b32 s77, 0x3f803f80")
    stamp(a, 3)
    a("s_waitcnt vmcnt(0) lgkmcnt(0)" if NOC else "s_waitcnt vmcnt(16) lgkmcnt(0)")
    stamp(a, 4)
    a("s_barrier")
    stamp(a, 5)
    def issue(grp):
        b = 32 + 32 * (grp & 1)
        for j in range(4):
            a(f"ds_read_b128 {vr(b+4*j,4)}, v{8+j} offset:{grp*8192}")
            a(f"ds_read_b64_tr_b16 {vr(b+16+4*j,2)}, v{12+j} offset:{grp*8192}")
            a(f"ds_read_b64_tr_b16 {vr(b+16+4*j+2,2)}, v{12+j} offset:{grp*8192+512}")
    issue(0)
    for grp in range(4):
        if grp < 3:
            issue(grp + 1)
            a("s_waitcnt lgkmcnt(12)")
        else:
            a("s_waitcnt lgkmcnt(0)")
        b = 32 + 32 * (grp & 1)
        for j in range(4):
            mfma32(a, 16, b + 16 + 4 * j, b + 4 * j, None if (grp == 0 and j == 0) else 16)
            if j % 2 == 0:
                for e in range(4):
                    a(f"v_dot2c_f32_bf16 v96, s77, v{b+4*j+e}", f"v_dot2c_f32_bf16 v97, v{b+4*j+e}, v{b+4*j+e}")
            if j < 2:
                for e in range(4):
                    a(f"v_dot2c_f32_bf16 v98, s77, v{b+16+4*j+e}")
    a("v_and_b32 v2, 31, v1", "s_lshl_b32 s76, s70, 7", f"s_add_u32 s76, s76, {K1_LDS_ST}",
      "v_lshl_add_u32 v4, v2, 2, s76")
    sigma_lane(a, 5, 1, 6)
    a("s_lshl_b32 s76, s72, 4", "v_xor_b32 v5, s76, v5",
      "s_lshl_b32 s76, s71, 7", f"s_add_u32 s76, s76, {K1_LDS_ST+512}",
      "v_lshl_add_u32 v5, v5, 2, s76")
    a("ds_add_f32 v4, v96", "ds_add_f32 v4, v97 offset:256", "ds_add_f32 v5, v98")
    a("s_lshl_b32 s76, s3, 11", f"s_add_u32 s76, s76, {K1_LDS_EX}", "v_lshl_add_u32 v6, v1, 4, s76",
      "s_xor_b32 s76, s76, 0x2000", "v_lshl_add_u32 v7, v1, 4, s76",
      "s_nop 4")
    a("ds_write_b128 v6, v[24:27]", "ds_write_b128 v6, v[28:31] offset:1024")
    a("s_lshl_b32 s76, s71, 5", "s_lshl_b32 s78, s72, 4", "s_add_u32 s76, s76, s78", "s_lshl_b32 s76, s76, 2",
      f"s_add_u32 s76, s76, {K1_LDS_ST+512}", "v_lshl_add_u32 v5, v3, 5, s76")
    stamp(a, 8)
    a("s_waitcnt lgkmcnt(0)", "s_barrier")
    stamp(a, 9)
    a("ds_read_b32 v40, v4", "ds_read_b32 v41, v4 offset:256",
      "ds_read_b128 v[32:35], v7", "ds_read_b128 v[36:39], v7 offset:1024",
      "ds_read_b128 v[44:47], v5", "ds_read_b128 v[48:51], v5 offset:16")
    a("s_waitcnt lgkmcnt(4)")
    a(f"v_mul_f32 v40, {f32(1/512)}, v40",
      f"v_mul_f32 v41, {f32(1/512)}, v41",
      "v_fma_f32 v41, -v40, v40, v41",
      "v_max_f32 v41, 0, v41",
      f"v_add_f32 v41, {f32(1e-5)}, v41",
      "v_rsq_f32 v41, v41",
      "s_nop 0",
      f"v_mul_f32 v41, {f32(QSCALE)}, v41")
    a("s_waitcnt lgkmcnt(0)")
    for i in range(8):
        a(f"v_add_f32 v{16+i}, v{16+i}, v{32+i}")
    for i in range(8):
        a(f"v_fma_f32 v{16+i}, -v40, v{44+i}, v{16+i}")
    for i in range(8):
        a(f"v_mul_f32 v{16+i}, v41, v{16+i}")
    for i in range(4):
        a(f"v_cvt_pk_bf16_f32 v{24+i}, v{16+2*i}, v{17+2*i}")
    a("s_lshl_b32 s76, s4, 1", "s_add_u32 s76, s76, s70", "s_lshl_b32 s76, s76, 5",
      "s_lshl_b32 s78, s5, 2", "s_add_u32 s76, s76, s78", "s_lshl_b32 s78, s71, 1", "s_add_u32 s76, s76, s78",
      "s_add_u32 s76, s76, s72", "s_lshl_b32 s76, s76, 10", "v_lshlrev_b32 v2, 4, v1")
    if QF:
        a(f"s_add_u32 s76, s76, {QF:#x}")
    a("buffer_store_dwordx4 v[24:27], v2, s[52:55], s76 offen")
    a("s_mov_b32 s78, 0x07060100", "s_waitcnt vmcnt(1)")
    for i in range(8):
        a(f"v_perm_b32 v{100+i}, v{113+2*i}, v{112+2*i}, s78")
    if not NOC: a("buffer_store_dwordx4 v[100:103], v2, s[52:55], s14 offen")
    if STAMP:
        a("s_waitcnt vmcnt(0)")
        stamp(a, 6); stamp(a, 7, True)
        stamp_flush(a, 0, 8)
        a("s_mov_b64 exec, -1")
    if NOC: a(f"s_branch {Lend}")
    a("s_cmp_ge_u32 s6, 1216", f"s_cbranch_scc1 {Lend}")
    a("buffer_store_dwordx4 v[104:107], v2, s[52:55], s66 offen")
    a(f"s_branch {Lend}")

    a("L_k1_kv:")
    a("s_and_b32 s70, s5, 1", "s_lshr_b32 s71, s5, 1")
    a("s_cmp_eq_u32 s70, 0", "s_cbranch_scc0 L_k1_kv_v")
    srd(a, 56, 20, 512*32)
    a("s_branch L_k1_kv_go")
    a("L_k1_kv_v:")
    srd(a, 56, 22, 512*32)
    a("L_k1_kv_go:")
    a("v_and_b32 v2, 15, v1", "v_lshrrev_b32 v3, 4, v1",
      "v_lshlrev_b32 v4, 4, v1")
    for i in range(16):
        a(f"s_mov_b32 m0, {K1_LDS_EX + (i>>2)*4096}", f"s_mov_b32 s60, {(i>>2)*4096}",
          f"buffer_load_dwordx4 v4, s[56:59], s60 offen offset:{(i&3)*1024} lds")
    a("s_lshl_b32 s72, s71, 4", "v_add_u32 v5, s72, v2",
      "v_bfe_u32 v6, v5, 1, 3",
      "v_xor_b32 v6, v6, v3",
      "v_lshlrev_b32 v7, 7, v5",
      "v_lshl_or_b32 v8, v6, 4, v7",
      "v_xor_b32 v9, 64, v8",
      "v_mov_b32 v10, 0", "s_mov_b32 s77, 0x3f803f80",
      "v_lshlrev_b32 v4, 3, v2", "v_lshl_or_b32 v4, v3, 8, v4", f"v_add_u32 v4, {K1_LDS_EX}, v4")
    a("s_waitcnt vmcnt(0)")
    for kt in range(16):
        for e in range(2):
            a(f"ds_read_b64_tr_b16 {vr(32+4*kt+2*e,2)}, v4 offset:{kt*1024+e*128}")
    a("s_waitcnt lgkmcnt(0)", "s_barrier")
    for kt in range(16):
        a(f"ds_read_b128 {vr(96+4*kt,4)}, v{8+(kt&1)} offset:{(kt>>1)*8192}")
    a("s_waitcnt lgkmcnt(0)")
    a("s_cmp_eq_u32 s70, 0", "s_cbranch_scc0 L_k1_kv_v2")
    for which in range(2):
        if which == 1:
            a("L_k1_kv_v2:")
        for kt in range(16):
            if which == 0:
                mfma16(a, 16, 32+4*kt, 96+4*kt, None if kt == 0 else 16)
            else:
                mfma16(a, 16, 96+4*kt, 32+4*kt, None if kt == 0 else 16)
            for e in range(4):
                a(f"v_dot2c_f32_bf16 v10, s77, v{32+4*kt+e}")
        a("v_lshlrev_b32 v11, 2, v2", f"v_add_u32 v11, {K1_LDS_ST+768}, v11", "s_nop 1", "ds_add_f32 v11, v10")
        a("s_waitcnt lgkmcnt(0)", "s_barrier")
        if which == 0:
            a(f"v_lshlrev_b32 v12, 2, v5", f"v_add_u32 v12, {K1_LDS_ST}, v12",
              "v_lshlrev_b32 v13, 4, v3", f"v_add_u32 v13, {K1_LDS_ST+768}, v13",
              "ds_read_b32 v40, v12", "ds_read_b32 v41, v12 offset:256", "ds_read_b128 v[44:47], v13",
              "s_waitcnt lgkmcnt(0)")
            a(f"v_mul_f32 v40, {f32(1/512)}, v40", f"v_mul_f32 v41, {f32(1/512)}, v41",
              "v_fma_f32 v41, -v40, v40, v41", "v_max_f32 v41, 0, v41", f"v_add_f32 v41, {f32(1e-5)}, v41",
              "v_rsq_f32 v41, v41")
            for i in range(4):
                a(f"v_fma_f32 v{16+i}, -v40, v{44+i}, v{16+i}")
            for i in range(4):
                a(f"v_mul_f32 v{16+i}, v41, v{16+i}")
            a("v_cvt_pk_bf16_f32 v20, v16, v17", "v_cvt_pk_bf16_f32 v21, v18, v19")
            a("s_lshl_b32 s73, s4, 1", "s_lshr_b32 s74, s71, 1", "s_add_u32 s73, s73, s74", "s_lshl_b32 s73, s73, 11",
              "s_and_b32 s74, s71, 1", "s_lshl_b32 s74, s74, 8", "s_add_u32 s73, s73, s74", f"s_add_u32 s73, s73, {KVF:#x}",
              "v_lshrrev_b32 v14, 1, v3", "v_lshlrev_b32 v14, 9, v14", "v_lshl_or_b32 v14, v2, 4, v14",
              "v_and_b32 v15, 1, v3", "v_lshl_or_b32 v14, v15, 3, v14")
            a("buffer_store_dwordx2 v[20:21], v14, s[52:55], s73 offen")
            a("v_mov_b32 v22, 0", "s_nop 0", "v_dot2c_f32_bf16 v22, v20, v20", "v_dot2c_f32_bf16 v22, v21, v21", "s_nop 2",
              "v_mov_b32 v23, v22", "s_nop 1", "v_permlane32_swap_b32 v22, v23", "s_nop 1", "v_add_f32 v22, v22, v23",
              "v_mov_b32 v23, v22", "s_nop 1", "v_permlane16_swap_b32 v22, v23", "s_nop 1", "v_add_f32 v22, v22, v23")
            for sh in (8, 4, 2, 1):
                a("s_nop 1", f"v_max_f32_dpp v22, v22, v22 row_ror:{sh} row_mask:0xf bank_mask:0xf")
            a("s_lshl_b32 s73, s4, 2", "s_add_u32 s73, s73, s71", "s_lshl_b32 s73, s73, 2", f"s_add_u32 s73, s73, {KMAX:#x}",
              "v_mov_b32 v23, 0", "s_mov_b64 exec, 1",
              "buffer_store_dword v22, v23, s[52:55], s73 offen")
            a(f"s_branch {Lend}")
        else:
            a("s_lshl_b32 s72, s71, 6", f"s_add_u32 s72, s72, {K1_LDS_ST}", "v_lshl_add_u32 v12, v3, 4, s72",
              "ds_read_b128 v[40:43], v12", "ds_read_b128 v[44:47], v12 offset:256", "ds_read_b32 v48, v11",
              "s_waitcnt lgkmcnt(0)")
            for i in range(4):
                a(f"v_mul_f32 v{40+i}, {f32(1/512)}, v{40+i}", f"v_mul_f32 v{44+i}, {f32(1/512)}, v{44+i}",
                  f"v_fma_f32 v{44+i}, -v{40+i}, v{40+i}, v{44+i}", f"v_max_f32 v{44+i}, 0, v{44+i}",
                  f"v_add_f32 v{44+i}, {f32(1e-5)}, v{44+i}", f"v_rsq_f32 v{44+i}, v{44+i}")
            for i in range(4):
                a(f"v_fma_f32 v{16+i}, -v{40+i}, v48, v{16+i}")
            for i in range(4):
                a(f"v_mul_f32 v{16+i}, v{44+i}, v{16+i}")
            a("v_cvt_pk_bf16_f32 v20, v16, v17", "v_cvt_pk_bf16_f32 v21, v18, v19")
            sigma_lane(a, 14, 2, 15)
            a("s_lshl_b32 s73, s4, 1", "s_lshr_b32 s74, s71, 1", "s_add_u32 s73, s73, s74", "s_lshl_b32 s73, s73, 11",
              "s_and_b32 s74, s71, 1", "s_xor_b32 s74, s74, 1", "s_lshl_b32 s74, s74, 8", "s_add_u32 s73, s73, s74",
              f"s_add_u32 s73, s73, {KVF+1024:#x}",
              "v_lshlrev_b32 v14, 4, v14", "v_and_b32 v15, 1, v3", "v_lshl_or_b32 v14, v15, 9, v14",
              "v_lshrrev_b32 v15, 1, v3", "v_lshl_or_b32 v14, v15, 3, v14")
            a("buffer_store_dwordx2 v[20:21], v14, s[52:55], s73 offen")
    a(f"{Lend}:", "s_endpgm")
    return a.text() + kernel_desc(name, 160), f"; @launch kernel={name} grid=(256,1,1) block=(576,1,1) lds={K1_LDS}"
```

```python
from lib import *
import math, os
from k1 import load_ptrs, sigma_lane, QSCALE

L_X = 0
L_W = 65536
L_EX = 131072
L_ST = 131072 + 16384
L_CS = L_ST + 2048
L_KV = L_CS + 1024
K1_LDS = L_KV + 256
PREF = os.environ.get("PREF", "1") == "1"

def wg_decode2(a):
    a("v_lshrrev_b32 v2, 6, v0", "v_and_b32 v1, 63, v0")
    a("s_and_b32 s4, s2, 7", "s_lshl_b32 s4, s4, 2", "s_lshr_b32 s5, s2, 6")
    a("v_readfirstlane_b32 s3, v2")
    a("s_add_u32 s4, s4, s5", "s_bfe_u32 s5, s2, 0x30003")

def halves_sum(a, r, t):
    a(f"v_mov_b32 v{t}, v{r}", "s_nop 1", f"v_permlane32_swap_b32 v{r}, v{t}", "s_nop 1", f"v_add_f32 v{r}, v{r}, v{t}")

def rstd(a, m, v, extra=None):
    a(f"v_mul_f32 v{m}, {f32(1/512)}, v{m}", f"v_mul_f32 v{v}, {f32(1/512)}, v{v}",
      f"v_fma_f32 v{v}, -v{m}, v{m}, v{v}", f"v_max_f32 v{v}, 0, v{v}", f"v_add_f32 v{v}, {f32(1e-5)}, v{v}",
      f"v_rsq_f32 v{v}, v{v}")

def gen_k1b(name):
    a = A()
    kernel_begin(a, name)
    Lend = "L_k1_end"
    a("s_cmp_ge_u32 s2, 256", f"s_cbranch_scc1 {Lend}")
    stamp(a, 0, True); stamp(a, 1)
    load_ptrs(a)
    wg_decode2(a)
    a.c("x DMA: row = 8w + (l>>3), piece = (l&7) ^ ((row>>1)&7)")
    a("v_lshrrev_b32 v2, 3, v1",
      "s_lshl_b32 s6, s3, 3",
      "v_add_u32 v3, s6, v2",
      "v_bfe_u32 v4, v3, 1, 3",
      "v_and_b32 v5, 7, v1",
      "v_xor_b32 v4, v4, v5",
      "v_lshlrev_b32 v4, 4, v4",
      "v_lshl_or_b32 v6, v3, 10, v4")
    a("v_bfe_u32 v4, v2, 1, 1",
      "v_lshlrev_b32 v4, 2, v4",
      "v_xor_b32 v4, v4, v5",
      "v_lshlrev_b32 v4, 4, v4",
      "v_lshl_or_b32 v7, v3, 10, v4")
    a("s_lshl_b32 s7, s4, 16", "s_lshl_b32 s8, s3, 10", "s_lshl_b32 s9, s5, 7", f"s_add_u32 s10, s8, {L_W}")
    a("v_lshlrev_b32 v100, 7, v1")
    a("s_waitcnt lgkmcnt(0)")
    stamp(a, 2)
    srd(a, 44, 16, 2048*1024)
    srd(a, 48, 18, 512*1024)
    srd(a, 52, 40, WS_BYTES)
    a("s_cmp_eq_u32 s3, 8", "s_cbranch_scc1 L_k1_kv")
    NPF = 0
    if PREF:
        a("s_cmp_gt_u32 s3, 2", "s_cbranch_scc1 L_k1_nopf", "s_cmp_eq_u32 s3, 0", "s_cbranch_scc0 L_k1_pfw")
        a("s_lshl_b32 s11, s5, 13", "s_add_u32 s11, s11, s7", "buffer_load_dword v101, v100, s[44:47], s11 offen", "s_branch L_k1_nopf")
        a("L_k1_pfw:")
        a("s_lshr_b32 s11, s2, 3", "s_lshl_b32 s11, s11, 1", "s_add_u32 s11, s11, s3", "s_sub_u32 s11, s11, 1", "s_lshl_b32 s11, s11, 13",
          "buffer_load_dword v101, v100, s[48:51], s11 offen")
        a("L_k1_nopf:")
    order = [0, 4, 1, 5, 2, 6, 3, 7]
    for i in order:
        a(f"s_add_u32 m0, s8, {i*8064}", f"s_add_u32 s11, s9, {i*0x10000}",
          f"buffer_load_dwordx4 v6, s[44:47], s7 offen offset:{i*128} lds")
        a(f"s_add_u32 m0, s10, {i*8192}", "s_nop 0",
          f"buffer_load_dwordx4 v7, s[48:51], s11 offen lds")
    a("s_and_b32 s70, s3, 1", "s_bfe_u32 s71, s3, 0x10001", "s_lshr_b32 s72, s3, 2",
      "s_lshl_b32 s73, s70, 1", "s_add_u32 s73, s73, s71")
    a("v_and_b32 v2, 31, v1", "v_lshrrev_b32 v3, 5, v1", "v_bfe_u32 v4, v2, 1, 3",
      "s_lshl_b32 s74, s70, 12", "s_lshl_b32 s75, s72, 15", "s_add_u32 s74, s74, s75",
      "v_lshl_add_u32 v5, v2, 7, s74")
    for j in range(4):
        a(f"s_xor_b32 s76, s73, {j}", "s_lshl_b32 s76, s76, 1", "v_add_u32 v6, s76, v3", "v_xor_b32 v6, v6, v4",
          f"v_lshl_add_u32 v{8+j}, v6, 4, v5")
    a("v_bfe_u32 v2, v1, 4, 1", "v_xor_b32 v2, s72, v2", "v_and_b32 v4, 1, v1", "v_lshl_or_b32 v2, v2, 1, v4",
      "s_lshl_b32 s76, s71, 2", "v_or_b32 v2, s76, v2", "v_bfe_u32 v4, v1, 3, 1", "v_lshlrev_b32 v4, 2, v4",
      "v_xor_b32 v2, v2, v4", "v_lshlrev_b32 v2, 4, v2", "v_bfe_u32 v4, v1, 1, 1", "v_lshl_or_b32 v2, v4, 3, v2",
      "v_bfe_u32 v4, v1, 2, 2", "v_lshl_or_b32 v2, v4, 7, v2", "v_lshl_or_b32 v2, v3, 10, v2",
      f"s_add_u32 s75, s75, {L_W}")
    for j in range(4):
        a(f"s_xor_b32 s76, s73, {j}", "s_lshl_b32 s76, s76, 11", "s_add_u32 s76, s76, s75", f"v_add_u32 v{12+j}, s76, v2")
    a("v_mov_b32 v96, 0", "v_mov_b32 v97, 0", "v_mov_b32 v98, 0", "s_mov_b32 s77, 0x3f803f80")
    a("v_and_b32 v2, 31, v1", "s_lshl_b32 s76, s70, 8", f"s_add_u32 s76, s76, {L_ST}", "v_lshl_add_u32 v104, v2, 3, s76",
      "s_lshr_b32 s76, s3, 1", "s_lshl_b32 s76, s76, 9", "v_add_u32 v105, s76, v104")
    sigma_lane(a, 5, 1, 6)
    a("s_lshl_b32 s76, s72, 4", "v_xor_b32 v5, s76, v5",
      "s_lshl_b32 s76, s72, 1", "s_add_u32 s76, s76, s70", "s_lshl_b32 s76, s76, 8", "s_lshl_b32 s78, s71, 7", "s_add_u32 s76, s76, s78",
      f"s_add_u32 s76, s76, {L_CS}", "v_lshl_add_u32 v106, v5, 2, s76")
    a("s_lshl_b32 s76, s71, 5", "s_lshl_b32 s78, s72, 4", "s_add_u32 s76, s76, s78", "s_lshl_b32 s76, s76, 2",
      f"s_add_u32 s76, s76, {L_CS}", "v_lshl_add_u32 v107, v3, 5, s76")
    a("s_lshl_b32 s76, s3, 11", f"s_add_u32 s76, s76, {L_EX}", "v_lshl_add_u32 v108, v1, 4, s76",
      "s_xor_b32 s76, s76, 0x2000", "v_lshl_add_u32 v109, v1, 4, s76")
    a("s_lshl_b32 s79, s4, 1", "s_add_u32 s79, s79, s70", "s_lshl_b32 s79, s79, 5",
      "s_lshl_b32 s78, s5, 2", "s_add_u32 s79, s79, s78", "s_lshl_b32 s78, s71, 1", "s_add_u32 s79, s79, s78",
      "s_add_u32 s79, s79, s72", "s_lshl_b32 s79, s79, 10", "v_lshlrev_b32 v110, 4, v1")
    stamp(a, 3)
    def issue(grp):
        b = 32 + 32 * (grp & 1)
        for j in range(4):
            a(f"ds_read_b128 {vr(b+4*j,4)}, v{8+j} offset:{grp*8192}")
            a(f"ds_read_b64_tr_b16 {vr(b+16+4*j,2)}, v{12+j} offset:{grp*8192}")
            a(f"ds_read_b64_tr_b16 {vr(b+16+4*j+2,2)}, v{12+j} offset:{grp*8192+512}")
    def compute(grp):
        b = 32 + 32 * (grp & 1)
        for j in range(4):
            mfma32(a, 16, b + 16 + 4 * j, b + 4 * j, None if (grp == 0 and j == 0) else 16)
            if j % 2 == 0:
                for e in range(4):
                    a(f"v_dot2c_f32_bf16 v96, s77, v{b+4*j+e}", f"v_dot2c_f32_bf16 v97, v{b+4*j+e}, v{b+4*j+e}")
            if j < 2:
                for e in range(4):
                    a(f"v_dot2c_f32_bf16 v98, s77, v{b+16+4*j+e}")
    a("s_waitcnt vmcnt(8)")
    stamp(a, 4)
    a("s_barrier")
    stamp(a, 5)
    issue(0); issue(1)
    a("s_waitcnt lgkmcnt(12)"); compute(0)
    a("s_waitcnt vmcnt(0) lgkmcnt(0)", "s_barrier")
    stamp(a, 10)
    issue(2)
    compute(1)
    issue(3)
    a("s_waitcnt lgkmcnt(12)"); compute(2)
    a("s_waitcnt lgkmcnt(0)"); compute(3)
    a("s_nop 2", "v_mov_b32 v40, v96", "v_mov_b32 v41, v97", "v_mov_b32 v42, v98", "s_nop 1",
      "v_permlane32_swap_b32 v96, v40", "v_permlane32_swap_b32 v97, v41", "v_permlane32_swap_b32 v98, v42", "s_nop 1",
      "v_add_f32 v96, v96, v40", "v_add_f32 v97, v97, v41", "v_add_f32 v98, v98, v42", "s_nop 1")
    a("ds_write_b64 v105, v[96:97]", "ds_write_b32 v106, v98")
    a("ds_write_b128 v108, v[24:27]", "ds_write_b128 v108, v[28:31] offset:1024")
    stamp(a, 8)
    a("s_waitcnt lgkmcnt(0)", "s_barrier")
    stamp(a, 9)
    for s in range(4):
        a(f"ds_read_b64 {vr(40+2*s,2)}, v104 offset:{512*s}")
    a("ds_read_b128 v[32:35], v109", "ds_read_b128 v[36:39], v109 offset:1024")
    for s in range(4):
        a(f"ds_read_b128 {vr(48+8*s,4)}, v107 offset:{256*s}", f"ds_read_b128 {vr(52+8*s,4)}, v107 offset:{256*s+16}")
    a("s_waitcnt lgkmcnt(10)")
    a("v_add_f32 v40, v40, v42", "v_add_f32 v41, v41, v43", "v_add_f32 v44, v44, v46", "v_add_f32 v45, v45, v47",
      "v_add_f32 v40, v40, v44", "v_add_f32 v41, v41, v45")
    rstd(a, 40, 41)
    a("s_waitcnt lgkmcnt(8)")
    for i in range(8):
        a(f"v_add_f32 v{16+i}, v{16+i}, v{32+i}")
    a(f"v_mul_f32 v41, {f32(QSCALE)}, v41")
    a("s_waitcnt lgkmcnt(4)")
    for i in range(8):
        a(f"v_add_f32 v{48+i}, v{48+i}, v{56+i}")
    a("s_waitcnt lgkmcnt(0)")
    for i in range(8):
        a(f"v_add_f32 v{64+i}, v{64+i}, v{72+i}")
    for i in range(8):
        a(f"v_add_f32 v{48+i}, v{48+i}, v{64+i}")
    for i in range(8):
        a(f"v_fma_f32 v{16+i}, -v40, v{48+i}, v{16+i}")
    for i in range(8):
        a(f"v_mul_f32 v{16+i}, v41, v{16+i}")
    for i in range(4):
        a(f"v_cvt_pk_bf16_f32 v{24+i}, v{16+2*i}, v{17+2*i}")
    assert QF == 0
    a("buffer_store_dwordx4 v[24:27], v110, s[52:55], s79 offen")
    a("s_cmp_eq_u32 s3, 3", "s_cbranch_scc0 L_k1_nofl", "s_cmp_eq_u32 s5, 0", "s_cbranch_scc0 L_k1_nofl")
    a("s_lshl_b32 s11, s4, 8", f"s_add_u32 s11, s11, {FLAGS:#x}", "v_lshlrev_b32 v102, 2, v1", "v_mov_b32 v103, 0",
      "buffer_store_dword v103, v102, s[52:55], s11 offen")
    a("L_k1_nofl:")
    if STAMP:
        a("s_waitcnt vmcnt(0)")
        stamp(a, 62); stamp(a, 63, True)
        stamp_flush(a, 0, 8)
    a("s_endpgm")

    a("L_k1_kv:")
    a("s_and_b32 s70, s5, 1", "s_lshr_b32 s71, s5, 1")
    a("s_cmp_eq_u32 s70, 0", "s_cbranch_scc0 L_k1_kv_v")
    srd(a, 56, 20, 512*32)
    a("s_branch L_k1_kv_go")
    a("L_k1_kv_v:")
    srd(a, 56, 22, 512*32)
    a("L_k1_kv_go:")
    a("v_and_b32 v2, 15, v1", "v_lshrrev_b32 v3, 4, v1", "v_lshlrev_b32 v4, 4, v1")
    for i in range(16):
        a(f"s_mov_b32 m0, {L_EX + (i>>2)*4096}", f"s_mov_b32 s60, {(i>>2)*4096}",
          f"buffer_load_dwordx4 v4, s[56:59], s60 offen offset:{(i&3)*1024} lds")
    a("s_lshl_b32 s72, s71, 4", "v_add_u32 v5, s72, v2",
      "v_bfe_u32 v6, v5, 1, 3", "v_xor_b32 v6, v6, v3", "v_lshlrev_b32 v7, 7, v5", "v_lshl_or_b32 v8, v6, 4, v7",
      "v_xor_b32 v9, 64, v8", "v_mov_b32 v10, 0", "s_mov_b32 s77, 0x3f803f80",
      "v_lshlrev_b32 v4, 3, v2", "v_lshl_or_b32 v4, v3, 8, v4", f"v_add_u32 v4, {L_EX}, v4")
    a("s_barrier")
    a("s_waitcnt vmcnt(0)")
    for kt in range(16):
        for e in range(2):
            a(f"ds_read_b64_tr_b16 {vr(32+4*kt+2*e,2)}, v4 offset:{kt*1024+e*128}")
    a("s_waitcnt lgkmcnt(0)", "s_barrier")
    for kt in range(16):
        a(f"ds_read_b128 {vr(96+4*kt,4)}, v{8+(kt&1)} offset:{(kt>>1)*8192}")
    for kt in range(16):
        for e in range(4):
            a(f"v_dot2c_f32_bf16 v10, s77, v{32+4*kt+e}")
    a("s_waitcnt lgkmcnt(0)")
    a("s_cmp_eq_u32 s70, 0", "s_cbranch_scc0 L_k1_kv_v2")
    for which in range(2):
        if which == 1:
            a("L_k1_kv_v2:")
        for kt in range(16):
            if which == 0:
                mfma16(a, 16 + 4 * (kt & 1), 32+4*kt, 96+4*kt, None if kt < 2 else 16 + 4 * (kt & 1))
            else:
                mfma16(a, 16 + 4 * (kt & 1), 96+4*kt, 32+4*kt, None if kt < 2 else 16 + 4 * (kt & 1))
        halves_sum(a, 10, 11)
        a("v_mov_b32 v11, v10", "s_nop 1", "v_permlane16_swap_b32 v10, v11", "s_nop 1", "v_add_f32 v10, v10, v11")
        for i in range(4):
            a(f"v_add_f32 v{16+i}, v{16+i}, v{20+i}")
        if which == 0:
            a("v_lshlrev_b32 v11, 2, v2", f"v_add_u32 v11, {L_KV}, v11", "ds_write_b32 v11, v10",
              "v_lshlrev_b32 v12, 3, v5", f"v_add_u32 v12, {L_ST}, v12",
              "v_lshlrev_b32 v13, 4, v3", f"v_add_u32 v13, {L_KV}, v13")
            a("s_lshl_b32 s73, s4, 1", "s_lshr_b32 s74, s71, 1", "s_add_u32 s73, s73, s74", "s_lshl_b32 s73, s73, 11",
              "s_and_b32 s74, s71, 1", "s_lshl_b32 s74, s74, 8", "s_add_u32 s73, s73, s74", f"s_add_u32 s73, s73, {KVF:#x}",
              "v_lshrrev_b32 v14, 1, v3", "v_lshlrev_b32 v14, 9, v14", "v_lshl_or_b32 v14, v2, 4, v14",
              "v_and_b32 v15, 1, v3", "v_lshl_or_b32 v14, v15, 3, v14")
            a("s_waitcnt lgkmcnt(0)", "s_barrier")
            for s in range(4):
                a(f"ds_read_b64 {vr(40+2*s,2)}, v12 offset:{512*s}")
            a("ds_read_b128 v[48:51], v13", "s_waitcnt lgkmcnt(0)")
            a("v_add_f32 v40, v40, v42", "v_add_f32 v41, v41, v43", "v_add_f32 v44, v44, v46", "v_add_f32 v45, v45, v47",
              "v_add_f32 v40, v40, v44", "v_add_f32 v41, v41, v45")
            rstd(a, 40, 41)
            for i in range(4):
                a(f"v_fma_f32 v{16+i}, -v40, v{48+i}, v{16+i}")
            for i in range(4):
                a(f"v_mul_f32 v{16+i}, v41, v{16+i}")
            a("v_cvt_pk_bf16_f32 v20, v16, v17", "v_cvt_pk_bf16_f32 v21, v18, v19")
            a("buffer_store_dwordx2 v[20:21], v14, s[52:55], s73 offen")
            a("v_mov_b32 v22, 0", "s_nop 0", "v_dot2c_f32_bf16 v22, v20, v20", "v_dot2c_f32_bf16 v22, v21, v21", "s_nop 2")
            halves_sum(a, 22, 23)
            a("v_mov_b32 v23, v22", "s_nop 1", "v_permlane16_swap_b32 v22, v23", "s_nop 1", "v_add_f32 v22, v22, v23")
            for sh in (8, 4, 2, 1):
                a("s_nop 1", f"v_max_f32_dpp v22, v22, v22 row_ror:{sh} row_mask:0xf bank_mask:0xf")
            a("s_lshl_b32 s73, s4, 2", "s_add_u32 s73, s73, s71", "s_lshl_b32 s73, s73, 2", f"s_add_u32 s73, s73, {KMAX:#x}",
              "v_mov_b32 v23, 0", "s_mov_b64 exec, 1",
              "buffer_store_dword v22, v23, s[52:55], s73 offen")
            a("s_endpgm")
        else:
            a("s_lshl_b32 s72, s71, 7", f"s_add_u32 s72, s72, {L_ST}", "v_lshl_add_u32 v12, v3, 5, s72")
            sigma_lane(a, 14, 2, 15)
            a("s_lshl_b32 s73, s4, 1", "s_lshr_b32 s74, s71, 1", "s_add_u32 s73, s73, s74", "s_lshl_b32 s73, s73, 11",
              "s_and_b32 s74, s71, 1", "s_xor_b32 s74, s74, 1", "s_lshl_b32 s74, s74, 8", "s_add_u32 s73, s73, s74",
              f"s_add_u32 s73, s73, {KVF+1024:#x}",
              "v_lshlrev_b32 v14, 4, v14", "v_and_b32 v15, 1, v3", "v_lshl_or_b32 v14, v15, 9, v14",
              "v_lshrrev_b32 v15, 1, v3", "v_lshl_or_b32 v14, v15, 3, v14")
            a("s_barrier")
            for s in range(4):
                a(f"ds_read_b128 {vr(40+8*s,4)}, v12 offset:{512*s}", f"ds_read_b128 {vr(44+8*s,4)}, v12 offset:{512*s+16}")
            a("s_waitcnt lgkmcnt(0)")
            for i in range(8):
                a(f"v_add_f32 v{40+i}, v{40+i}, v{48+i}", f"v_add_f32 v{56+i}, v{56+i}, v{64+i}")
            for i in range(8):
                a(f"v_add_f32 v{40+i}, v{40+i}, v{56+i}")
            for i in range(4):
                rstd(a, 40 + 2 * i, 41 + 2 * i)
            for i in range(4):
                a(f"v_fma_f32 v{16+i}, -v{40+2*i}, v10, v{16+i}")
            for i in range(4):
                a(f"v_mul_f32 v{16+i}, v{41+2*i}, v{16+i}")
            a("v_cvt_pk_bf16_f32 v20, v16, v17", "v_cvt_pk_bf16_f32 v21, v18, v19")
            a("buffer_store_dwordx2 v[20:21], v14, s[52:55], s73 offen")
    a(f"{Lend}:", "s_endpgm")
    return a.text() + kernel_desc(name, 160), f"; @launch kernel={name} grid=(256,1,1) block=(576,1,1) lds={K1_LDS}"
```

```python
from lib import *

K2_LDS = 132 * 1024
SM_THR = 40.0

def wg_decode(a):
    a("v_lshrrev_b32 v2, 6, v0", "v_and_b32 v1, 63, v0")
    a("s_and_b32 s4, s2, 7", "s_lshl_b32 s4, s4, 2", "s_lshr_b32 s5, s2, 3", "s_and_b32 s5, s5, 3")
    a("v_readfirstlane_b32 s3, v2")
    a("s_add_u32 s4, s4, s5", "s_lshr_b32 s5, s2, 5")

VQ, VK, VV, VP, VC, VO, VS = 4, 8, 12, 28, 36, 52, 68

def attn_body(a, u, first_off):
    cur = u & 1
    nxt = cur ^ 1
    S = VS + 16 * cur
    Sn = VS + 16 * nxt
    def e(i): a(f"v_exp_f32 v{S+i}, v{S+i}")
    def p(i): a(f"v_cvt_pk_bf16_f32 v{VP+i//2}, v{S+i}, v{S+i+1}")
    a("s_waitcnt lgkmcnt(0)")
    mfma32(a, Sn, VK, VQ, VC)
    a(f"ds_read_b128 {vr(VK,4)}, v2 offset:{(u+2)*2048}")
    e(0); e(1); e(2); e(3); p(0)
    mfma32(a, VO, VV + 8 * nxt + 4, VP + 4, VO)
    a("s_mov_b64 exec, s[60:61]")
    a(f"ds_read_b128 {vr(VV+8*nxt,4)}, v2 offset:{(u+1)*2048+1024}")
    a(f"ds_read_b128 {vr(VV+8*nxt+4,4)}, v2 offset:{(u+1)*2048+768}")
    a("s_mov_b64 exec, -1")
    e(4); e(5); p(2); e(6); e(7); p(4); e(8); e(9); p(6); e(10); e(11)
    mfma32(a, VO, VV + 8 * cur, VP, VO)
    p(8); e(12); e(13); p(10); e(14); e(15); p(12); p(14)

def gen_k2(name):
    a = A()
    kernel_begin(a, name)
    Lend = "L_k2_end"
    a("s_cmp_ge_u32 s2, 256", f"s_cbranch_scc1 {Lend}")
    stamp(a, 0, True); stamp(a, 1)
    a("s_load_dwordx2 s[40:41], s[0:1], 96")
    wg_decode(a)
    a("v_lshlrev_b32 v2, 4, v1", "v_lshlrev_b32 v3, 3, v1")
    a("s_and_b32 s6, s3, 1", "s_lshl_b32 s7, s4, 1", "s_add_u32 s7, s7, s6", "s_lshl_b32 s7, s7, 5",
      "s_lshl_b32 s8, s5, 2", "s_add_u32 s7, s7, s8", "s_lshr_b32 s8, s3, 1", "s_add_u32 s7, s7, s8",
      "s_lshl_b32 s7, s7, 10")
    a(f"s_mov_b32 s9, {KMAX:#x}", "s_lshl_b32 s10, s3, 10", f"s_add_u32 s11, s10, {KVF:#x}")
    a("s_waitcnt lgkmcnt(0)")
    srd(a, 52, 40, WS_BYTES)
    if QF:
        a(f"s_add_u32 s12, s7, {QF:#x}")
    else:
        a("s_mov_b32 s12, s7")
    a(f"buffer_load_dwordx4 {vr(VQ,4)}, v2, s[52:55], s12 offen")
    a("buffer_load_dwordx2 v[28:29], v3, s[52:55], s9 offen")
    for n in range(16):
        a(f"s_add_u32 m0, s10, {n*8192}", f"s_add_u32 s13, s11, {n*8192}",
          "buffer_load_dwordx4 v2, s[52:55], s13 offen lds")
    a("s_mov_b32 s60, 0xffff0000", "s_mov_b32 s61, 0xffff0000", "s_mov_b32 s62, 0x3f803f80")
    for i in range(16):
        a(f"v_mov_b32 v{VV+i}, s62")
    for i in range(16):
        a(f"v_mov_b32 v{VO+i}, 0")
    for i in range(4):
        a(f"v_mov_b32 v{VP+4+i}, 0")
    a("v_mov_b32 v30, 0")
    stamp(a, 2)
    a("s_waitcnt vmcnt(16)")
    stamp(a, 3)
    for i in range(4):
        a(f"v_dot2c_f32_bf16 v30, v{VQ+i}, v{VQ+i}")
    a("v_max_f32 v28, v28, v29")
    for sh in (8, 4, 2, 1):
        a("s_nop 1", f"v_max_f32_dpp v28, v28, v28 row_ror:{sh} row_mask:0xf bank_mask:0xf")
    a("v_mov_b32 v29, v28", "v_mov_b32 v31, v30", "s_nop 1",
      "v_permlane32_swap_b32 v28, v29", "v_permlane32_swap_b32 v30, v31", "s_nop 1",
      "v_max_f32 v28, v28, v29", "v_add_f32 v30, v30, v31",
      "v_mov_b32 v29, v28", "s_nop 1", "v_permlane16_swap_b32 v28, v29", "s_nop 1",
      "v_max_f32 v28, v28, v29", "v_mul_f32 v30, v30, v28", "v_sqrt_f32 v30, v30", "s_nop 0")
    a(f"v_cmp_nge_f32 vcc, {f32(SM_THR)}, v30", "s_cmp_eq_u64 vcc, 0", "s_cbranch_scc1 L_k2_fast")
    a(f"s_mov_b32 s14, {KVF:#x}", f"v_mov_b32 v30, {f32(-3.0e38)}")
    a("L_k2_mx:")
    a(f"buffer_load_dwordx4 {vr(VK,4)}, v2, s[52:55], s14 offen", "s_waitcnt vmcnt(0)")
    mfma32(a, VS, VK, VQ, None)
    a("s_nop 7", "s_nop 4")
    for i in range(8):
        a(f"v_max3_f32 v30, v{VS+2*i}, v{VS+2*i+1}, v30")
    a("s_add_u32 s14, s14, 2048", f"s_cmp_lt_u32 s14, {KVF+64*2048:#x}", "s_cbranch_scc1 L_k2_mx")
    a("v_mov_b32 v31, v30", "s_nop 1", "v_permlane32_swap_b32 v30, v31", "s_nop 1", "v_max_f32 v30, v30, v31")
    a("L_k2_fast:")
    for i in range(16):
        a(f"v_sub_f32 v{VC+i}, 0, v30")
    a("s_waitcnt vmcnt(13)", "s_barrier")
    stamp(a, 4)
    a(f"ds_read_b128 {vr(VK,4)}, v2")
    a("s_mov_b64 exec, s[60:61]",
      f"ds_read_b128 {vr(VV,4)}, v2 offset:1024", f"ds_read_b128 {vr(VV+4,4)}, v2 offset:768",
      "s_mov_b64 exec, -1")
    a("s_waitcnt lgkmcnt(2)")
    mfma32(a, VS, VK, VQ, VC)
    a(f"ds_read_b128 {vr(VK,4)}, v2 offset:2048")
    a("s_mov_b32 s14, 0", "s_nop 7", "s_nop 1")
    a(".p2align 6")
    a("L_k2_loop:")
    a("s_cmp_eq_u32 s14, 2", "s_cbranch_scc0 L_k2_nosync", "s_waitcnt vmcnt(0)", "s_barrier", "L_k2_nosync:")
    for u in range(4):
        attn_body(a, u, 0)
    a("v_add_u32 v2, 0x2000, v2", "s_add_u32 s14, s14, 1", "s_cmp_lt_u32 s14, 16", "s_cbranch_scc1 L_k2_loop")
    mfma32(a, VO, VV + 8 + 4, VP + 4, VO)
    stamp(a, 5)
    a("v_lshlrev_b32 v2, 4, v1", f"s_add_u32 s12, s7, {OF:#x}", "s_nop 7", "s_nop 3")
    a(f"v_rcp_f32 v3, v{VO}", "s_nop 0")
    for i in range(8):
        a(f"v_mul_f32 v{VO+8+i}, v3, v{VO+8+i}")
    for i in range(4):
        a(f"v_cvt_pk_bf16_f32 v{VP+i}, v{VO+8+2*i}, v{VO+9+2*i}")
    a(f"buffer_store_dwordx4 {vr(VP,4)}, v2, s[52:55], s12 offen")
    if STAMP: a("s_waitcnt vmcnt(0)")
    stamp(a, 6); stamp(a, 7, True)
    stamp_flush(a, 1, 8)
    a(f"{Lend}:", "s_endpgm")
    return a.text() + kernel_desc(name, 100), f"; @launch kernel={name} grid=(256,1,1) block=(512,1,1) lds={K2_LDS}"
```

```python
from lib import *
from k1 import load_ptrs
from k1b import wg_decode2, rstd
from k2 import SM_THR
from k4 import GK1, GK2
import os

LDS = 163840
L_STG = 131072
HST = 0x238000
STF = 0x440000

VQ, VK, VV, VP, VC, VO, VS = 4, 12, 20, 36, 44, 60, 92
VW = 128
V_LDSKV = 2
V_L16 = 3
V_TR = 124
V_WG = 125
V_W2G = 126
V_X = 127
SPIN = 1 << 20

class VM:
    def __init__(self, a): self.a = a; self.ops = []
    def issue(self, tag, *lines):
        self.a(*lines); self.ops.append(tag)
    def wait(self, tag, extra=""):
        idx = max(i for i, t in enumerate(self.ops) if t == tag)
        n = len(self.ops) - 1 - idx
        assert n < 64
        self.a(f"s_waitcnt vmcnt({n}){extra}")
    def reset(self): self.ops = []

class LG(VM):
    def wait(self, tag, extra=""):
        idx = max(i for i, t in enumerate(self.ops) if t == tag)
        n = min(15, len(self.ops) - 1 - idx)
        self.a(f"s_waitcnt lgkmcnt({n})")

def half_body(a, ab, par, pre, mid, slow):
    S = VS + 16 * ab; So = VS + 16 * (ab ^ 1); O = VO + 16 * ab; Oo = VO + 16 * (ab ^ 1)
    def e(i): a(f"v_exp_f32 v{S+i}, v{S+i}")
    def p(i): a(f"v_cvt_pk_bf16_f32 v{VP+i//2}, v{S+i}, v{S+i+1}")
    kpar = par if ab == 0 else par ^ 1
    mfma32(a, So, VK + 4 * kpar, VQ + 4 * (ab ^ 1), None if slow else VC)
    pre()
    if slow:
        for i in range(16):
            a(f"v_sub_f32 v{S+i}, v{S+i}, v{VC+ab}")
    e(0); e(1); e(2); e(3); p(0)
    vpar = par ^ 1 if ab == 0 else par
    mfma32(a, Oo, VV + 8 * vpar + 4, VP + 4, Oo)
    mid()
    e(4); e(5); p(2); e(6); e(7); p(4); e(8); e(9); p(6); e(10); e(11)
    mfma32(a, O, VV + 8 * par, VP, O)
    p(8); e(12); e(13); p(10); e(14); e(15); p(12); p(14)

def kv_dma(vm, c, hf):
    off = c * 8192 + hf * 65536
    vm.issue(f"kv{c}", f"s_add_u32 m0, s10, {off}", f"s_add_u32 s13, s11, {off}",
             f"buffer_load_dwordx4 v{V_L16}, s[52:55], s13 offen lds")

def tr_read(a, dst, areg, off):
    a(f"ds_read_b64_tr_b16 {vr(dst,2)}, v{areg} offset:{off}", f"ds_read_b64_tr_b16 {vr(dst+2,2)}, v{areg} offset:{off+256}")

W1_T0 = 8
WO_T0 = 22

def attention(a, vm0, slow):
    vm = VM(a); vm.ops = list(vm0.ops)
    vm.wait("kv0"); a("s_barrier")
    stamp(a, 4)
    a(f"ds_read_b128 {vr(VK,4)}, v{V_LDSKV}")
    a("s_mov_b64 exec, s[60:61]",
      f"ds_read_b128 {vr(VV,4)}, v{V_LDSKV} offset:1024", f"ds_read_b128 {vr(VV+4,4)}, v{V_LDSKV} offset:768",
      "s_mov_b64 exec, -1")
    a("s_waitcnt lgkmcnt(0)")
    mfma32(a, VS, VK, VQ, None if slow else VC)
    a("s_nop 7", "s_nop 2")
    for t in range(32):
        par = t & 1
        if t == 3: vm.wait("kv1"); a("s_barrier")
        if t == 7: vm.wait("kv3"); a("s_barrier")
        if t == 15: vm.wait("kv7"); a("s_barrier")
        if t in (4, 8, 12, 16, 20, 24, 28): stamp(a, 4 + t // 4)
        base = (t + 1) * 2048
        def preA():
            if t < 31:
                a(f"ds_read_b128 {vr(VK+4*(par^1),4)}, v{V_LDSKV} offset:{base}")
            f0 = 2 * (t - W1_T0 - 2)
            if 0 <= f0 < 32:
                vm.wait(f"w1_{f0+1}")
                for f in (f0, f0 + 1):
                    tr_read(a, VW + 4 * f, V_TR, (f & 3) * 1024)
        def midA():
            if t < 31:
                a("s_mov_b64 exec, s[60:61]",
                  f"ds_read_b128 {vr(VV+8*(par^1),4)}, v{V_LDSKV} offset:{base+1024}",
                  f"ds_read_b128 {vr(VV+8*(par^1)+4,4)}, v{V_LDSKV} offset:{base+768}",
                  "s_mov_b64 exec, -1")
        def preB():
            if t < 12:
                kv_dma(vm, 2 + t // 2, t & 1)
            f0 = 2 * (t - W1_T0)
            if 0 <= f0 < 32:
                vm.issue(f"w1_{f0}", f"s_add_u32 m0, s66, {(f0&3)*1024}", f"s_add_u32 s13, s67, {f0*16*2752}",
                         f"buffer_load_dwordx4 v{V_WG}, s[44:47], s13 offen lds")
            if t == 1:
                vm.issue("pf", f"buffer_load_dword v{V_X}, v{V_TR}, s[44:47], s62 offen")
            if t == 2:
                vm.issue("pf", f"buffer_load_dword v{V_X}, v{V_TR}, s[56:59], s62 offen")
            if t == 30:
                vm.issue("xcc", "s_mov_b64 exec, 0xff", f"buffer_load_dword v{V_X}, v{V_X}, s[52:55], s68 offen sc1", "s_mov_b64 exec, -1")
        def midB():
            f1 = 2 * (t - W1_T0) + 1
            if 0 <= f1 < 32:
                vm.issue(f"w1_{f1}", f"s_add_u32 m0, s66, {(f1&3)*1024}", f"s_add_u32 s13, s67, {f1*16*2752}",
                         f"buffer_load_dwordx4 v{V_WG}, s[44:47], s13 offen lds")
            i = t - WO_T0
            if 0 <= i < 8:
                q = i >> 1
                ldsoff = (q >> 1) * 65536 + (i & 1) * 16384 + (q & 1) * 8192
                vm.issue("wo", f"s_add_u32 m0, s10, {ldsoff}", f"s_add_u32 s13, s69, {q*8*16384 + (i&1)*64}",
                         f"buffer_load_dwordx4 v{V_W2G}, s[48:51], s13 offen lds")
            if t == 1:
                vm.issue("pf", f"buffer_load_dword v{V_X}, v{V_W2G}, s[48:51], s63 offen")
            if t == 7:
                real_addr(a)
        half_body(a, 0, par, preA, midA, slow)
        a("s_waitcnt lgkmcnt(0)")
        half_body(a, 1, par, preB, midB, slow)
    a("s_nop 1")

def real_addr(a):
    a(f"v_lshrrev_b32 v{V_X}, 5, v1", f"v_lshlrev_b32 v{V_TR}, 9, v{V_X}",
      f"v_bfe_u32 v{V_X}, v1, 2, 2", f"v_lshl_or_b32 v{V_TR}, v{V_X}, 6, v{V_TR}",
      f"v_bfe_u32 v{V_X}, v1, 4, 1", f"v_lshl_or_b32 v{V_TR}, v{V_X}, 5, v{V_TR}",
      f"v_and_b32 v{V_X}, 1, v1", f"v_lshl_or_b32 v{V_TR}, v{V_X}, 4, v{V_TR}",
      f"v_bfe_u32 v{V_X}, v1, 1, 1", f"v_lshl_or_b32 v{V_TR}, v{V_X}, 3, v{V_TR}",
      f"v_add_u32 v{V_TR}, s66, v{V_TR}",
      f"v_lshrrev_b32 v{V_X}, 2, v1", f"v_lshlrev_b32 v{V_W2G}, 10, v{V_X}",
      f"v_and_b32 v{V_X}, 3, v1", f"v_lshl_or_b32 v{V_W2G}, v{V_X}, 4, v{V_W2G}",
      f"v_lshlrev_b32 v{V_X}, 2, v1")

def publish(a, tag, word):
    a("s_waitcnt vmcnt(0) lgkmcnt(0)", "s_barrier")
    a("s_cmp_eq_u32 s3, 0", f"s_cbranch_scc0 L_{tag}_np")
    a("s_lshl_b32 s13, s5, 2", "s_add_u32 s13, s13, s68", "v_mov_b32 v4, 1", "v_mov_b32 v5, 0", "s_mov_b64 exec, 1")
    a("s_cmp_eq_u32 s42, 0", f"s_cbranch_scc1 L_{tag}_fast")
    a("buffer_wbl2 sc1", "s_waitcnt vmcnt(0)", f"buffer_store_dword v4, v5, s[52:55], s13 offen offset:{word*32} sc1", f"s_branch L_{tag}_set")
    a(f"L_{tag}_fast:", f"buffer_store_dword v4, v5, s[52:55], s13 offen offset:{word*32}")
    a(f"L_{tag}_set:", "s_mov_b64 exec, -1")
    a(f"L_{tag}_np:")

def poll(a, tag, word):
    a("v_lshlrev_b32 v5, 2, v1", "s_mov_b64 exec, 0xff", "s_mov_b32 s13, 0")
    a(f"L_{tag}_poll:", f"buffer_load_dword v4, v5, s[52:55], s68 offen offset:{word*32} sc1",
      "s_add_u32 s13, s13, 1", f"s_cmp_gt_u32 s13, {SPIN}", f"s_cbranch_scc1 L_{tag}_out",
      "s_waitcnt vmcnt(0)", "v_cmp_eq_u32 vcc, 0, v4", f"s_cbranch_vccnz L_{tag}_poll")
    a(f"L_{tag}_out:", "s_mov_b64 exec, -1")
    a("s_cmp_eq_u32 s42, 0", f"s_cbranch_scc1 L_{tag}_go", "buffer_inv sc1", "s_waitcnt vmcnt(0)", f"L_{tag}_go:")

def gelu_ops(X, T, n, cs, bias, m, r):
    L = []
    L += [f"v_fma_f32 v{X+i}, -v{m}, v{cs+i}, v{X+i}" for i in range(n)]
    L += [f"v_fma_f32 v{X+i}, v{X+i}, v{r}, v{bias+i}" for i in range(n)]
    L += [f"v_mul_f32 v{T+i}, v{X+i}, v{X+i}" for i in range(n)]
    L += [f"v_fma_f32 v{T+i}, v{T+i}, s64, v6" for i in range(n)]
    L += [f"v_mul_f32 v{T+i}, v{T+i}, v{X+i}" for i in range(n)]
    L += [f"v_exp_f32 v{T+i}, v{T+i}" for i in range(n)]
    L += [f"v_add_f32 v{T+i}, 1.0, v{T+i}" for i in range(n)]
    L += [f"v_rcp_f32 v{T+i}, v{T+i}" for i in range(n)]
    L += [f"v_mul_f32 v{X+i}, v{X+i}, v{T+i}" for i in range(n)]
    L += [f"v_cvt_pk_bf16_f32 v{T+i}, v{X+2*i}, v{X+2*i+1}" for i in range(n // 2)]
    return L

def gen_k2f(name):
    a = A()
    kernel_begin(a, name)
    Lend = "L_k2_end"
    a("s_cmp_ge_u32 s2, 256", f"s_cbranch_scc1 {Lend}")
    stamp(a, 0, True); stamp(a, 1)
    load_ptrs(a)
    wg_decode2(a)
    a(f"v_lshlrev_b32 v{V_L16}, 4, v1", "v_lshlrev_b32 v36, 3, v1")
    a("s_lshr_b32 s6, s3, 2", "s_lshl_b32 s7, s4, 1", "s_add_u32 s7, s7, s6", "s_lshl_b32 s7, s7, 5",
      "s_lshl_b32 s8, s5, 2", "s_add_u32 s7, s7, s8", "s_and_b32 s8, s3, 3", "s_add_u32 s7, s7, s8",
      "s_lshl_b32 s7, s7, 10", "s_xor_b32 s8, s7, 0x8000")
    a(f"s_mov_b32 s9, {KMAX:#x}", "s_lshl_b32 s10, s3, 10", f"s_add_u32 s11, s10, {KVF:#x}")
    a("s_lshl_b32 s12, s6, 16", f"v_add_u32 v{V_LDSKV}, s12, v{V_L16}")
    a("s_lshl_b32 s68, s4, 8", f"s_add_u32 s68, s68, {FLAGS:#x}")
    a("s_getreg_b32 s42, hwreg(HW_REG_XCC_ID)", "s_and_b32 s42, s42, 15", "s_add_u32 s42, s42, 1")
    a("s_waitcnt lgkmcnt(0)")
    srd(a, 52, 40, WS_BYTES)
    vm = VM(a)
    vm.issue("q", f"buffer_load_dwordx4 {vr(VQ,4)}, v{V_L16}, s[52:55], s7 offen")
    vm.issue("q", f"buffer_load_dwordx4 {vr(VQ+4,4)}, v{V_L16}, s[52:55], s8 offen")
    vm.issue("q", "buffer_load_dwordx2 v[38:39], v36, s[52:55], s9 offen")
    for c in range(2):
        for hf in range(2):
            kv_dma(vm, c, hf)
    a("s_lshl_b32 s13, s5, 2", "s_add_u32 s13, s13, s68", "v_mov_b32 v40, s42", "v_mov_b32 v41, 0")
    vm.issue("xs", "s_mov_b64 exec, 1", "buffer_store_dword v40, v41, s[52:55], s13 offen sc1", "s_mov_b64 exec, -1")
    srd(a, 44, 28, 512*2752)
    srd(a, 48, 24, 512*1024)
    srd(a, 56, 32, 1376*1024)
    a("s_lshr_b32 s13, s3, 1", "s_add_u32 s13, s13, 2", "s_min_u32 s13, s13, s3",
      "s_mul_i32 s14, s5, 6", "s_mul_i32 s15, s5, 5", "s_add_u32 s15, s15, 3", "s_min_u32 s14, s14, s15",
      "s_add_u32 s65, s14, s13",
      "s_lshl_b32 s67, s65, 6",
      "s_mov_b32 s43, s13",
      "s_lshl_b32 s66, s3, 12", f"s_add_u32 s66, s66, {L_STG}")
    a("s_lshl_b32 s69, s3, 14", "s_lshl_b32 s13, s5, 7", "s_add_u32 s69, s69, s13")
    a(f"v_lshrrev_b32 v{V_WG}, 2, v1", "s_movk_i32 s13, 2752", f"v_mul_u32_u24 v{V_WG}, s13, v{V_WG}",
      "v_and_b32 v40, 3, v1", f"v_lshl_add_u32 v{V_WG}, v40, 4, v{V_WG}")
    a("s_lshr_b32 s13, s2, 3", "s_lshl_b32 s13, s13, 3", "s_add_u32 s13, s13, s3", "s_mul_i32 s62, s13, 5504", "s_lshl_b32 s63, s13, 11",
      f"v_lshlrev_b32 v{V_TR}, 7, v1", f"v_and_b32 v{V_W2G}, 15, v1", f"v_lshlrev_b32 v{V_W2G}, 7, v{V_W2G}")
    a("s_mov_b32 s60, 0xffff0000", "s_mov_b32 s61, 0xffff0000")
    a("v_and_b32 v40, 27, v1", "v_cmp_eq_u32 vcc, 0, v40", "v_mov_b32 v41, 0x3f803f80", "s_nop 0", "v_cndmask_b32 v40, 0, v41, vcc")
    for i in range(16):
        a(f"v_mov_b32 v{VV+i}, v40")
    for i in range(32):
        a(f"v_mov_b32 v{VO+i}, 0")
    a("v_mov_b32 v40, 0", "v_mov_b32 v42, 0")
    stamp(a, 2)
    vm.wait("q")
    stamp(a, 3)
    for i in range(4):
        a(f"v_dot2c_f32_bf16 v40, v{VQ+i}, v{VQ+i}", f"v_dot2c_f32_bf16 v42, v{VQ+4+i}, v{VQ+4+i}")
    a("v_max_f32 v38, v38, v39")
    for sh in (8, 4, 2, 1):
        a("s_nop 1", f"v_max_f32_dpp v38, v38, v38 row_ror:{sh} row_mask:0xf bank_mask:0xf")
    a("v_mov_b32 v39, v38", "v_mov_b32 v41, v40", "v_mov_b32 v43, v42", "s_nop 1",
      "v_permlane32_swap_b32 v38, v39", "v_permlane32_swap_b32 v40, v41", "v_permlane32_swap_b32 v42, v43", "s_nop 1",
      "v_max_f32 v38, v38, v39", "v_add_f32 v40, v40, v41", "v_add_f32 v42, v42, v43",
      "v_mov_b32 v39, v38", "v_max_f32 v40, v40, v42", "s_nop 0", "v_permlane16_swap_b32 v38, v39", "s_nop 1",
      "v_max_f32 v38, v38, v39", "v_mul_f32 v40, v40, v38", "v_sqrt_f32 v37, v40", "s_nop 0")
    a(f"v_cmp_nge_f32 vcc, {f32(SM_THR)}, v37")
    for i in range(4):
        a(f"v_mov_b32 v{VP+4+i}, 0")
    a("s_cmp_eq_u64 vcc, 0", "s_cbranch_scc1 L_k2_fast")
    a(f"s_mov_b32 s15, {KVF:#x}", f"v_mov_b32 v{VC}, {f32(-3.0e38)}", f"v_mov_b32 v{VC+1}, {f32(-3.0e38)}")
    a("L_k2_mx:")
    a(f"buffer_load_dwordx4 {vr(VK,4)}, v{V_L16}, s[52:55], s15 offen", "s_waitcnt vmcnt(0)")
    mfma32(a, VS, VK, VQ, None)
    mfma32(a, VS + 16, VK, VQ + 4, None)
    a("s_nop 7", "s_nop 4")
    for t in range(2):
        for i in range(8):
            a(f"v_max3_f32 v{VC+t}, v{VS+16*t+2*i}, v{VS+16*t+2*i+1}, v{VC+t}")
    a("s_add_u32 s15, s15, 2048", f"s_cmp_lt_u32 s15, {KVF+64*2048:#x}", "s_cbranch_scc1 L_k2_mx")
    a(f"v_mov_b32 v{VC+2}, v{VC}", f"v_mov_b32 v{VC+3}, v{VC+1}", "s_nop 1",
      f"v_permlane32_swap_b32 v{VC}, v{VC+2}", f"v_permlane32_swap_b32 v{VC+1}, v{VC+3}", "s_nop 1",
      f"v_max_f32 v{VC}, v{VC}, v{VC+2}", f"v_max_f32 v{VC+1}, v{VC+1}, v{VC+3}")
    attention(a, vm, True)
    a("s_branch L_k2_done")
    a("L_k2_fast:")
    for i in range(16):
        a(f"v_sub_f32 v{VC+i}, 0, v37")
    attention(a, vm, False)
    a("L_k2_done:")
    mfma32(a, VO + 16, VV + 8 + 4, VP + 4, VO + 16)
    stamp(a, 12)
    a(f"v_add_u32 v4, s66, v{V_L16}", "s_xor_b32 s13, s66, 0x4000", f"v_add_u32 v5, s13, v{V_L16}",
      "v_lshlrev_b32 v6, 2, v1", "v_add_u32 v7, s13, v6", "v_add_u32 v6, s66, v6")
    a("s_and_b32 s70, s3, 1", "s_bfe_u32 s71, s3, 0x10001", "s_lshr_b32 s72, s3, 2", "s_nop 3")
    a(f"ds_write_b128 v4, {vr(VO+24,4)}", f"ds_write_b128 v4, {vr(VO+28,4)} offset:1024", f"ds_write_b32 v6, v{VO+16} offset:2048")
    a("s_waitcnt vmcnt(0) lgkmcnt(0)", "s_barrier")
    stamp(a, 13)
    a(f"ds_read_b32 v8, v7 offset:2048", f"ds_read_b128 {vr(VS,4)}, v5", f"ds_read_b128 {vr(VS+4,4)}, v5 offset:1024")
    a("s_mov_b64 exec, 0xff", "s_mov_b32 s13, 0")
    a("L_xc_chk:", f"v_cmp_eq_u32 vcc, 0, v{V_X}", "s_cbranch_vccz L_xc_ok",
      "s_add_u32 s13, s13, 1", f"s_cmp_gt_u32 s13, {SPIN}", "s_cbranch_scc1 L_xc_ok",
      f"v_lshlrev_b32 v{V_X}, 2, v1", f"buffer_load_dword v{V_X}, v{V_X}, s[52:55], s68 offen sc1", "s_waitcnt vmcnt(0)", "s_branch L_xc_chk")
    a("L_xc_ok:", f"v_cmp_ne_u32 vcc, s42, v{V_X}", "s_mov_b64 exec, -1", "s_cmp_lg_u64 vcc, 0", "s_cselect_b32 s42, 1, 0")
    if os.environ.get("FORCE_SLOW", "0") == "1":
        a("s_mov_b32 s42, 1")
    a(f"s_add_u32 s12, s7, {OF:#x}", "s_waitcnt lgkmcnt(2)", f"v_add_f32 v8, v8, v{VO}", "v_rcp_f32 v8, v8", "s_waitcnt lgkmcnt(0)")
    for i in range(8):
        a(f"v_add_f32 v{VO+8+i}, v{VO+8+i}, v{VS+i}")
    for i in range(8):
        a(f"v_mul_f32 v{VO+8+i}, v8, v{VO+8+i}")
    for i in range(4):
        a(f"v_cvt_pk_bf16_f32 v{VP+i}, v{VO+8+2*i}, v{VO+9+2*i}")
    a(f"buffer_store_dwordx4 {vr(VP,4)}, v{V_L16}, s[52:55], s12 offen")
    a(f"v_subrev_u32 v9, s66, v{V_TR}", "s_lshl_b32 s13, s72, 5", "v_xor_b32 v9, s13, v9",
      "s_lshl_b32 s13, s72, 16", "s_lshl_b32 s14, s70, 14", "s_add_u32 s13, s13, s14", "v_add_u32 v9, s13, v9")
    for p in range(8):
        tr_read(a, 60 + 4 * p, 9, p * 1024)
    stamp(a, 14)
    publish(a, "p1", 1)
    stamp(a, 15)
    a("s_lshl_b32 s73, s5, 1", "s_add_u32 s73, s73, s70", "s_lshl_b32 s73, s73, 1", "s_add_u32 s73, s73, s72",
      "s_lshl_b32 s75, s4, 1", "s_add_u32 s75, s75, s71",
      "s_lshl_b32 s74, s75, 15", "s_lshl_b32 s13, s73, 5", "s_add_u32 s74, s74, s13",
      "v_and_b32 v10, 31, v1", "v_lshrrev_b32 v11, 5, v1", "v_lshlrev_b32 v11, 4, v11", "v_lshl_or_b32 v10, v10, 10, v11")
    srd(a, 76, 16, 2048*1024)
    a("buffer_load_dwordx4 v[12:15], v10, s[76:79], s74 offen")
    for i in range(4):
        a(f"v_mov_b32 v{56+i}, 0x3f803f80")
    a("s_nop 1")
    for kt in range(16):
        mfma32(a, 40, VW + 4 * kt, 56, None if kt == 0 else 40)
    stamp(a, 16)
    poll(a, "w1", 1)
    stamp(a, 17)
    vm = VM(a)
    a("s_lshl_b32 s14, s4, 16", f"s_add_u32 s14, s14, {OF:#x}", "s_add_u32 s14, s14, s10")
    for c in range(2):
        for kq in range(2):
            for rt in range(2):
                kt0 = 16 * kq + 8 * c
                vm.issue(f"o{c}", f"s_add_u32 m0, s10, {32768 + rt*65536 + kt0*1024}", f"s_add_u32 s13, s14, {rt*32768 + kt0*1024}",
                         f"buffer_load_dwordx4 v{V_L16}, s[52:55], s13 offen sc1 lds")
    a("s_lshl_b32 s13, s71, 16", "s_lshl_b32 s15, s72, 14", "s_add_u32 s13, s13, s15", "s_add_u32 s13, s13, 32768",
      f"v_add_u32 v8, s13, v{V_L16}")
    for c in range(2):
        stamp(a, 18 + 2 * c)
        vm.wait(f"o{c}"); a("s_barrier")
        stamp(a, 19 + 2 * c)
        for p in range(8):
            a(f"ds_read_b128 {vr(92+4*p,4)}, v8 offset:{(8*c+p)*1024}")
        for p in range(8):
            a(f"s_waitcnt lgkmcnt({7-p})")
            mfma32(a, 16, 60 + 4 * p, 92 + 4 * p, None if (c == 0 and p == 0) else 16)
        if c == 0:
            for p in range(8):
                tr_read(a, 60 + 4 * p, 9, (8 + p) * 1024)
    stamp(a, 22)
    a(f"v_add_u32 v4, s66, v{V_L16}", "s_xor_b32 s13, s66, 0x4000", f"v_add_u32 v5, s13, v{V_L16}")
    a("s_lshl_b32 s12, s75, 5", "s_add_u32 s12, s12, s73", "s_lshl_b32 s12, s12, 10", f"s_add_u32 s12, s12, {HF:#x}")
    a("s_lshl_b32 s15, s4, 14", "s_lshl_b32 s13, s73, 9", "s_add_u32 s15, s15, s13", "s_lshl_b32 s13, s71, 8", "s_add_u32 s15, s15, s13",
      f"s_add_u32 s15, s15, {STF:#x}", "s_nop 0")
    a("ds_write_b128 v4, v[24:27]", "ds_write_b128 v4, v[28:31] offset:1024")
    for i in range(4):
        a(f"v_lshlrev_b32 v32, 16, v{12+i}", f"v_and_b32 v33, 0xffff0000, v{12+i}",
          f"v_add_f32 v{16+2*i}, v{16+2*i}, v32", f"v_add_f32 v{17+2*i}, v{17+2*i}, v33")
    a("v_mov_b32 v60, 0", "v_mov_b32 v61, 0", "v_lshlrev_b32 v64, 3, v1")
    a("s_waitcnt lgkmcnt(0)", "s_barrier")
    stamp(a, 23)
    a("ds_read_b128 v[32:35], v5", "ds_read_b128 v[36:39], v5 offset:1024", "s_waitcnt lgkmcnt(0)")
    for i in range(8):
        a(f"v_add_f32 v{16+i}, v{16+i}, v{32+i}")
    for i in range(4):
        a(f"v_cvt_pk_bf16_f32 v{12+i}, v{16+2*i}, v{17+2*i}")
    a(f"buffer_store_dwordx4 v[12:15], v{V_L16}, s[52:55], s12 offen")
    for i in range(4):
        a(f"v_dot2c_f32_bf16 v60, v56, v{12+i}", f"v_dot2c_f32_bf16 v61, v{12+i}, v{12+i}")
    a("s_nop 2", "v_mov_b32 v62, v60", "v_mov_b32 v63, v61", "s_nop 1",
      "v_permlane32_swap_b32 v60, v62", "v_permlane32_swap_b32 v61, v63", "s_nop 1",
      "v_add_f32 v60, v60, v62", "v_add_f32 v61, v61, v63",
      "s_mov_b64 exec, 0xffffffff", "buffer_store_dwordx2 v[60:61], v64, s[52:55], s15 offen", "s_mov_b64 exec, -1")
    stamp(a, 24)
    publish(a, "p2", 2)
    stamp(a, 25)
    srd(a, 76, 30, 2752)
    a("buffer_load_dwordx4 v[16:19], v11, s[76:79], s67 offen", "buffer_load_dwordx4 v[20:23], v11, s[76:79], s67 offen offset:32")
    for kt in range(16, 32):
        mfma32(a, 40, VW + 4 * kt, 56, 40)
    a("s_waitcnt vmcnt(0)")
    for i in range(8):
        a(f"v_lshlrev_b32 v{64+2*i}, 16, v{16+i}", f"v_and_b32 v{65+2*i}, 0xffff0000, v{16+i}")
    a(f"s_mov_b32 s64, {f32(GK2)}", f"v_mov_b32 v6, {f32(GK1)}")
    stamp(a, 26)
    poll(a, "w2", 2)
    stamp(a, 27)
    vm = VM(a)
    a("s_lshl_b32 s14, s4, 16", f"s_add_u32 s14, s14, {HF:#x}", "s_add_u32 s14, s14, s10")
    for c in range(4):
        for rt in range(2):
            vm.issue(f"h{c}", f"s_add_u32 m0, s10, {rt*32768 + c*8192}", f"s_add_u32 s13, s14, {rt*32768 + c*8192}",
                     f"buffer_load_dwordx4 v{V_L16}, s[52:55], s13 offen sc1 lds")
    a("s_lshl_b32 s14, s4, 14", f"s_add_u32 s14, s14, {STF:#x}", "s_add_u32 s14, s14, s10")
    for i in range(2):
        vm.issue("h3", f"s_add_u32 m0, s10, {65536 + i*8192}", f"s_add_u32 s13, s14, {i*8192}",
                 f"buffer_load_dwordx4 v{V_L16}, s[52:55], s13 offen sc1 lds")
    a("s_mul_i32 s96, s3, 10240", "s_add_u32 s96, s96, 81920",
      "s_lshr_b32 s98, s3, 1", "s_lshl_b32 s97, s98, 14", "s_lshl_b32 s13, s5, 7", "s_add_u32 s97, s97, s13",
      "s_lshl_b32 s13, s70, 6", "s_add_u32 s97, s97, s13")
    a(f"v_subrev_u32 v{V_TR}, s66, v{V_TR}", "s_lshl_b32 s13, s72, 5", f"v_xor_b32 v{V_TR}, s13, v{V_TR}", f"v_add_u32 v{V_TR}, s96, v{V_TR}")
    def w2_dma(vm, i):
        vm.issue(f"w2_{i}", f"s_add_u32 m0, s96, {(i%10)*1024}", f"s_add_u32 s13, s97, {i*65536}",
                 f"buffer_load_dwordx4 v{V_W2G}, s[56:59], s13 offen lds")
    a("s_and_b32 s99, s70, s72", "s_lshl_b32 s13, s99, 15", f"v_add_u32 v7, s13, v{V_L16}",
      "v_and_b32 v8, 31, v1", "v_lshlrev_b32 v8, 3, v8", "v_lshl_add_u32 v8, v11, 9, v8",
      "s_lshl_b32 s13, s99, 8", "s_add_u32 s13, s13, 65536", "v_add_u32 v8, s13, v8", "v_xor_b32 v9, 256, v8")
    a("s_lshl_b32 s12, s4, 1", "s_add_u32 s12, s12, s99", "s_mul_i32 s12, s12, 86", "s_lshl_b32 s13, s65, 1", "s_add_u32 s12, s12, s13",
      "s_lshl_b32 s12, s12, 10", f"s_add_u32 s12, s12, {FF:#x}", f"s_add_u32 s15, s12, {86*1024}")
    lg = LG(a)
    BW = 96
    def stats_fillers(addr, dst):
        F = []
        for b in range(2):
            F.append(("lds", [(f"st{dst}_{b}", f"ds_read2st64_b64 {vr(80+4*i,4)}, v{addr} offset0:{8*b+2*i} offset1:{8*b+2*i+1}") for i in range(4)]))
            F.append(("nop",))
            ops = []
            for i in range(4):
                ops += [f"v_add_f32 v{80+4*i}, v{80+4*i}, v{82+4*i}", f"v_add_f32 v{81+4*i}, v{81+4*i}, v{83+4*i}"]
            ops += ["v_add_f32 v80, v80, v84", "v_add_f32 v81, v81, v85", "v_add_f32 v88, v88, v92", "v_add_f32 v89, v89, v93"]
            if b == 0:
                ops += [f"v_add_f32 v{dst}, v80, v88", f"v_add_f32 v{dst+1}, v81, v89"]
            else:
                ops += ["v_add_f32 v80, v80, v88", "v_add_f32 v81, v81, v89", f"v_add_f32 v{dst}, v{dst}, v80", f"v_add_f32 v{dst+1}, v{dst+1}, v81",
                        f"v_mov_b32 v80, v{dst}", f"v_mov_b32 v81, v{dst+1}", "s_nop 1",
                        f"v_permlane32_swap_b32 v{dst}, v80", f"v_permlane32_swap_b32 v{dst+1}, v81", "s_nop 1",
                        f"v_add_f32 v{dst}, v{dst}, v80", f"v_add_f32 v{dst+1}, v{dst+1}, v81"]
                t = A(); rstd(t, dst, dst + 1); ops += [l.strip() for l in t.lines]
            F.append(("valu", f"st{dst}_{b}", ops))
        return F
    def run_filler(f):
        if f[0] == "lds":
            for tag, ins in f[1]:
                lg.issue(tag, ins)
        elif f[0] == "valu":
            if f[1]: lg.wait(f[1])
            a(*f[2])
        elif f[0] == "fn":
            f[1]()
    fill = stats_fillers(8, 32) + stats_fillers(9, 34)
    seg = {0: ("h0", 8), 8: ("h1", 16), 16: ("h3", 32)}
    lim = 0
    nxt = 0
    for kt in range(32):
        if kt in seg:
            stamp(a, 28 + kt // 4)
            vm.wait(seg[kt][0]); a("s_barrier"); lim = seg[kt][1]
            stamp(a, 29 + kt // 4)
            if kt == 8:
                pass
        while nxt < min(lim, kt + 4):
            lg.issue(f"b{nxt}", f"ds_read_b128 {vr(BW+4*(nxt&3),4)}, v7 offset:{nxt*1024}"); nxt += 1
        lg.wait(f"b{kt}")
        mfma32(a, 16, VW + 4 * kt, BW + 4 * (kt & 3), None if kt == 0 else 16)
        if nxt < min(lim, kt + 5):
            lg.issue(f"b{nxt}", f"ds_read_b128 {vr(BW+4*(nxt&3),4)}, v7 offset:{nxt*1024}"); nxt += 1
        if 2 <= kt < 12:
            w2_dma(vm, kt - 2)
        if kt >= 17 and fill:
            run_filler(fill.pop(0))
    assert not fill
    stamp(a, 34)
    a("s_cmp_ge_u32 s3, 4", "s_cbranch_scc1 L_f1_s")
    vmS = VM(a); vmS.ops = list(vm.ops); lgS_ops = list(lg.ops)
    g0 = gelu_ops(16, 56, 8, 40, 64, 32, 33)
    g1 = gelu_ops(24, 112, 8, 48, 72, 32, 33)
    G = [("v", x) for x in g0] + [("st", f"buffer_store_dwordx4 v[56:59], v{V_L16}, s[52:55], s12 offen")] + \
        [("v", x) for x in g1] + [("st", f"buffer_store_dwordx4 v[112:115], v{V_L16}, s[52:55], s12 offen offset:1024")]
    def readout(vm, lg, i):
        vm.wait(f"w2_{i}")
        lg.issue(f"r{i}", f"ds_read_b64_tr_b16 {vr(VW+4*i,2)}, v{V_TR} offset:{(i%10)*1024}")
        lg.issue(f"r{i}", f"ds_read_b64_tr_b16 {vr(VW+4*i+2,2)}, v{V_TR} offset:{(i%10)*1024+256}")
    nxt = 0
    for kt in range(32):
        while nxt < min(32, kt + 4):
            lg.issue(f"c{nxt}", f"ds_read_b128 {vr(BW+4*(nxt&3),4)}, v7 offset:{32768+nxt*1024}"); nxt += 1
        lg.wait(f"c{kt}")
        mfma32(a, 80, VW + 4 * kt, BW + 4 * (kt & 3), None if kt == 0 else 80)
        if nxt < min(32, kt + 5):
            lg.issue(f"c{nxt}", f"ds_read_b128 {vr(BW+4*(nxt&3),4)}, v7 offset:{32768+nxt*1024}"); nxt += 1
        if kt < 10:
            readout(vm, lg, kt)
        if 4 <= kt < 14:
            lg.wait(f"r{kt-4}"); w2_dma(vm, kt - 4 + 10)
        if 20 <= kt < 30:
            readout(vm, lg, kt - 10)
        if 24 <= kt < 26:
            lg.wait(f"r{kt-14}"); w2_dma(vm, kt - 4)
        if kt >= 4:
            for _ in range(6):
                if G:
                    k, ins = G.pop(0)
                    if k == "v": a(ins)
                    else: vm.issue("fst", ins)
    assert not G
    stamp(a, 35)
    readout(vm, lg, 20); readout(vm, lg, 21)
    a("s_nop 7")
    a(*gelu_ops(80, 56, 8, 40, 64, 34, 35))
    a(f"buffer_store_dwordx4 v[56:59], v{V_L16}, s[52:55], s15 offen")
    a(*gelu_ops(88, 112, 8, 48, 72, 34, 35))
    a(f"buffer_store_dwordx4 v[112:115], v{V_L16}, s[52:55], s15 offen offset:1024")
    a("s_branch L_f1_done")
    a("L_f1_s:")
    vm = vmS; lg.ops = lgS_ops
    for i in range(10):
        readout(vm, lg, i)
    a(*gelu_ops(16, 56, 8, 40, 64, 32, 33))
    lg.wait("r9")
    for i in range(10, 20):
        w2_dma(vm, i)
    a(*gelu_ops(24, 112, 8, 48, 72, 32, 33))
    for i in range(10, 20):
        readout(vm, lg, i)
    lg.wait("r11")
    w2_dma(vm, 20); w2_dma(vm, 21)
    readout(vm, lg, 20); readout(vm, lg, 21)
    a("s_cmp_eq_u32 s43, 5", "s_cselect_b32 s13, s5, 0", "s_cmp_ge_u32 s13, 3", "s_cbranch_scc1 L_f1_done")
    a(f"buffer_store_dwordx4 v[56:59], v{V_L16}, s[52:55], s12 offen")
    a(f"buffer_store_dwordx4 v[112:115], v{V_L16}, s[52:55], s12 offen offset:1024")
    a("L_f1_done:")
    stamp(a, 36)
    publish(a, "p3", 3)
    stamp(a, 37)
    srd(a, 76, 34, 1024)
    a("s_lshl_b32 s13, s73, 5", "buffer_load_dwordx4 v[48:51], v11, s[76:79], s13 offen")
    a("s_lshl_b32 s13, s71, 13", "s_lshl_b32 s14, s98, 10", "s_add_u32 s13, s13, s14", f"v_add_u32 v52, s13, v{V_L16}",
      "v_xor_b32 v55, 0x2000, v52")
    for b in (1, 2):
        a(f"v_add_u32 v{52+b}, {b*65536:#x}, v52", f"v_add_u32 v{55+b}, {b*65536:#x}, v55")
    a("s_mul_i32 s14, s4, 176128", f"s_add_u32 s14, s14, {FF:#x}", "s_add_u32 s14, s14, s10")
    poll(a, "w3", 3)
    stamp(a, 38)
    vm = VM(a); lg = LG(a)
    def f_dma(c):
        for rt in range(2):
            vm.issue(f"f{c}", f"s_add_u32 m0, s10, {(c%10)*16384 + rt*8192}", f"s_add_u32 s13, s14, {rt*86*1024 + c*8192}",
                     f"buffer_load_dwordx4 v{V_L16}, s[52:55], s13 offen sc1 lds")
    for c in range(4):
        f_dma(c)
    issued = 4
    groups = [[0], [1], [2, 3], [4, 5], [6, 7], [8, 9], [10]]
    for gi, grp in enumerate(groups):
        stamp(a, 39 + 2 * gi)
        vm.wait(f"f{grp[-1]}"); a("s_barrier")
        stamp(a, 40 + 2 * gi)
        steps = [(c, h) for c in grp for h in range(2)]
        for n, (c, h) in enumerate(steps):
            sl = c % 10
            off = (sl & 3) * 16384 + h * 4096
            for s in range(2):
                lg.issue(f"x{c}_{h}_{s}", f"ds_read_b128 {vr(64+8*n+4*s,4)}, v{52+3*s+sl//4} offset:{off}")
        for _ in range(2):
            if issued < 11:
                f_dma(issued); issued += 1
        for n, (c, h) in enumerate(steps):
            i = 2 * c + h
            if i == 21:
                a("s_waitcnt lgkmcnt(0)", "s_cmp_ge_u32 s98, 2", "s_cbranch_scc1 L_f2_skip")
            for s in range(2):
                lg.wait(f"x{c}_{h}_{s}")
                mfma32(a, 16 + 16 * s, VW + 4 * i, 64 + 8 * n + 4 * s, None if i == 0 else 16 + 16 * s)
    a("L_f2_skip:")
    stamp(a, 53)
    a("s_mul_i32 s13, s3, 6144", "s_add_u32 s13, s13, 16384", f"v_add_u32 v4, s13, v{V_L16}")
    for sg in (1, 2, 3):
        a(f"s_xor_b32 s14, s3, {sg<<1}", "s_mul_i32 s14, s14, 6144", f"s_add_u32 s14, s14, {16384+(sg-1)*2048}", f"v_add_u32 v{4+sg}, s14, v{V_L16}")
    srd(a, 76, 36, 2048*1024)
    octs = {1: 32, 2: 24, 3: 40}
    for sg in (2, 1, 3):
        a(f"ds_write_b128 v4, {vr(octs[sg],4)} offset:{(sg-1)*2048}", f"ds_write_b128 v4, {vr(octs[sg]+4,4)} offset:{(sg-1)*2048+1024}")
    for src in (12, 48):
        for i in range(4):
            a(f"v_lshlrev_b32 v60, 16, v{src+i}", f"v_and_b32 v61, 0xffff0000, v{src+i}",
              f"v_add_f32 v{16+2*i}, v{16+2*i}, v60", f"v_add_f32 v{17+2*i}, v{17+2*i}, v61")
    a("s_waitcnt lgkmcnt(0)", "s_barrier")
    for sg in (1, 2, 3):
        a(f"ds_read_b128 {vr(56+8*sg,4)}, v{4+sg}", f"ds_read_b128 {vr(60+8*sg,4)}, v{4+sg} offset:1024")
    for sg in (1, 2, 3):
        a(f"s_waitcnt lgkmcnt({2*(3-sg)})")
        for i in range(8):
            a(f"v_add_f32 v{16+i}, v{16+i}, v{56+8*sg+i}")
    for i in range(4):
        a(f"v_cvt_pk_bf16_f32 v{24+i}, v{16+2*i}, v{17+2*i}")
    a("buffer_store_dwordx4 v[24:27], v10, s[76:79], s74 offen")
    if STAMP: a("s_waitcnt vmcnt(0)")
    stamp(a, 62); stamp(a, 63, True)
    stamp_flush(a, 1, 8)
    a(f"{Lend}:", "s_endpgm")
    return a.text() + kernel_desc(name, 256, nsgpr=102), f"; @launch kernel={name} grid=(256,1,1) block=(512,1,1) lds={LDS}"
```

```python
from lib import *
from k1 import load_ptrs, sigma_lane
import math

K4_EX = 98304
K4_ST = K4_EX + 49152
K4_LDS = K4_ST + 2048
GK1 = -2.0 * math.sqrt(2.0 / math.pi) * math.log2(math.e)
GK2 = GK1 * 0.044715

def gen_k4(name):
    a = A()
    kernel_begin(a, name)
    Lend = "L_k4_end"
    a("s_cmp_ge_u32 s2, 240", f"s_cbranch_scc1 {Lend}")
    stamp(a, 0, True); stamp(a, 1)
    load_ptrs(a)
    a("v_lshrrev_b32 v2, 6, v0", "v_and_b32 v1, 63, v0")
    a("s_and_b32 s4, s2, 7", "s_lshl_b32 s4, s4, 1", "s_bfe_u32 s5, s2, 0x10003")
    a("v_readfirstlane_b32 s3, v2")
    a("s_add_u32 s4, s4, s5", "s_lshr_b32 s5, s2, 4")
    a("s_and_b32 s70, s3, 3", "s_lshr_b32 s72, s3, 2")
    a("v_lshlrev_b32 v2, 4, v1")
    a("s_lshl_b32 s6, s72, 4", "s_add_u32 s6, s6, s70", "s_lshl_b32 s6, s6, 10",
      "s_mul_i32 s7, s5, 98304", "s_add_u32 s7, s7, s6", f"s_add_u32 s7, s7, {W1F:#x}")
    a("s_lshl_b32 s12, s4, 2", "s_add_u32 s12, s12, s70",
      "s_lshl_b32 s8, s12, 5", "s_lshl_b32 s9, s72, 4", "s_add_u32 s8, s8, s9", "s_lshl_b32 s8, s8, 10",
      f"s_add_u32 s8, s8, {HF:#x}")
    for p in range(4):
        a(f"s_xor_b32 s{60+p}, s70, {p}", f"s_lshl_b32 s{60+p}, s{60+p}, 10")
    a("s_mul_i32 s10, s5, 192", "s_lshl_b32 s9, s72, 5", "s_add_u32 s10, s10, s9",
      "v_lshrrev_b32 v4, 5, v1", "v_lshlrev_b32 v5, 4, v4")
    a("s_waitcnt lgkmcnt(0)")
    stamp(a, 2)
    srd(a, 52, 40, WS_BYTES)
    srd(a, 48, 30, 2752)
    for nt in range(3):
        a(f"buffer_load_dwordx4 {vr(192+4*nt,4)}, v5, s[48:51], s10 offen offset:{64*nt}")
    for c in range(4):
        for nt in range(3):
            a(f"s_add_u32 m0, s6, {nt*32768+c*4096}", f"s_add_u32 s73, s7, {nt*32768+c*4096}",
              "buffer_load_dwordx4 v2, s[52:55], s73 offen lds")
        for p in range(4):
            a(f"s_add_u32 s73, s8, s{60+p}", f"s_add_u32 s73, s73, {c*4096}",
              f"buffer_load_dwordx4 {vr(64+16*c+4*p,4)}, v2, s[52:55], s73 offen")
    a("v_lshlrev_b32 v6, 2, v0", "v_mov_b32 v7, 0", f"v_add_u32 v6, {K4_ST}, v6", "ds_write_b32 v6, v7")
    a("s_lshl_b32 s73, s72, 8", "v_xor_b32 v6, s73, v2", "s_lshl_b32 s74, s72, 14")
    for p in range(4):
        a(f"s_add_u32 s73, s74, s{60+p}", f"v_add_u32 v{176+p}, s73, v6", f"v_add_u32 v{180+p}, 0x10000, v{176+p}")
    for i in range(5):
        a(f"v_mov_b32 v{184+i}, 0")
    a("s_mov_b32 s77, 0x3f803f80")
    for c in range(4):
        if c == 0: stamp(a, 3)
        a(f"s_waitcnt vmcnt({7*(3-c)}) lgkmcnt(0)", "s_barrier")
        if c == 0: stamp(a, 4)
        if c == 3: stamp(a, 5)
        for p in range(4):
            for nt in range(3):
                if nt < 2:
                    a(f"ds_read_b128 {vr(128+12*p+4*nt,4)}, v{176+p} offset:{nt*32768+c*4096}")
                else:
                    a(f"ds_read_b128 {vr(128+12*p+4*nt,4)}, v{180+p} offset:{c*4096}")
        for p in range(4):
            B = 64 + 16 * c + 4 * p
            for nt in range(3):
                a(f"s_waitcnt lgkmcnt({11-(3*p+nt)})")
                mfma32(a, 16 + 16 * nt, 128 + 12 * p + 4 * nt, B, None if (c == 0 and p == 0) else 16 + 16 * nt)
                if p == 0:
                    for e in range(4):
                        a(f"v_dot2c_f32_bf16 v{186+nt}, s77, v{128+4*nt+e}")
                if nt == 1:
                    for e in range(4):
                        a(f"v_dot2c_f32_bf16 v184, s77, v{B+e}")
                if nt == 2:
                    for e in range(4):
                        a(f"v_dot2c_f32_bf16 v185, v{B+e}, v{B+e}")
    a("v_and_b32 v6, 31, v1", "s_lshl_b32 s73, s70, 7", f"s_add_u32 s73, s73, {K4_ST}", "v_lshl_add_u32 v6, v6, 2, s73")
    sigma_lane(a, 7, 1, 8)
    a("s_lshl_b32 s73, s72, 4", "v_xor_b32 v7, s73, v7", "v_lshlrev_b32 v7, 2, v7", f"v_add_u32 v7, {K4_ST+1024}, v7")
    a("ds_add_f32 v6, v184", "ds_add_f32 v6, v185 offset:512")
    for nt in range(3):
        a(f"ds_add_f32 v7, v{186+nt} offset:{128*nt}")
    a("s_mul_i32 s73, s3, 6144", f"s_add_u32 s73, s73, {K4_EX}", "v_add_u32 v8, s73, v2",
      "s_xor_b32 s74, s3, 4", "s_mul_i32 s73, s74, 6144", f"s_add_u32 s73, s73, {K4_EX}", "v_add_u32 v9, s73, v2")
    for nt in range(3):
        a(f"ds_write_b128 v8, {vr(24+16*nt,4)} offset:{2048*nt}", f"ds_write_b128 v8, {vr(28+16*nt,4)} offset:{2048*nt+1024}")
    a("s_lshl_b32 s73, s72, 6", f"s_add_u32 s73, s73, {K4_ST+1024}", "v_lshl_add_u32 v7, v4, 5, s73")
    for nt in range(3):
        for i in range(4):
            a(f"v_lshlrev_b32 v{128+8*nt+2*i}, 16, v{192+4*nt+i}", f"v_and_b32 v{129+8*nt+2*i}, 0xffff0000, v{192+4*nt+i}")
    a(f"v_mov_b32 v12, {f32(GK2)}", f"v_mov_b32 v13, {f32(GK1)}")
    stamp(a, 8)
    a("s_waitcnt lgkmcnt(0)", "s_barrier")
    stamp(a, 9)
    a("ds_read_b32 v10, v6", "ds_read_b32 v11, v6 offset:512")
    for nt in range(3):
        a(f"ds_read_b128 {vr(64+8*nt,4)}, v9 offset:{2048*nt}", f"ds_read_b128 {vr(68+8*nt,4)}, v9 offset:{2048*nt+1024}")
        a(f"ds_read_b128 {vr(96+8*nt,4)}, v7 offset:{128*nt}", f"ds_read_b128 {vr(100+8*nt,4)}, v7 offset:{128*nt+16}")
    a("s_waitcnt lgkmcnt(12)")
    a(f"v_mul_f32 v10, {f32(1/512)}, v10", f"v_mul_f32 v11, {f32(1/512)}, v11",
      "v_fma_f32 v11, -v10, v10, v11", "v_max_f32 v11, 0, v11", f"v_add_f32 v11, {f32(1e-5)}, v11", "v_rsq_f32 v11, v11")
    a("s_mul_i32 s73, s12, 86", "s_mul_i32 s74, s5, 6", "s_add_u32 s73, s73, s74", "s_add_u32 s73, s73, s72",
      "s_lshl_b32 s73, s73, 10", f"s_add_u32 s73, s73, {FF:#x}")
    for nt in range(3):
        X = 16 + 16 * nt
        T = X + 8
        a(f"s_waitcnt lgkmcnt({4*(2-nt)})")
        for i in range(8):
            a(f"v_add_f32 v{X+i}, v{X+i}, v{64+8*nt+i}")
        for i in range(8):
            a(f"v_fma_f32 v{X+i}, -v10, v{96+8*nt+i}, v{X+i}")
        for i in range(8):
            a(f"v_fma_f32 v{X+i}, v{X+i}, v11, v{128+8*nt+i}")
        for i in range(8):
            a(f"v_mul_f32 v{T+i}, v{X+i}, v{X+i}")
        for i in range(8):
            a(f"v_fma_f32 v{T+i}, v{T+i}, v12, v13")
        for i in range(8):
            a(f"v_mul_f32 v{T+i}, v{T+i}, v{X+i}")
        for i in range(8):
            a(f"v_exp_f32 v{T+i}, v{T+i}")
        for i in range(8):
            a(f"v_add_f32 v{T+i}, 1.0, v{T+i}")
        for i in range(8):
            a(f"v_rcp_f32 v{T+i}, v{T+i}")
        for i in range(8):
            a(f"v_mul_f32 v{X+i}, v{X+i}, v{T+i}")
        for i in range(4):
            a(f"v_cvt_pk_bf16_f32 v{T+i}, v{X+2*i}, v{X+2*i+1}")
        a(f"buffer_store_dwordx4 {vr(T,4)}, v2, s[52:55], s73 offen offset:{2048*nt}" if nt < 2 else
          f"s_add_u32 s73, s73, 4096\nbuffer_store_dwordx4 {vr(T,4)}, v2, s[52:55], s73 offen")
        if nt == 0:
            a("s_cmp_eq_u32 s5, 14", f"s_cbranch_scc1 {Lend}")
    if STAMP:
        a("s_waitcnt vmcnt(0)")
        stamp(a, 6); stamp(a, 7, True)
        stamp_flush(a, 3, 8)
    a(f"{Lend}:", "s_endpgm")
    return a.text() + kernel_desc(name, 204), f"; @launch kernel={name} grid=(240,1,1) block=(512,1,1) lds={K4_LDS}"
```

```python
class A:
    def __init__(self):
        self.lines = []
        self.uid = 0
    def __call__(self, s, *more):
        for t in (s,) + more:
            for l in t.split("\n"):
                l = l.rstrip()
                if l.strip() == "":
                    continue
                if l.strip().endswith(":") or l.startswith("."):
                    self.lines.append(l.strip())
                else:
                    self.lines.append("    " + l.strip())
    def c(self, s):
        self.lines.append("    ; " + s)
    def label(self, base):
        self.uid += 1
        return f"L_{base}_{self.uid}"
    def text(self):
        return "\n".join(self.lines) + "\n"

def vr(a, n):
    return f"v[{a}:{a+n-1}]" if n > 1 else f"v{a}"
def sr(a, n):
    return f"s[{a}:{a+n-1}]" if n > 1 else f"s{a}"

def kernel_begin(a, name):
    a(".text", f".globl {name}", ".p2align 8", f".type {name},@function", f"{name}:")

def kernel_desc(name, nvgpr, nsgpr=96, accum=None):
    if accum is None:
        accum = (nvgpr + 3) // 4 * 4
    return f""".section .rodata,"a"
.p2align 6
.amdhsa_kernel {name}
  .amdhsa_next_free_vgpr {nvgpr}
  .amdhsa_next_free_sgpr {nsgpr}
  .amdhsa_accum_offset {accum}
  .amdhsa_group_segment_fixed_size 0
  .amdhsa_kernarg_size 104
  .amdhsa_user_sgpr_count 2
  .amdhsa_user_sgpr_kernarg_segment_ptr 1
  .amdhsa_system_sgpr_workgroup_id_x 1
.end_amdhsa_kernel
"""

def srd(a, d, base, nbytes):
    a(f"s_mov_b32 s{d}, s{base}", f"s_and_b32 s{d+1}, s{base+1}, 0xffff",
      f"s_mov_b32 s{d+2}, {nbytes:#x}", f"s_mov_b32 s{d+3}, 0x00020000")

def mfma32(a, d, A_, B_, c):
    cs = "0" if c is None else vr(c, 16)
    a(f"v_mfma_f32_32x32x16_bf16 {vr(d,16)}, {vr(A_,4)}, {vr(B_,4)}, {cs}")
def mfma16(a, d, A_, B_, c):
    cs = "0" if c is None else vr(c, 4)
    a(f"v_mfma_f32_16x16x32_bf16 {vr(d,4)}, {vr(A_,4)}, {vr(B_,4)}, {cs}")

import struct
def f32(x):
    return "0x%08x" % struct.unpack("<I", struct.pack("<f", x))[0]

QF   = 0x000000
KVF  = 0x200000
KMAX = 0x220000
WOF  = 0x240000
W1F  = 0x2C0000
W2F  = 0x440000
OF   = 0x600000
HF   = 0x800000
FF   = 0xA00000
WS_BYTES = 0x1000000
KA = dict(x=0, wq=8, wk=16, wv=24, wo=32, bx=40, w1=48, b1=56, w2=64, b2=72, out=80, dbg=88, ws=96)

import os
STAMP = os.environ.get("STAMP", "0") == "1"
STAMP_BASE = 0xF80000
NSTAMP = 8
STAMP_NAMES = {}
def stamp(a, idx, real=False, name=None):
    if not STAMP:
        return
    op = "s_memrealtime" if real else "s_memtime"
    a(f"{op} s[92:93]", "s_waitcnt lgkmcnt(0)")
    if idx < 2:
        a(f"s_mov_b32 s{80+idx}, s92")
    else:
        a(f"v_writelane_b32 v0, s92, {idx}")
def stamp_flush(a, kidx, vt=0, wave="s3", srdreg=52):
    if not STAMP:
        return
    a("s_mov_b64 exec, -1", "v_writelane_b32 v0, s80, 0", "v_writelane_b32 v0, s81, 1")
    a(f"s_lshl_b32 s94, s2, 4", f"s_add_u32 s94, s94, {wave}", "s_lshl_b32 s94, s94, 8",
      f"s_add_u32 s94, s94, {0x1000000 + kidx*0x100000:#x}", f"v_lshlrev_b32 v{vt}, 2, v1")
    a(f"buffer_store_dword v0, v{vt}, s[{srdreg}:{srdreg+3}], s94 offen")
if STAMP:
    WS_BYTES = 0x1200000
FLAGS = 0x230000
```

```python
import sys
from lib import *
from k1b import gen_k1b
from k2f import gen_k2f
NAME = "sequential_preLN__grouped_kv_mqa__dense_activation_gelu__prompt"
ref = open(f"cdna_kernels/{NAME}.s.ref").read().split("\n")
head = [l for l in ref if l.startswith(";") and "@launch" not in l and "Override launch" not in l and "grid=ceil" not in l]
parts = [gen_k1b("qkv_kernel"), gen_k2f("main_kernel")]
out = "\n".join(head) + "\n" + "\n".join(p[1] for p in parts) + "\n"
out += '.amdgcn_target "amdgcn-amd-amdhsa--gfx950"\n'
out += "".join(p[0] for p in parts)
dst = sys.argv[1] if len(sys.argv) > 1 else f"cdna_kernels/{NAME}.s"
open(dst, "w").write(out)
print("wrote", dst, len(out))
```

```python
from lib import *
import math, os
from k1 import load_ptrs, sigma_lane, QSCALE

L_X = 0
L_W = 65536
L_EX = 131072
L_ST = 131072 + 16384
L_CS = L_ST + 2048
L_KV = L_CS + 1024
K1_LDS = L_KV + 256
PREF = os.environ.get("PREF", "1") == "1"

def wg_decode2(a):
    a("v_lshrrev_b32 v2, 6, v0", "v_and_b32 v1, 63, v0")
    a("s_and_b32 s4, s2, 7", "s_lshl_b32 s4, s4, 2", "s_lshr_b32 s5, s2, 6")
    a("v_readfirstlane_b32 s3, v2")
    a("s_add_u32 s4, s4, s5", "s_bfe_u32 s5, s2, 0x30003")

def halves_sum(a, r, t):
    a(f"v_mov_b32 v{t}, v{r}", "s_nop 1", f"v_permlane32_swap_b32 v{r}, v{t}", "s_nop 1", f"v_add_f32 v{r}, v{r}, v{t}")

def rstd(a, m, v, extra=None):
    a(f"v_mul_f32 v{m}, {f32(1/512)}, v{m}", f"v_mul_f32 v{v}, {f32(1/512)}, v{v}",
      f"v_fma_f32 v{v}, -v{m}, v{m}, v{v}", f"v_max_f32 v{v}, 0, v{v}", f"v_add_f32 v{v}, {f32(1e-5)}, v{v}",
      f"v_rsq_f32 v{v}, v{v}")

def gen_k1b(name):
    a = A()
    kernel_begin(a, name)
    Lend = "L_k1_end"
    a("s_cmp_ge_u32 s2, 256", f"s_cbranch_scc1 {Lend}")
    stamp(a, 0, True); stamp(a, 1)
    load_ptrs(a)
    wg_decode2(a)
    a.c("x DMA: row = 8w + (l>>3), piece = (l&7) ^ ((row>>1)&7)")
    a("v_lshrrev_b32 v2, 3, v1",
      "s_lshl_b32 s6, s3, 3",
      "v_add_u32 v3, s6, v2",
      "v_bfe_u32 v4, v3, 1, 3",
      "v_and_b32 v5, 7, v1",
      "v_xor_b32 v4, v4, v5",
      "v_lshlrev_b32 v4, 4, v4",
      "v_lshl_or_b32 v6, v3, 10, v4")
    a("v_bfe_u32 v4, v2, 1, 1",
      "v_lshlrev_b32 v4, 2, v4",
      "v_xor_b32 v4, v4, v5",
      "v_lshlrev_b32 v4, 4, v4",
      "v_lshl_or_b32 v7, v3, 10, v4")
    a("s_lshl_b32 s7, s4, 16", "s_lshl_b32 s8, s3, 10", "s_lshl_b32 s9, s5, 7", f"s_add_u32 s10, s8, {L_W}")
    a("v_lshlrev_b32 v100, 7, v1")
    a("s_waitcnt lgkmcnt(0)")
    stamp(a, 2)
    srd(a, 44, 16, 2048*1024)
    srd(a, 48, 18, 512*1024)
    srd(a, 52, 40, WS_BYTES)
    a("s_cmp_eq_u32 s3, 8", "s_cbranch_scc1 L_k1_kv")
    NPF = 0
    if PREF:
        a("s_cmp_gt_u32 s3, 2", "s_cbranch_scc1 L_k1_nopf", "s_cmp_eq_u32 s3, 0", "s_cbranch_scc0 L_k1_pfw")
        a("s_lshl_b32 s11, s5, 13", "s_add_u32 s11, s11, s7", "buffer_load_dword v101, v100, s[44:47], s11 offen", "s_branch L_k1_nopf")
        a("L_k1_pfw:")
        a("s_lshr_b32 s11, s2, 3", "s_lshl_b32 s11, s11, 1", "s_add_u32 s11, s11, s3", "s_sub_u32 s11, s11, 1", "s_lshl_b32 s11, s11, 13",
          "buffer_load_dword v101, v100, s[48:51], s11 offen")
        a("L_k1_nopf:")
    order = [0, 4, 1, 5, 2, 6, 3, 7]
    for i in order:
        a(f"s_add_u32 m0, s8, {i*8064}", f"s_add_u32 s11, s9, {i*0x10000}",
          f"buffer_load_dwordx4 v6, s[44:47], s7 offen offset:{i*128} lds")
        a(f"s_add_u32 m0, s10, {i*8192}", "s_nop 0",
          f"buffer_load_dwordx4 v7, s[48:51], s11 offen lds")
    K1T = os.environ.get("K1T", "1") == "1"
    a("s_and_b32 s70, s3, 1", "s_bfe_u32 s71, s3, 0x10001", "s_lshr_b32 s72, s3, 2",
      "s_lshl_b32 s73, s70, 1", "s_add_u32 s73, s73, s71")
    a("v_and_b32 v2, 31, v1", "v_lshrrev_b32 v3, 5, v1", "v_bfe_u32 v4, v2, 1, 3",
      "s_lshl_b32 s74, s70, 12", "s_lshl_b32 s75, s72, 15", "s_add_u32 s74, s74, s75",
      "v_lshl_add_u32 v5, v2, 7, s74")
    for j in range(4):
        a(f"s_xor_b32 s76, s73, {j}", "s_lshl_b32 s76, s76, 1", "v_add_u32 v6, s76, v3", "v_xor_b32 v6, v6, v4",
          f"v_lshl_add_u32 v{8+j}, v6, 4, v5")
    a("v_bfe_u32 v2, v1, 4, 1", "v_xor_b32 v2, s72, v2", "v_and_b32 v4, 1, v1", "v_lshl_or_b32 v2, v2, 1, v4",
      "s_lshl_b32 s76, s71, 2", "v_or_b32 v2, s76, v2", "v_bfe_u32 v4, v1, 3, 1", "v_lshlrev_b32 v4, 2, v4",
      "v_xor_b32 v2, v2, v4", "v_lshlrev_b32 v2, 4, v2", "v_bfe_u32 v4, v1, 1, 1", "v_lshl_or_b32 v2, v4, 3, v2",
      "v_bfe_u32 v4, v1, 2, 2", "v_lshl_or_b32 v2, v4, 7, v2", "v_lshl_or_b32 v2, v3, 10, v2",
      f"s_add_u32 s75, s75, {L_W}")
    for j in range(4):
        a(f"s_xor_b32 s76, s73, {j}", "s_lshl_b32 s76, s76, 11", "s_add_u32 s76, s76, s75", f"v_add_u32 v{12+j}, s76, v2")
    a("v_mov_b32 v96, 0", "v_mov_b32 v97, 0", "v_mov_b32 v98, 0", "s_mov_b32 s77, 0x3f803f80")
    a("v_and_b32 v2, 31, v1", "s_lshl_b32 s76, s70, 8", f"s_add_u32 s76, s76, {L_ST}", "v_lshl_add_u32 v104, v2, 3, s76",
      "s_lshr_b32 s76, s3, 1", "s_lshl_b32 s76, s76, 9", "v_add_u32 v105, s76, v104")
    sigma_lane(a, 5, 1, 6)
    a("s_lshl_b32 s76, s72, 4", "v_xor_b32 v5, s76, v5",
      "s_lshl_b32 s76, s72, 1", "s_add_u32 s76, s76, s70", "s_lshl_b32 s76, s76, 8", "s_lshl_b32 s78, s71, 7", "s_add_u32 s76, s76, s78",
      f"s_add_u32 s76, s76, {L_CS}", "v_lshl_add_u32 v106, v5, 2, s76")
    a("s_lshl_b32 s76, s71, 5", "s_lshl_b32 s78, s72, 4", "s_add_u32 s76, s76, s78", "s_lshl_b32 s76, s76, 2",
      f"s_add_u32 s76, s76, {L_CS}", "v_lshl_add_u32 v107, v3, 5, s76")
    a("s_lshl_b32 s76, s3, 11", f"s_add_u32 s76, s76, {L_EX}", "v_lshl_add_u32 v108, v1, 4, s76",
      "s_xor_b32 s76, s76, 0x2000", "v_lshl_add_u32 v109, v1, 4, s76")
    a("s_lshl_b32 s79, s4, 1", "s_add_u32 s79, s79, s70", "s_lshl_b32 s79, s79, 5",
      "s_lshl_b32 s78, s5, 2", "s_add_u32 s79, s79, s78", "s_lshl_b32 s78, s71, 1", "s_add_u32 s79, s79, s78",
      "s_add_u32 s79, s79, s72", "s_lshl_b32 s79, s79, 10", "v_lshlrev_b32 v110, 4, v1")
    stamp(a, 3)
    def issue(grp):
        b = 32 + 32 * (grp & 1)
        for j in range(4):
            a(f"ds_read_b128 {vr(b+4*j,4)}, v{8+j} offset:{grp*8192}")
            a(f"ds_read_b64_tr_b16 {vr(b+16+4*j,2)}, v{12+j} offset:{grp*8192}")
            a(f"ds_read_b64_tr_b16 {vr(b+16+4*j+2,2)}, v{12+j} offset:{grp*8192+512}")
    def compute(grp):
        b = 32 + 32 * (grp & 1)
        for j in range(4):
            mfma32(a, 16, b + 16 + 4 * j, b + 4 * j, None if (grp == 0 and j == 0) else 16)
            if j % 2 == 0:
                for e in range(4):
                    a(f"v_dot2c_f32_bf16 v96, s77, v{b+4*j+e}", f"v_dot2c_f32_bf16 v97, v{b+4*j+e}, v{b+4*j+e}")
            if j < 2:
                for e in range(4):
                    a(f"v_dot2c_f32_bf16 v98, s77, v{b+16+4*j+e}")
    a("s_waitcnt vmcnt(8)")
    stamp(a, 4)
    a("s_barrier")
    stamp(a, 5)
    issue(0); issue(1)
    a("s_waitcnt lgkmcnt(12)"); compute(0)
    a("s_waitcnt vmcnt(0) lgkmcnt(0)", "s_barrier")
    stamp(a, 10)
    issue(2)
    if K1T:
        a("s_cmp_lt_u32 s3, 5", "s_cbranch_scc1 L_k1_t2")
        a("s_mul_i32 s13, s2, 5504", "s_mov_b32 exec_hi, 0x7ff")
        srd(a, 56, 28, 512*2752)
        a("s_cmp_eq_u32 s3, 5", "s_cbranch_scc1 L_k1_t")
        srd(a, 56, 32, 1376*1024)
        a("s_cmp_eq_u32 s3, 6", "s_cbranch_scc1 L_k1_t")
        srd(a, 56, 24, 512*1024)
        a("s_lshl_b32 s13, s2, 11", "s_mov_b64 exec, 0xffff")
        a("L_k1_t:")
        a("buffer_load_dword v111, v100, s[56:59], s13 offen", "s_mov_b64 exec, -1")
        a("L_k1_t2:")
    compute(1)
    issue(3)
    a("s_waitcnt lgkmcnt(12)"); compute(2)
    a("s_waitcnt lgkmcnt(0)"); compute(3)
    a("s_nop 2", "v_mov_b32 v40, v96", "v_mov_b32 v41, v97", "v_mov_b32 v42, v98", "s_nop 1",
      "v_permlane32_swap_b32 v96, v40", "v_permlane32_swap_b32 v97, v41", "v_permlane32_swap_b32 v98, v42", "s_nop 1",
      "v_add_f32 v96, v96, v40", "v_add_f32 v97, v97, v41", "v_add_f32 v98, v98, v42", "s_nop 1")
    a("ds_write_b64 v105, v[96:97]", "ds_write_b32 v106, v98")
    a("ds_write_b128 v108, v[24:27]", "ds_write_b128 v108, v[28:31] offset:1024")
    stamp(a, 8)
    a("s_waitcnt lgkmcnt(0)", "s_barrier")
    stamp(a, 9)
    for s in range(4):
        a(f"ds_read_b64 {vr(40+2*s,2)}, v104 offset:{512*s}")
    a("ds_read_b128 v[32:35], v109", "ds_read_b128 v[36:39], v109 offset:1024")
    for s in range(4):
        a(f"ds_read_b128 {vr(48+8*s,4)}, v107 offset:{256*s}", f"ds_read_b128 {vr(52+8*s,4)}, v107 offset:{256*s+16}")
    a("s_waitcnt lgkmcnt(10)")
    a("v_add_f32 v40, v40, v42", "v_add_f32 v41, v41, v43", "v_add_f32 v44, v44, v46", "v_add_f32 v45, v45, v47",
      "v_add_f32 v40, v40, v44", "v_add_f32 v41, v41, v45")
    rstd(a, 40, 41)
    a("s_waitcnt lgkmcnt(8)")
    for i in range(8):
        a(f"v_add_f32 v{16+i}, v{16+i}, v{32+i}")
    a(f"v_mul_f32 v41, {f32(QSCALE)}, v41")
    a("s_waitcnt lgkmcnt(4)")
    for i in range(8):
        a(f"v_add_f32 v{48+i}, v{48+i}, v{56+i}")
    a("s_waitcnt lgkmcnt(0)")
    for i in range(8):
        a(f"v_add_f32 v{64+i}, v{64+i}, v{72+i}")
    for i in range(8):
        a(f"v_add_f32 v{48+i}, v{48+i}, v{64+i}")
    for i in range(8):
        a(f"v_fma_f32 v{16+i}, -v40, v{48+i}, v{16+i}")
    for i in range(8):
        a(f"v_mul_f32 v{16+i}, v41, v{16+i}")
    for i in range(4):
        a(f"v_cvt_pk_bf16_f32 v{24+i}, v{16+2*i}, v{17+2*i}")
    assert QF == 0
    a("buffer_store_dwordx4 v[24:27], v110, s[52:55], s79 offen")
    a("s_cmp_eq_u32 s3, 3", "s_cbranch_scc0 L_k1_nofl", "s_cmp_eq_u32 s5, 0", "s_cbranch_scc0 L_k1_nofl")
    a("s_lshl_b32 s11, s4, 10", f"s_add_u32 s11, s11, {FLAGS:#x}", "v_mov_b32 v100, 0", "v_mov_b32 v101, 0", "v_mov_b32 v102, 0", "v_mov_b32 v103, 0",
      "buffer_store_dwordx4 v[100:103], v110, s[52:55], s11 offen")
    a("L_k1_nofl:")
    if STAMP:
        a("s_waitcnt vmcnt(0)")
        stamp(a, 62); stamp(a, 63, True)
        stamp_flush(a, 0, 8)
    a("s_endpgm")

    a("L_k1_kv:")
    a("s_and_b32 s70, s5, 1", "s_lshr_b32 s71, s5, 1")
    a("s_cmp_eq_u32 s70, 0", "s_cbranch_scc0 L_k1_kv_v")
    srd(a, 56, 20, 512*32)
    a("s_branch L_k1_kv_go")
    a("L_k1_kv_v:")
    srd(a, 56, 22, 512*32)
    a("L_k1_kv_go:")
    a("v_and_b32 v2, 15, v1", "v_lshrrev_b32 v3, 4, v1", "v_lshlrev_b32 v4, 4, v1")
    for i in range(16):
        a(f"s_mov_b32 m0, {L_EX + (i>>2)*4096}", f"s_mov_b32 s60, {(i>>2)*4096}",
          f"buffer_load_dwordx4 v4, s[56:59], s60 offen offset:{(i&3)*1024} lds")
    a("s_lshl_b32 s72, s71, 4", "v_add_u32 v5, s72, v2",
      "v_bfe_u32 v6, v5, 1, 3", "v_xor_b32 v6, v6, v3", "v_lshlrev_b32 v7, 7, v5", "v_lshl_or_b32 v8, v6, 4, v7",
      "v_xor_b32 v9, 64, v8", "v_mov_b32 v10, 0", "s_mov_b32 s77, 0x3f803f80",
      "v_lshlrev_b32 v4, 3, v2", "v_lshl_or_b32 v4, v3, 8, v4", f"v_add_u32 v4, {L_EX}, v4")
    a("s_barrier")
    a("s_waitcnt vmcnt(0)")
    for kt in range(16):
        for e in range(2):
            a(f"ds_read_b64_tr_b16 {vr(32+4*kt+2*e,2)}, v4 offset:{kt*1024+e*128}")
    a("s_waitcnt lgkmcnt(0)", "s_barrier")
    for kt in range(16):
        a(f"ds_read_b128 {vr(96+4*kt,4)}, v{8+(kt&1)} offset:{(kt>>1)*8192}")
    for kt in range(16):
        for e in range(4):
            a(f"v_dot2c_f32_bf16 v10, s77, v{32+4*kt+e}")
    a("s_waitcnt lgkmcnt(0)")
    a("s_cmp_eq_u32 s70, 0", "s_cbranch_scc0 L_k1_kv_v2")
    for which in range(2):
        if which == 1:
            a("L_k1_kv_v2:")
        for kt in range(16):
            if which == 0:
                mfma16(a, 16 + 4 * (kt & 1), 32+4*kt, 96+4*kt, None if kt < 2 else 16 + 4 * (kt & 1))
            else:
                mfma16(a, 16 + 4 * (kt & 1), 96+4*kt, 32+4*kt, None if kt < 2 else 16 + 4 * (kt & 1))
        halves_sum(a, 10, 11)
        a("v_mov_b32 v11, v10", "s_nop 1", "v_permlane16_swap_b32 v10, v11", "s_nop 1", "v_add_f32 v10, v10, v11")
        for i in range(4):
            a(f"v_add_f32 v{16+i}, v{16+i}, v{20+i}")
        if which == 0:
            a("v_lshlrev_b32 v11, 2, v2", f"v_add_u32 v11, {L_KV}, v11", "ds_write_b32 v11, v10",
              "v_lshlrev_b32 v12, 3, v5", f"v_add_u32 v12, {L_ST}, v12",
              "v_lshlrev_b32 v13, 4, v3", f"v_add_u32 v13, {L_KV}, v13")
            a("s_lshl_b32 s73, s4, 1", "s_lshr_b32 s74, s71, 1", "s_add_u32 s73, s73, s74", "s_lshl_b32 s73, s73, 11",
              "s_and_b32 s74, s71, 1", "s_lshl_b32 s74, s74, 8", "s_add_u32 s73, s73, s74", f"s_add_u32 s73, s73, {KVF:#x}",
              "v_lshrrev_b32 v14, 1, v3", "v_lshlrev_b32 v14, 9, v14", "v_lshl_or_b32 v14, v2, 4, v14",
              "v_and_b32 v15, 1, v3", "v_lshl_or_b32 v14, v15, 3, v14")
            a("s_waitcnt lgkmcnt(0)", "s_barrier")
            for s in range(4):
                a(f"ds_read_b64 {vr(40+2*s,2)}, v12 offset:{512*s}")
            a("ds_read_b128 v[48:51], v13", "s_waitcnt lgkmcnt(0)")
            a("v_add_f32 v40, v40, v42", "v_add_f32 v41, v41, v43", "v_add_f32 v44, v44, v46", "v_add_f32 v45, v45, v47",
              "v_add_f32 v40, v40, v44", "v_add_f32 v41, v41, v45")
            rstd(a, 40, 41)
            for i in range(4):
                a(f"v_fma_f32 v{16+i}, -v40, v{48+i}, v{16+i}")
            for i in range(4):
                a(f"v_mul_f32 v{16+i}, v41, v{16+i}")
            a("v_cvt_pk_bf16_f32 v20, v16, v17", "v_cvt_pk_bf16_f32 v21, v18, v19")
            a("buffer_store_dwordx2 v[20:21], v14, s[52:55], s73 offen")
            a("v_mov_b32 v22, 0", "s_nop 0", "v_dot2c_f32_bf16 v22, v20, v20", "v_dot2c_f32_bf16 v22, v21, v21", "s_nop 2")
            halves_sum(a, 22, 23)
            a("v_mov_b32 v23, v22", "s_nop 1", "v_permlane16_swap_b32 v22, v23", "s_nop 1", "v_add_f32 v22, v22, v23")
            for sh in (8, 4, 2, 1):
                a("s_nop 1", f"v_max_f32_dpp v22, v22, v22 row_ror:{sh} row_mask:0xf bank_mask:0xf")
            a("s_lshl_b32 s73, s4, 2", "s_add_u32 s73, s73, s71", "s_lshl_b32 s73, s73, 2", f"s_add_u32 s73, s73, {KMAX:#x}",
              "v_mov_b32 v23, 0", "s_mov_b64 exec, 1",
              "buffer_store_dword v22, v23, s[52:55], s73 offen")
            a("s_endpgm")
        else:
            a("s_lshl_b32 s72, s71, 7", f"s_add_u32 s72, s72, {L_ST}", "v_lshl_add_u32 v12, v3, 5, s72")
            sigma_lane(a, 14, 2, 15)
            a("s_lshl_b32 s73, s4, 1", "s_lshr_b32 s74, s71, 1", "s_add_u32 s73, s73, s74", "s_lshl_b32 s73, s73, 11",
              "s_and_b32 s74, s71, 1", "s_xor_b32 s74, s74, 1", "s_lshl_b32 s74, s74, 8", "s_add_u32 s73, s73, s74",
              f"s_add_u32 s73, s73, {KVF+1024:#x}",
              "v_lshlrev_b32 v14, 4, v14", "v_and_b32 v15, 1, v3", "v_lshl_or_b32 v14, v15, 9, v14",
              "v_lshrrev_b32 v15, 1, v3", "v_lshl_or_b32 v14, v15, 3, v14")
            a("s_barrier")
            for s in range(4):
                a(f"ds_read_b128 {vr(40+8*s,4)}, v12 offset:{512*s}", f"ds_read_b128 {vr(44+8*s,4)}, v12 offset:{512*s+16}")
            a("s_waitcnt lgkmcnt(0)")
            for i in range(8):
                a(f"v_add_f32 v{40+i}, v{40+i}, v{48+i}", f"v_add_f32 v{56+i}, v{56+i}, v{64+i}")
            for i in range(8):
                a(f"v_add_f32 v{40+i}, v{40+i}, v{56+i}")
            for i in range(4):
                rstd(a, 40 + 2 * i, 41 + 2 * i)
            for i in range(4):
                a(f"v_fma_f32 v{16+i}, -v{40+2*i}, v10, v{16+i}")
            for i in range(4):
                a(f"v_mul_f32 v{16+i}, v{41+2*i}, v{16+i}")
            a("v_cvt_pk_bf16_f32 v20, v16, v17", "v_cvt_pk_bf16_f32 v21, v18, v19")
            a("buffer_store_dwordx2 v[20:21], v14, s[52:55], s73 offen")
    a(f"{Lend}:", "s_endpgm")
    return a.text() + kernel_desc(name, 160), f"; @launch kernel={name} grid=(256,1,1) block=(576,1,1) lds={K1_LDS}"
```

```python
from lib import *
from k1 import load_ptrs
from k1b import wg_decode2, rstd
from k2 import SM_THR
from k4 import GK1, GK2
import os

LDS = 163840
L_STG = 131072
HST = 0x238000
STF = 0x440000

VQ, VK, VV, VP, VC, VO, VS = 4, 12, 20, 36, 44, 60, 92
VW = 128
V_LDSKV = 2
V_L16 = 3
V_TR = 124
V_WG = 125
V_W2G = 126
V_X = 127
SPIN = 1 << 20
TOUCH = os.environ.get("TOUCH", "1") == "1"

class VM:
    def __init__(self, a): self.a = a; self.ops = []
    def issue(self, tag, *lines):
        self.a(*lines); self.ops.append(tag)
    def wait(self, tag, extra=""):
        idx = max(i for i, t in enumerate(self.ops) if t == tag)
        n = len(self.ops) - 1 - idx
        assert n < 64
        self.a(f"s_waitcnt vmcnt({n}){extra}")
    def reset(self): self.ops = []

class LG(VM):
    def wait(self, tag, extra=""):
        idx = max(i for i, t in enumerate(self.ops) if t == tag)
        n = min(15, len(self.ops) - 1 - idx)
        self.a(f"s_waitcnt lgkmcnt({n})")

def half_body(a, ab, par, pre, mid, slow):
    S = VS + 16 * ab; So = VS + 16 * (ab ^ 1); O = VO + 16 * ab; Oo = VO + 16 * (ab ^ 1)
    def e(i): a(f"v_exp_f32 v{S+i}, v{S+i}")
    def p(i): a(f"v_cvt_pk_bf16_f32 v{VP+i//2}, v{S+i}, v{S+i+1}")
    kpar = par if ab == 0 else par ^ 1
    mfma32(a, So, VK + 4 * kpar, VQ + 4 * (ab ^ 1), None if slow else VC)
    pre()
    if slow:
        for i in range(16):
            a(f"v_sub_f32 v{S+i}, v{S+i}, v{VC+ab}")
    e(0); e(1); e(2); e(3); p(0)
    vpar = par ^ 1 if ab == 0 else par
    mfma32(a, Oo, VV + 8 * vpar + 4, VP + 4, Oo)
    mid()
    e(4); e(5); p(2); e(6); e(7); p(4); e(8); e(9); p(6); e(10); e(11)
    mfma32(a, O, VV + 8 * par, VP, O)
    p(8); e(12); e(13); p(10); e(14); e(15); p(12); p(14)

def kv_dma(vm, c, hf):
    off = c * 8192 + hf * 65536
    vm.issue(f"kv{c}", f"s_add_u32 m0, s10, {off}", f"s_add_u32 s13, s11, {off}",
             f"buffer_load_dwordx4 v{V_L16}, s[52:55], s13 offen lds")

def tr_read(a, dst, areg, off):
    a(f"ds_read_b64_tr_b16 {vr(dst,2)}, v{areg} offset:{off}", f"ds_read_b64_tr_b16 {vr(dst+2,2)}, v{areg} offset:{off+256}")

WO_T0 = 20
def w1_schedule():
    reads = {t: [] for t in range(32)}
    issues = {t: [] for t in range(32)}
    issues[0] = [0, 1]; issues[1] = [2, 3]
    f = 0
    for t in range(3, 32):
        n = 2 if t in (9, 17, 25) else 1
        for _ in range(n):
            if f < 32:
                reads[t].append(f)
                if f + 4 < 32: issues[t].append(f + 4)
                f += 1
    assert f == 32
    return reads, issues

PRIO = os.environ.get("PRIO", "1") == "1"
BARS = {3: "kv3", 15: "kv7"} if os.environ.get("BARS", "2") == "2" else {3: "kv1", 7: "kv3", 15: "kv7"}
def prio_schedule():
    P = {}
    ends = sorted(BARS) + [32]
    start = 0
    for e in ends:
        n = 2 * (e - start)
        l0 = 1; l1 = max(1, round(n * 0.06)); l2 = max(1, round(n * 0.21))
        P[2 * start] = 3
        P[2 * e - l0 - l1 - l2] = 2
        P[2 * e - l0 - l1] = 1
        P[2 * e - l0] = 0
        start = e
    return P

def attention(a, vm0, slow):
    vm = VM(a); vm.ops = list(vm0.ops)
    reads, issues = w1_schedule()
    vm.wait("kv0"); a("s_barrier")
    stamp(a, 4); stamp(a, 59, True)
    PS = prio_schedule() if PRIO else {0: 1}
    a(f"ds_read_b128 {vr(VK,4)}, v{V_LDSKV}")
    a("s_mov_b64 exec, s[60:61]",
      f"ds_read_b128 {vr(VV,4)}, v{V_LDSKV} offset:1024", f"ds_read_b128 {vr(VV+4,4)}, v{V_LDSKV} offset:768",
      "s_mov_b64 exec, -1")
    a("s_waitcnt lgkmcnt(0)")
    mfma32(a, VS, VK, VQ, None if slow else VC)
    a("s_nop 7", "s_nop 2")
    def w1_issue(f):
        vm.issue(f"w1_{f}", f"s_add_u32 m0, s66, {(f&3)*1024}", f"s_add_u32 s13, s67, {f*16*2752}",
                 f"buffer_load_dwordx4 v{V_WG}, s[44:47], s13 offen lds")
    for t in range(32):
        par = t & 1
        if t in BARS: vm.wait(BARS[t]); a("s_barrier")
        if t in (4, 8, 12, 16, 20, 24, 28): stamp(a, 4 + t // 4)
        base = (t + 1) * 2048
        def preA():
            if t < 31:
                a(f"ds_read_b128 {vr(VK+4*(par^1),4)}, v{V_LDSKV} offset:{base}")
            if reads[t]:
                vm.wait(f"w1_{reads[t][-1]}")
                for f in reads[t]:
                    tr_read(a, VW + 4 * f, V_TR, (f & 3) * 1024)
        def midA():
            if t < 31:
                a("s_mov_b64 exec, s[60:61]",
                  f"ds_read_b128 {vr(VV+8*(par^1),4)}, v{V_LDSKV} offset:{base+1024}",
                  f"ds_read_b128 {vr(VV+8*(par^1)+4,4)}, v{V_LDSKV} offset:{base+768}",
                  "s_mov_b64 exec, -1")
            if len(BARS) == 3:
                if t < 12:
                    kv_dma(vm, 2 + t // 2, t & 1)
            else:
                if t < 2:
                    kv_dma(vm, 2 + t, 0); kv_dma(vm, 2 + t, 1)
                elif 3 <= t < 11:
                    kv_dma(vm, 4 + (t - 3) // 2, (t - 3) & 1)
            if t == 16:
                a("s_lshl_b32 s13, s5, 4", "s_add_u32 s13, s13, s68", f"v_mov_b32 v{V_X}, s42")
                vm.issue("xs", "s_mov_b64 exec, 1", f"buffer_store_dword v{V_X}, v{V_L16}, s[52:55], s13 offen sc1", "s_mov_b64 exec, -1")
            if t in (17, 18, 19):
                i = t - 17
                vm.issue("pf", f"s_add_u32 s13, s62, {i}", "s_and_b32 s14, s13, 7", "s_lshr_b32 s13, s13, 3", "s_lshl_b32 s13, s13, 14",
                         "s_lshl_b32 s14, s14, 7", "s_add_u32 s13, s13, s14",
                         f"buffer_load_dword v{V_X}, v{V_W2G}, s[56:59], s13 offen")
            TT = (2, 4, 6, 8, 10, 11)
            if TOUCH and t in TT:
                i = TT.index(t)
                reg = [100, 101, 101, 64, 64, 95][i]
                off = [0, 0, 1024, 0, 1024, 0][i]
                vm.issue("pf", f"buffer_load_dword v{V_X}, v{V_L16}, s[52:55], s{reg} offen offset:{off} sc1")
        def preB():
            if issues[t]:
                w1_issue(issues[t][0])
            if t == 30:
                vm.issue("xcc", f"buffer_load_dword v{V_X}, v{V_L16}, s[52:55], s68 offen sc1")
        def midB():
            if len(issues[t]) > 1:
                w1_issue(issues[t][1])
            i = t - WO_T0
            if 0 <= i < 8:
                q = i >> 1
                ldsoff = (q >> 1) * 65536 + (i & 1) * 16384 + (q & 1) * 8192
                vm.issue("wo", f"s_add_u32 m0, s10, {ldsoff}", f"s_add_u32 s13, s69, {q*8*16384 + (i&1)*64}",
                         f"buffer_load_dwordx4 v{V_W2G}, s[48:51], s13 offen lds")
        if 2 * t in PS: a(f"s_setprio {PS[2*t]}")
        half_body(a, 0, par, preA, midA, slow)
        a("s_waitcnt lgkmcnt(0)")
        if 2 * t + 1 in PS: a(f"s_setprio {PS[2*t+1]}")
        half_body(a, 1, par, preB, midB, slow)
    a("s_nop 1")

def real_addr(a):
    a(f"v_lshrrev_b32 v{V_X}, 5, v1", f"v_lshlrev_b32 v{V_TR}, 9, v{V_X}",
      f"v_bfe_u32 v{V_X}, v1, 2, 2", f"v_lshl_or_b32 v{V_TR}, v{V_X}, 6, v{V_TR}",
      f"v_bfe_u32 v{V_X}, v1, 4, 1", f"v_lshl_or_b32 v{V_TR}, v{V_X}, 5, v{V_TR}",
      f"v_and_b32 v{V_X}, 1, v1", f"v_lshl_or_b32 v{V_TR}, v{V_X}, 4, v{V_TR}",
      f"v_bfe_u32 v{V_X}, v1, 1, 1", f"v_lshl_or_b32 v{V_TR}, v{V_X}, 3, v{V_TR}",
      f"v_add_u32 v{V_TR}, s66, v{V_TR}",
      f"v_lshrrev_b32 v{V_X}, 2, v1", f"v_lshlrev_b32 v{V_W2G}, 10, v{V_X}",
      f"v_and_b32 v{V_X}, 3, v1", f"v_lshl_or_b32 v{V_W2G}, v{V_X}, 4, v{V_W2G}",
      f"v_lshlrev_b32 v{V_X}, 2, v1")

def handoff(a, tag, word, shadow1=None, shadow2=None):
    a("s_lshl_b32 s13, s5, 5", "s_lshl_b32 s14, s3, 2", "s_add_u32 s13, s13, s14", "s_add_u32 s13, s13, s68",
      "v_mov_b32 v4, 1", "v_lshlrev_b32 v5, 2, v1")
    if shadow1: shadow1()
    a("s_waitcnt vmcnt(0) lgkmcnt(0)", "s_mov_b64 exec, 1")
    a("s_cmp_eq_u32 s42, 0", f"s_cbranch_scc1 L_{tag}_fast")
    a("buffer_wbl2 sc1", "s_waitcnt vmcnt(0)", f"buffer_store_dword v4, v5, s[52:55], s13 offen offset:{word*256} sc1", f"s_branch L_{tag}_set")
    a(f"L_{tag}_fast:", f"buffer_store_dword v4, v5, s[52:55], s13 offen offset:{word*256}")
    a(f"L_{tag}_set:", "s_mov_b64 exec, -1", "s_mov_b32 s13, 0")
    if shadow2: shadow2()
    a(f"L_{tag}_poll:", f"buffer_load_dword v4, v5, s[52:55], s68 offen offset:{word*256} sc1",
      "s_add_u32 s13, s13, 1", f"s_cmp_gt_u32 s13, {SPIN}", f"s_cbranch_scc1 L_{tag}_out",
      "s_waitcnt vmcnt(0)", "v_cmp_eq_u32 vcc, 0, v4", f"s_cbranch_vccnz L_{tag}_poll")
    a(f"L_{tag}_out:")
    a("s_cmp_eq_u32 s42, 0", f"s_cbranch_scc1 L_{tag}_go", "buffer_inv sc1", "s_waitcnt vmcnt(0)", f"L_{tag}_go:")

def gelu_ops(X, T, n, c, st, pk=False):
    K2, K1, IR = st, st + 2, st + 4
    L = []
    if pk:
        P = lambda r: f"v[{r}:{r+1}]"
        if c is not None:
            L += [f"v_pk_add_f32 {P(X+i)}, {P(X+i)}, {P(c+i)}" for i in range(0, n, 2)]
        L += [f"v_pk_mul_f32 {P(T+i)}, {P(X+i)}, {P(X+i)}" for i in range(0, n, 2)]
        L += [f"v_pk_fma_f32 {P(T+i)}, {P(T+i)}, {P(K2)}, {P(K1)} op_sel_hi:[1,0,0]" for i in range(0, n, 2)]
        L += [f"v_pk_mul_f32 {P(T+i)}, {P(T+i)}, {P(X+i)}" for i in range(0, n, 2)]
        L += [f"v_exp_f32 v{T+i}, v{T+i}" for i in range(n)]
        L += [f"v_pk_fma_f32 {P(T+i)}, {P(T+i)}, {P(IR)}, {P(IR)} op_sel_hi:[1,0,0]" for i in range(0, n, 2)]
        L += [f"v_rcp_f32 v{T+i}, v{T+i}" for i in range(n)]
        L += [f"v_pk_mul_f32 {P(X+i)}, {P(X+i)}, {P(T+i)}" for i in range(0, n, 2)]
    else:
        if c is not None:
            L += [f"v_add_f32 v{X+i}, v{X+i}, v{c+i}" for i in range(n)]
        L += [f"v_mul_f32 v{T+i}, v{X+i}, v{X+i}" for i in range(n)]
        L += [f"v_fma_f32 v{T+i}, v{T+i}, v{K2}, v{K1}" for i in range(n)]
        L += [f"v_mul_f32 v{T+i}, v{T+i}, v{X+i}" for i in range(n)]
        L += [f"v_exp_f32 v{T+i}, v{T+i}" for i in range(n)]
        L += [f"v_fma_f32 v{T+i}, v{T+i}, v{IR}, v{IR}" for i in range(n)]
        L += [f"v_rcp_f32 v{T+i}, v{T+i}" for i in range(n)]
        L += [f"v_mul_f32 v{X+i}, v{X+i}, v{T+i}" for i in range(n)]
    L += [f"v_cvt_pk_bf16_f32 v{T+i}, v{X+2*i}, v{X+2*i+1}" for i in range(n // 2)]
    return L

def slot_addr(i):
    sl = i % 10
    return (V_TR, sl * 8192) if sl < 8 else (V_X, (sl - 8) * 8192)
NA = int(os.environ.get("NA", "4"))
NL = int(os.environ.get("NL", "4"))

def stream(a, vm, lg, steps, window, fillers, sync_stamp=None, on_sync=None):
    synced = set()
    pend = []
    nxt = 0
    def issue_upto(lim):
        nonlocal nxt
        while nxt < min(len(steps), lim):
            st = steps[nxt]
            if st["need"] is not None and st["need"] not in synced:
                vm.wait(st["need"]); a("s_barrier"); synced.add(st["need"])
                if sync_stamp is not None: stamp(a, sync_stamp + len(synced) - 1)
                pend.append(len(synced) - 1)
            for k, ins in enumerate(st["reads"]):
                lg.issue(f"{st['id']}_{k}", ins)
            nxt += 1
            if pend and on_sync is not None and (nxt >= min(len(steps), lim) or (steps[nxt]["need"] not in synced and steps[nxt]["need"] is not None)):
                while pend: on_sync(pend.pop(0))
    for n, st in enumerate(steps):
        issue_upto(n + window)
        if "pre" in st: st["pre"]()
        for k, fn in enumerate(st["mf"]):
            lg.wait(f"{st['id']}_{k}")
            fn()
        issue_upto(n + window + 1)
        fillers(n)

def gen_k2f(name):
    a = A()
    kernel_begin(a, name)
    Lend = "L_k2_end"
    a("s_cmp_ge_u32 s2, 256", f"s_cbranch_scc1 {Lend}")
    stamp(a, 0, True); stamp(a, 1)
    load_ptrs(a)
    wg_decode2(a)
    a(f"v_lshlrev_b32 v{V_L16}, 4, v1", "v_lshlrev_b32 v36, 3, v1")
    a("s_lshr_b32 s6, s3, 2", "s_lshl_b32 s7, s4, 1", "s_add_u32 s7, s7, s6", "s_lshl_b32 s7, s7, 5",
      "s_lshl_b32 s8, s5, 2", "s_add_u32 s7, s7, s8", "s_and_b32 s8, s3, 3", "s_add_u32 s7, s7, s8",
      "s_lshl_b32 s7, s7, 10", "s_xor_b32 s8, s7, 0x8000")
    a(f"s_mov_b32 s9, {KMAX:#x}", "s_lshl_b32 s10, s3, 10", f"s_add_u32 s11, s10, {KVF:#x}")
    a("s_lshl_b32 s12, s6, 16", f"v_add_u32 v{V_LDSKV}, s12, v{V_L16}")
    a("s_waitcnt lgkmcnt(0)")
    srd(a, 52, 40, WS_BYTES)
    vm = VM(a)
    vm.issue("q", f"buffer_load_dwordx4 {vr(VQ,4)}, v{V_L16}, s[52:55], s7 offen")
    vm.issue("q", f"buffer_load_dwordx4 {vr(VQ+4,4)}, v{V_L16}, s[52:55], s8 offen")
    vm.issue("q", "buffer_load_dwordx2 v[38:39], v36, s[52:55], s9 offen")
    kv_dma(vm, 0, 0); kv_dma(vm, 0, 1)
    a("s_lshl_b32 s68, s4, 10", f"s_add_u32 s68, s68, {FLAGS:#x}")
    a("s_getreg_b32 s42, hwreg(HW_REG_XCC_ID)", "s_and_b32 s42, s42, 15", "s_add_u32 s42, s42, 1")
    srd(a, 44, 28, 512*2752)
    srd(a, 48, 24, 512*1024)
    srd(a, 56, 32, 1376*1024)
    a("s_lshr_b32 s13, s3, 1", "s_add_u32 s13, s13, 2", "s_min_u32 s43, s13, s3",
      "s_mul_i32 s14, s5, 6", "s_mul_i32 s15, s5, 5", "s_add_u32 s15, s15, 3", "s_min_u32 s14, s14, s15",
      "s_add_u32 s65, s14, s43", "s_lshl_b32 s67, s65, 6",
      "s_lshl_b32 s66, s3, 12", f"s_add_u32 s66, s66, {L_STG}")
    a("s_lshl_b32 s69, s3, 14", "s_lshl_b32 s13, s5, 7", "s_add_u32 s69, s69, s13")
    a(f"v_lshrrev_b32 v{V_WG}, 2, v1", "s_movk_i32 s13, 2752", f"v_mul_u32_u24 v{V_WG}, s13, v{V_WG}",
      "v_and_b32 v40, 3, v1", f"v_lshl_add_u32 v{V_WG}, v40, 4, v{V_WG}")
    real_addr(a)
    a("s_lshr_b32 s13, s2, 3", "s_lshl_b32 s13, s13, 3", "s_add_u32 s13, s13, s3", "s_mul_i32 s62, s13, 3")
    a("s_and_b32 s70, s3, 1", "s_bfe_u32 s71, s3, 0x10001", "s_lshr_b32 s72, s3, 2",
      "s_lshl_b32 s73, s5, 1", "s_add_u32 s73, s73, s70", "s_lshl_b32 s73, s73, 1", "s_add_u32 s73, s73, s72",
      "s_lshl_b32 s75, s4, 1", "s_add_u32 s75, s75, s71",
      "s_lshl_b32 s74, s75, 15", "s_lshl_b32 s13, s73, 5", "s_add_u32 s74, s74, s13")
    a(f"s_add_u32 s63, s7, {OF:#x}")
    a("s_lshl_b32 s100, s75, 5", "s_add_u32 s100, s100, s73", "s_lshl_b32 s100, s100, 10", f"s_add_u32 s100, s100, {HF:#x}")
    a("s_and_b32 s99, s70, s72",
      "s_lshl_b32 s101, s4, 1", "s_add_u32 s101, s101, s99", "s_mul_i32 s101, s101, 86", "s_lshl_b32 s13, s65, 1", "s_add_u32 s101, s101, s13",
      "s_lshl_b32 s101, s101, 10", f"s_add_u32 s101, s101, {FF:#x}")
    a("s_cmp_lt_u32 s3, 4", f"s_cselect_b32 s64, {86*1024}, 0", "s_add_u32 s64, s64, s101",
      "s_lshl_b32 s95, s4, 14", "s_lshl_b32 s13, s5, 11", "s_add_u32 s95, s95, s13", "s_lshl_b32 s13, s70, 10", "s_add_u32 s95, s95, s13",
      f"s_add_u32 s95, s95, {STF:#x}")
    a("s_mov_b32 s60, 0xffff0000", "s_mov_b32 s61, 0xffff0000")
    a("v_and_b32 v40, 27, v1", "v_cmp_eq_u32 vcc, 0, v40", "v_mov_b32 v41, 0x3f803f80", "s_nop 0", "v_cndmask_b32 v40, 0, v41, vcc")
    for i in range(16):
        a(f"v_mov_b32 v{VV+i}, v40")
    for i in range(32):
        a(f"v_mov_b32 v{VO+i}, 0")
    a("v_mov_b32 v40, 0", "v_mov_b32 v42, 0")
    kv_dma(vm, 1, 0); kv_dma(vm, 1, 1)
    stamp(a, 2)
    vm.wait("q")
    stamp(a, 3)
    for i in range(4):
        a(f"v_dot2c_f32_bf16 v40, v{VQ+i}, v{VQ+i}", f"v_dot2c_f32_bf16 v42, v{VQ+4+i}, v{VQ+4+i}")
    a("v_max_f32 v38, v38, v39")
    for sh in (8, 4, 2, 1):
        a("s_nop 1", f"v_max_f32_dpp v38, v38, v38 row_ror:{sh} row_mask:0xf bank_mask:0xf")
    a("v_mov_b32 v39, v38", "v_mov_b32 v41, v40", "v_mov_b32 v43, v42", "s_nop 1",
      "v_permlane32_swap_b32 v38, v39", "v_permlane32_swap_b32 v40, v41", "v_permlane32_swap_b32 v42, v43", "s_nop 1",
      "v_max_f32 v38, v38, v39", "v_add_f32 v40, v40, v41", "v_add_f32 v42, v42, v43",
      "v_mov_b32 v39, v38", "v_max_f32 v40, v40, v42", "s_nop 0", "v_permlane16_swap_b32 v38, v39", "s_nop 1",
      "v_max_f32 v38, v38, v39", "v_mul_f32 v40, v40, v38", "v_sqrt_f32 v37, v40", "s_nop 0")
    a(f"v_cmp_nge_f32 vcc, {f32(SM_THR)}, v37")
    for i in range(4):
        a(f"v_mov_b32 v{VP+4+i}, 0")
    a("s_cmp_eq_u64 vcc, 0", "s_cbranch_scc0 L_k2_slow")
    for i in range(16):
        a(f"v_sub_f32 v{VC+i}, 0, v37")
    vm_pre = vm
    attention(a, vm_pre, False)
    a("L_k2_done:")
    mfma32(a, VO + 16, VV + 8 + 4, VP + 4, VO + 16)
    a("s_setprio 0")
    stamp(a, 12)
    a(f"v_add_u32 v4, s66, v{V_L16}", "s_xor_b32 s13, s66, 0x4000", f"v_add_u32 v5, s13, v{V_L16}",
      "v_lshlrev_b32 v6, 2, v1", "v_add_u32 v7, s13, v6", "v_add_u32 v6, s66, v6")
    a(f"v_subrev_u32 v9, s66, v{V_TR}", "s_lshl_b32 s13, s72, 5", "v_xor_b32 v9, s13, v9",
      "s_lshl_b32 s13, s72, 16", "s_lshl_b32 s14, s70, 14", "s_add_u32 s13, s13, s14", "v_add_u32 v9, s13, v9")
    a(f"ds_write_b128 v4, {vr(VO+24,4)}", f"ds_write_b128 v4, {vr(VO+28,4)} offset:1024", f"ds_write_b32 v6, v{VO+16} offset:2048")
    a("v_and_b32 v10, 31, v1", "v_lshrrev_b32 v11, 5, v1", "v_lshlrev_b32 v11, 4, v11", "v_lshl_or_b32 v10, v10, 10, v11")
    srd(a, 76, 16, 2048*1024)
    a("s_waitcnt vmcnt(0)")
    a("s_mov_b64 exec, 0xff", "s_mov_b32 s13, 0")
    a("L_xc_chk:", f"v_cmp_eq_u32 vcc, 0, v{V_X}", "s_cbranch_vccz L_xc_ok",
      "s_add_u32 s13, s13, 1", f"s_cmp_gt_u32 s13, {SPIN}", "s_cbranch_scc1 L_xc_ok",
      f"buffer_load_dword v{V_X}, v{V_L16}, s[52:55], s68 offen sc1", "s_waitcnt vmcnt(0)", "s_branch L_xc_chk")
    a("L_xc_ok:", f"v_cmp_ne_u32 vcc, s42, v{V_X}", "s_mov_b64 exec, -1", "s_cmp_lg_u64 vcc, 0", "s_cselect_b32 s42, 1, 0")
    if os.environ.get("FORCE_SLOW", "0") == "1":
        a("s_mov_b32 s42, 1")
    a("buffer_load_dwordx4 v[12:15], v10, s[76:79], s74 offen")
    a("v_and_b32 v16, 31, v1", "v_cmp_eq_u32 vcc, 0, v16", "v_cmp_eq_u32 s[14:15], 17, v16", "s_or_b64 vcc, vcc, s[14:15]",
      "v_mov_b32 v55, 0x3f803f80", "s_nop 1", "v_cndmask_b32 v56, 0, v55, vcc", "v_mov_b32 v57, v56", "v_mov_b32 v58, v56", "v_mov_b32 v59, v56")
    a("s_waitcnt lgkmcnt(0)", "s_barrier")
    stamp(a, 13); stamp(a, 60, True)
    a(f"ds_read_b32 v8, v7 offset:2048", f"ds_read_b128 {vr(VS,4)}, v5", f"ds_read_b128 {vr(VS+4,4)}, v5 offset:1024")
    a("s_waitcnt lgkmcnt(2)", f"v_add_f32 v8, v8, v{VO}", "v_rcp_f32 v8, v8", "s_waitcnt lgkmcnt(0)")
    for i in range(8):
        a(f"v_add_f32 v{VO+8+i}, v{VO+8+i}, v{VS+i}")
    for i in range(8):
        a(f"v_mul_f32 v{VO+8+i}, v8, v{VO+8+i}")
    for i in range(4):
        a(f"v_cvt_pk_bf16_f32 v{VP+i}, v{VO+8+2*i}, v{VO+9+2*i}")
    a(f"buffer_store_dwordx4 {vr(VP,4)}, v{V_L16}, s[52:55], s63 offen")
    for p in range(8):
        tr_read(a, 60 + 4 * p, 9, p * 1024)
    a("s_lshl_b32 s13, s71, 16", "s_lshl_b32 s15, s72, 14", "s_add_u32 s13, s13, s15", "s_add_u32 s13, s13, 32768",
      f"v_add_u32 v8, s13, v{V_L16}")
    a("s_lshr_b32 s13, s3, 1", "s_lshl_b32 s13, s13, 10",
      "s_lshl_b32 s15, s4, 16", f"s_add_u32 s15, s15, {OF:#x}", "s_add_u32 s15, s15, s13", "s_lshl_b32 s14, s70, 15", "s_add_u32 s15, s15, s14",
      "s_lshl_b32 s12, s70, 16", "s_add_u32 s12, s12, s13", "s_add_u32 s12, s12, 32768")
    stamp(a, 14)
    def cs_part(k0, k1):
        for kt in range(k0, k1):
            mfma16(a, 40 + 4 * (kt & 1), 56, VW + 4 * kt, None if kt < 2 else 40 + 4 * (kt & 1))
    handoff(a, "x1", 1, lambda: cs_part(0, 16), lambda: cs_part(16, 32))
    stamp(a, 17)
    vm = VM(a); lg = LG(a)
    def o_dma(c):
        for kq in range(2):
            vm.issue(f"o{c}", f"s_add_u32 m0, s12, {(16*kq+4*c)*1024}", f"s_add_u32 s13, s15, {(16*kq+4*c)*1024}",
                     f"buffer_load_dwordx4 v{V_L16}, s[52:55], s13 offen sc1 lds")
    o_dma(0); o_dma(1); o_dma(2)
    a("v_add_f32 v40, v40, v44", "v_add_f32 v41, v41, v45", "v_lshlrev_b32 v42, 2, v1", "v_add_u32 v42, s66, v42",
      "v_add_u32 v54, s66, v11", "s_mov_b64 exec, 0xffff")
    lg.issue("csw", "ds_write2_b32 v42, v40, v41 offset0:192 offset1:208" if False else "ds_write_b32 v42, v40 offset:3072")
    lg.issue("csw", "ds_write_b32 v42, v41 offset:3136")
    a("s_mov_b64 exec, -1")
    steps = []
    for p in range(16):
        steps.append(dict(id=f"o{p}", need=f"o{p//4}", reads=[f"ds_read_b128 {vr(92+4*(p&3),4)}, v8 offset:{p*1024}"],
                          mf=[lambda p=p: mfma32(a, 16, 60 + 4 * (p & 7), 92 + 4 * (p & 3), None if p == 0 else 16)]))
        if p >= 8:
            steps[-1]["pre"] = lambda p=p: lg.wait(f"wo{p}")
    def fill0(p):
        if p < 8:
            lg.issue(f"wo{p+8}", f"ds_read_b64_tr_b16 {vr(60+4*p,2)}, v9 offset:{(8+p)*1024}")
            lg.issue(f"wo{p+8}", f"ds_read_b64_tr_b16 {vr(62+4*p,2)}, v9 offset:{(8+p)*1024+256}")
    stream(a, vm, lg, steps, 4, fill0, 18, lambda k: o_dma(3) if k == 0 else None)
    stamp(a, 22)
    a(f"v_add_u32 v4, s66, v{V_L16}", "s_xor_b32 s13, s66, 0x4000", f"v_add_u32 v5, s13, v{V_L16}")
    a("s_lshl_b32 s15, s4, 14", "s_lshl_b32 s13, s73, 9", "s_add_u32 s15, s15, s13", "s_lshl_b32 s13, s71, 8", "s_add_u32 s15, s15, s13",
      f"s_add_u32 s15, s15, {STF:#x}")
    a("v_mov_b32 v60, 0", "v_mov_b32 v61, 0", "v_lshlrev_b32 v64, 3, v1", "s_nop 0")
    a("ds_write_b128 v4, v[24:27]", "ds_write_b128 v4, v[28:31] offset:1024")
    for i in range(4):
        a(f"v_lshlrev_b32 v32, 16, v{12+i}", f"v_and_b32 v33, 0xffff0000, v{12+i}",
          f"v_add_f32 v{16+2*i}, v{16+2*i}, v32", f"v_add_f32 v{17+2*i}, v{17+2*i}, v33")
    srd(a, 76, 30, 2752)
    a("s_waitcnt lgkmcnt(0)", "s_barrier")
    stamp(a, 23)
    a("ds_read_b128 v[32:35], v5", "ds_read_b128 v[36:39], v5 offset:1024")
    a("buffer_load_dwordx4 v[24:27], v11, s[76:79], s67 offen", "buffer_load_dwordx4 v[28:31], v11, s[76:79], s67 offen offset:32")
    a("s_waitcnt lgkmcnt(0)")
    for i in range(8):
        a(f"v_add_f32 v{16+i}, v{16+i}, v{32+i}")
    for i in range(4):
        a(f"v_cvt_pk_bf16_f32 v{12+i}, v{16+2*i}, v{17+2*i}")
    a(f"buffer_store_dwordx4 v[12:15], v{V_L16}, s[52:55], s100 offen")
    for i in range(4):
        a(f"v_dot2c_f32_bf16 v60, v55, v{12+i}", f"v_dot2c_f32_bf16 v61, v{12+i}, v{12+i}")
    a("s_nop 2", "v_mov_b32 v62, v60", "v_mov_b32 v63, v61", "s_nop 1",
      "v_permlane32_swap_b32 v60, v62", "v_permlane32_swap_b32 v61, v63", "s_nop 1",
      "v_add_f32 v60, v60, v62", "v_add_f32 v61, v61, v63",
      "s_mov_b64 exec, 0xffffffff", "buffer_store_dwordx2 v[60:61], v64, s[52:55], s15 offen", "s_mov_b64 exec, -1")
    a("s_add_u32 s96, s10, 81920",
      "s_lshr_b32 s98, s3, 1", "s_lshl_b32 s97, s98, 14", "s_lshl_b32 s13, s5, 7", "s_add_u32 s97, s97, s13",
      "s_lshl_b32 s13, s70, 6", "s_add_u32 s97, s97, s13")
    a(f"v_subrev_u32 v{V_TR}, s66, v{V_TR}", "s_lshl_b32 s13, s72, 5", f"v_xor_b32 v{V_TR}, s13, v{V_TR}", f"v_add_u32 v{V_TR}, s96, v{V_TR}", f"v_add_u32 v{V_X}, 0x10000, v{V_TR}")
    a("s_lshl_b32 s13, s99, 15", f"v_add_u32 v7, s13, v{V_L16}",
      "v_and_b32 v8, 31, v1", "v_lshlrev_b32 v8, 3, v8", "v_lshl_add_u32 v8, v11, 9, v8",
      "s_lshl_b32 s13, s99, 8", "s_add_u32 s13, s13, 65536", "v_add_u32 v8, s13, v8",
      "v_and_b32 v9, 31, v1", "v_lshlrev_b32 v9, 4, v9", "s_lshl_b32 s13, s99, 10", "v_add_u32 v9, s13, v9")
    a("s_lshl_b32 s15, s4, 16", f"s_add_u32 s15, s15, {HF:#x}", "s_add_u32 s15, s15, s10")
    a("s_lshl_b32 s12, s4, 14", f"s_add_u32 s12, s12, {STF:#x}", "s_add_u32 s12, s12, s10")
    stamp(a, 24)
    def sh2():
        a("v_mov_b32 v39, v54")
        for q in range(4):
            a(f"ds_read_b128 {vr(40+4*q,4)}, v39 offset:{3072+32*q}")
    def sh2b():
        for i in range(NA):
            a(f"s_add_u32 m0, s96, {i*8192}", f"s_add_u32 s14, s97, {i*65536}", f"buffer_load_dwordx4 v{V_W2G}, s[56:59], s14 offen lds")
        for i in range(8):
            a(f"v_lshlrev_b32 v{64+2*i}, 16, v{24+i}", f"v_and_b32 v{65+2*i}, 0xffff0000, v{24+i}")
    handoff(a, "x2", 2, sh2, sh2b)
    stamp(a, 27)
    PK = os.environ.get("PK", "0") == "1"
    BW = 96
    ST0, ST1 = 32, 112
    def P2(r): return f"v[{r}:{r+1}]"
    def stats_fillers(addr, st):
        m, q = st + 6, st + 7
        F = []
        def add2(d, x, y):
            if PK: return [f"v_pk_add_f32 {P2(d)}, {P2(x)}, {P2(y)}"]
            return [f"v_add_f32 v{d}, v{x}, v{y}", f"v_add_f32 v{d+1}, v{x+1}, v{y+1}"]
        for b in range(2):
            F.append(("lds", [(f"st{st}_{b}", f"ds_read2st64_b64 {vr(80+4*i,4)}, v{addr} offset0:{8*b+2*i} offset1:{8*b+2*i+1}") for i in range(4)]))
            F.append(("nop",))
            ops = []
            for i in range(4):
                ops += add2(80 + 4 * i, 80 + 4 * i, 82 + 4 * i)
            F.append(("valu", f"st{st}_{b}", ops))
            ops = add2(80, 80, 84) + add2(88, 88, 92)
            if b == 0:
                ops += add2(m, 80, 88)
                F.append(("valu", None, ops))
            else:
                ops += add2(80, 80, 88) + add2(m, m, 80) + [f"v_mov_b32 v{st}, v{m}", f"v_mov_b32 v{st+1}, v{q}"]
                F.append(("valu", None, ops))
                ops = [f"v_permlane32_swap_b32 v{m}, v{st}", f"v_permlane32_swap_b32 v{q}, v{st+1}", "s_nop 1"] + add2(m, m, st) + \
                      [f"v_mul_f32 v{m}, {f32(1/512)}, v{m}", f"v_mul_f32 v{q}, {f32(1/512)}, v{q}",
                       f"v_fma_f32 v{q}, -v{m}, v{m}, v{q}", f"v_max_f32 v{q}, 0, v{q}", f"v_add_f32 v{q}, {f32(1e-5)}, v{q}"]
                F.append(("valu", None, ops))
                ops = [f"v_rsq_f32 v{st+1}, v{q}", f"v_sqrt_f32 v{st+4}, v{q}",
                       f"v_mul_f32 v{st+2}, {f32(GK1)}, v{st+1}",
                       f"v_mul_f32 v{st+3}, v{st+1}, v{st+1}", f"v_mul_f32 v{st+3}, {f32(0.044715)}, v{st+3}",
                       f"v_mul_f32 v{st}, v{st+2}, v{st+3}"]
                F.append(("valu", None, ops))
        return F
    def cinit(dst, st):
        F = []
        for h in range(4):
            if PK:
                ops = [f"v_pk_mul_f32 {P2(dst+i)}, {P2(64+i)}, {P2(st+4)} op_sel_hi:[1,0]" for i in range(4*h, 4*h+4, 2)]
                ops += [f"v_pk_fma_f32 {P2(dst+i)}, {P2(st+6)}, {P2(40+i)}, {P2(dst+i)} op_sel_hi:[0,1,1] neg_lo:[1,0,0] neg_hi:[1,0,0]" for i in range(4*h, 4*h+4, 2)]
            else:
                ops = [f"v_mul_f32 v{dst+i}, v{64+i}, v{st+4}" for i in range(4*h, 4*h+4)]
                ops += [f"v_fma_f32 v{dst+i}, -v{st+6}, v{40+i}, v{dst+i}" for i in range(4*h, 4*h+4)]
            F.append(("valu", None, ops))
        return F
    vm0 = VM(a)
    def h_dma(vm, c):
        for rt in range(2):
            vm.issue(f"h{c}", f"s_add_u32 m0, s10, {rt*32768 + c*8192}", f"s_add_u32 s13, s15, {rt*32768 + c*8192}",
                     f"buffer_load_dwordx4 v{V_L16}, s[52:55], s13 offen sc1 lds")
    FB = os.environ.get("FB", "1") == "1"
    h_dma(vm0, 0)
    for i in range(2):
        vm0.issue("h0", f"s_add_u32 m0, s10, {65536 + i*8192}", f"s_add_u32 s13, s12, {i*8192}",
                  f"buffer_load_dwordx4 v{V_L16}, s[52:55], s13 offen sc1 lds")
    if FB: a("s_barrier")
    h_dma(vm0, 1)
    a("s_cmp_ge_u32 s3, 4", "s_cbranch_scc1 L_f1_s")
    SPRIO = int(os.environ.get("SPRIO", "1"))
    for cls in ("L", "S"):
        vm = VM(a); vm.ops = list(vm0.ops); lg = LG(a)
        if cls == "S":
            a("L_f1_s:", f"s_setprio {SPRIO}")
        def w2_dma(i):
            vm.issue(f"w2_{i}", f"s_add_u32 m0, s96, {(i%10)*8192}", f"s_add_u32 s13, s97, {i*65536}",
                     f"buffer_load_dwordx4 v{V_W2G}, s[56:59], s13 offen lds")
        def readout(i, wait=True):
            if wait: vm.wait(f"w2_{i}")
            ar, of = slot_addr(i)
            lg.issue(f"r{i}", f"ds_read_b64_tr_b16 {vr(VW+4*i,2)}, v{ar} offset:{of}")
            lg.issue(f"r{i}", f"ds_read_b64_tr_b16 {vr(VW+4*i+2,2)}, v{ar} offset:{of+256}")
        def on_sync(k):
            if k == 0:
                h_dma(vm, 2); h_dma(vm, 3)
        def run(f):
            if f[0] == "lds":
                for tag, ins in f[1]: lg.issue(tag, ins)
            elif f[0] == "valu":
                if f[1]: lg.wait(f[1])
                a(*f[2])
            elif f[0] == "fn":
                f[1]()
        steps = []
        for kt in range(32):
            need = "h0" if kt < 8 else ("h1" if kt < 16 else "h3")
            steps.append(dict(id=f"b{kt}", need=need, reads=[f"ds_read_b128 {vr(BW+4*(kt&3),4)}, v7 offset:{kt*1024}"],
                              mf=[lambda kt=kt: mfma32(a, 16, VW + 4 * kt, BW + 4 * (kt & 3), None if kt == 0 else 16)]))
        if cls == "L":
            for kt in range(32):
                steps.append(dict(id=f"c{kt}", need=None, reads=[f"ds_read_b128 {vr(BW+4*(kt&3),4)}, v7 offset:{32768+kt*1024}"],
                                  mf=[lambda kt=kt: mfma32(a, 80, VW + 4 * kt, BW + 4 * (kt & 3), 80)]))
            fill = [("lds", [("rc", f"ds_read_b128 {vr(ST0,4)}, v9"), ("rc", f"ds_read_b128 {vr(ST0+4,4)}, v9 offset:512"),
                             ("rc", f"ds_read_b128 {vr(ST1,4)}, v9 offset:1024"), ("rc", f"ds_read_b128 {vr(ST1+4,4)}, v9 offset:1536")]),
                    ("nop",), ("nop",), ("valu", "rc", ["s_nop 0"])] + cinit(80, ST1) + cinit(64, ST0)
            G = [("v", x) for x in gelu_ops(16, 40, 8, 64, ST0, PK)] + [("st", f"buffer_store_dwordx4 v[40:43], v{V_L16}, s[52:55], s101 offen")] + \
                [("v", x) for x in gelu_ops(24, 48, 8, 72, ST0, PK)] + [("st", f"buffer_store_dwordx4 v[48:51], v{V_L16}, s[52:55], s101 offen offset:1024")]
            r1 = list(range(NA, 10)); r2 = list(range(10, 22 - NL))
            def fillers(n):
                if n >= 13 and (n - 13) % 3 == 0 and r1:
                    w2_dma(r1.pop(0))
                if n >= 13 and fill:
                    run(fill.pop(0))
                kt = n - 32
                if 0 <= kt < 10: readout(kt, kt >= NA)
                if kt >= 5 and (kt - 5) % 2 == 0 and r2:
                    assert r2[0] - 10 <= kt - 5
                    w2_dma(r2.pop(0))
                if kt >= 3:
                    per = 4 if kt < 10 else 5
                    for _ in range(per):
                        if G:
                            k, ins = G.pop(0)
                            if k == "v": a(ins)
                            else: vm.issue("fst", ins)
                if n == 31: stamp(a, 34)
            stream(a, vm, lg, steps, 4, fillers, 29, on_sync)
            assert not fill and not G
            stamp(a, 35)
            a(f"s_add_u32 s15, s101, {86*1024}")
            assert not r1 and not r2
            vm.wait(f"w2_{21-NL}")
            for i in range(10, 16): readout(i, False)
            a(*gelu_ops(80, 16, 16, None, ST1, pk=True))
            vm.issue("fst", f"buffer_store_dwordx4 v[16:19], v{V_L16}, s[52:55], s15 offen")
            vm.issue("fst", f"buffer_store_dwordx4 v[20:23], v{V_L16}, s[52:55], s15 offen offset:1024")
            for i in range(16, 22 - NL): readout(i, False)
            a("s_branch L_f1_done")
        else:
            fill = stats_fillers(8, ST0) + [("lds", [("rcw", f"ds_write_b128 v9, {vr(ST0,4)}"), ("rcw", f"ds_write_b128 v9, {vr(ST0+4,4)} offset:512")]),
                                            ("fn", lambda: lg.wait("rcw"))]
            assert len(fill) == 12
            fill2 = cinit(64, ST0)
            r1 = list(range(NA, 10))
            def fillers(n):
                if fill: run(fill.pop(0))
                elif n >= 13 and fill2: run(fill2.pop(0))
                if n >= 13 and (n - 13) % 2 == 0 and r1:
                    w2_dma(r1.pop(0))
                if 27 <= n < 32:
                    if 2 * (n - 27) + 1 >= NA: vm.wait(f"w2_{2*(n-27)+1}")
                    readout(2 * (n - 27), False); readout(2 * (n - 27) + 1, False)
            stream(a, vm, lg, steps, 4, fillers, 29, on_sync)
            assert not fill and not fill2
            stamp(a, 34)
            a("s_setprio 0")
            lg.wait("r9")
            a("s_nop 5")
            gl = gelu_ops(16, 40, 16, 64, ST0, PK)
            r2 = list(range(10, 22 - NL))
            for n, ins in enumerate(gl):
                if n % 12 == 0 and r2: w2_dma(r2.pop(0))
                a(ins)
            assert not r2
            a("s_cmp_eq_u32 s43, 5", "s_cselect_b32 s13, s5, 0", "s_cmp_ge_u32 s13, 3", "s_cselect_b32 s13, s55, s101", "s_cselect_b32 s14, s54, 0", "s_add_u32 s13, s13, s14")
            vm.issue("fst", f"buffer_store_dwordx4 v[40:43], v{V_L16}, s[52:55], s13 offen")
            vm.issue("fst", f"buffer_store_dwordx4 v[44:47], v{V_L16}, s[52:55], s13 offen offset:1024")
            stamp(a, 35)
            vm.wait(f"w2_{21-NL}")
            for i in range(10, 22 - NL):
                readout(i, False)
    a("L_f1_done:")
    srd(a, 76, 34, 1024)
    a("s_lshl_b32 s13, s73, 5", "buffer_load_dwordx4 v[48:51], v11, s[76:79], s13 offen")
    a("s_lshl_b32 s13, s71, 13", "s_lshl_b32 s14, s98, 10", "s_add_u32 s13, s13, s14", f"v_add_u32 v52, s13, v{V_L16}",
      "v_xor_b32 v60, 0x2000, v52")
    for b in (1, 2):
        a(f"v_add_u32 v{52+b}, {b*65536:#x}, v52", f"v_add_u32 v{60+b}, {b*65536:#x}, v60")
    a("s_mul_i32 s15, s4, 176128", f"s_add_u32 s15, s15, {FF:#x}", "s_add_u32 s15, s15, s10")
    stamp(a, 36)
    def sh3():
        for i in range(22 - NL, 22):
            a(f"s_add_u32 m0, s96, {(i%10)*8192}", f"s_add_u32 s14, s97, {i*65536}", f"buffer_load_dwordx4 v{V_W2G}, s[56:59], s14 offen lds")
    handoff(a, "x3", 3, None, sh3)
    stamp(a, 38); stamp(a, 61, True)
    vm = VM(a); lg = LG(a)
    def f_dma(c):
        for rt in range(2):
            vm.issue(f"f{c}", f"s_add_u32 m0, s10, {(c%10)*16384 + rt*8192}", f"s_add_u32 s13, s15, {rt*86*1024 + c*8192}",
                     f"buffer_load_dwordx4 v{V_L16}, s[52:55], s13 offen sc1 lds")
    NF0 = 3
    for c in range(NF0):
        f_dma(c)
        if c == 0 and FB: a("s_barrier")
    for i in range(22 - NL, 22):
        tr_read(a, VW + 4 * i, *slot_addr(i))
    needs = {c: c for c in range(11)}
    WIN = 2
    steps = []
    for i in range(22):
        c, h = i >> 1, i & 1
        sl = c % 10
        off = (sl & 3) * 16384 + h * 4096
        rb = 64 + 8 * (i % (WIN + 1)) if False else 64 + 8 * (i % WIN)
        st = dict(id=f"x{i}", need=f"f{needs[c]}",
                  reads=[f"ds_read_b128 {vr(rb+4*s,4)}, v{(52,60)[s]+sl//4} offset:{off}" for s in range(2)],
                  mf=[lambda i=i, s=s, rb=rb: mfma32(a, 16 + 16 * s, VW + 4 * i, rb + 4 * s, None if i == 0 else 16 + 16 * s) for s in range(2)])
        if i == 21:
            st["pre"] = lambda: a("s_waitcnt lgkmcnt(0)", "s_cmp_ge_u32 s98, 2", "s_cbranch_scc1 L_f2_skip")
        steps.append(st)
    stream(a, vm, lg, steps, WIN, lambda n: None, 40, lambda k: f_dma(k + NF0) if k + NF0 < 11 else None)
    a("L_f2_skip:")
    stamp(a, 53)
    a("s_mul_i32 s13, s3, 6144", "s_add_u32 s13, s13, 16384", f"v_add_u32 v4, s13, v{V_L16}")
    for sg in (1, 2, 3):
        a(f"s_xor_b32 s14, s3, {sg<<1}", "s_mul_i32 s14, s14, 6144", f"s_add_u32 s14, s14, {16384+(sg-1)*2048}", f"v_add_u32 v{4+sg}, s14, v{V_L16}")
    octs = {1: 32, 2: 24, 3: 40}
    for sg in (2, 1, 3):
        a(f"ds_write_b128 v4, {vr(octs[sg],4)} offset:{(sg-1)*2048}", f"ds_write_b128 v4, {vr(octs[sg]+4,4)} offset:{(sg-1)*2048+1024}")
    srd(a, 76, 36, 2048*1024)
    for src in (12, 48):
        for i in range(4):
            a(f"v_lshlrev_b32 v60, 16, v{src+i}", f"v_and_b32 v61, 0xffff0000, v{src+i}",
              f"v_add_f32 v{16+2*i}, v{16+2*i}, v60", f"v_add_f32 v{17+2*i}, v{17+2*i}, v61")
    a("s_waitcnt lgkmcnt(0)", "s_barrier")
    stamp(a, 54)
    for sg in (1, 2, 3):
        a(f"ds_read_b128 {vr(56+8*sg,4)}, v{4+sg}", f"ds_read_b128 {vr(60+8*sg,4)}, v{4+sg} offset:1024")
    for sg in (1, 2, 3):
        a(f"s_waitcnt lgkmcnt({2*(3-sg)})")
        for i in range(8):
            a(f"v_add_f32 v{16+i}, v{16+i}, v{56+8*sg+i}")
    for i in range(4):
        a(f"v_cvt_pk_bf16_f32 v{24+i}, v{16+2*i}, v{17+2*i}")
    a("buffer_store_dwordx4 v[24:27], v10, s[76:79], s74 offen")
    stamp(a, 55)
    if STAMP: a("s_waitcnt vmcnt(0)")
    stamp(a, 62); stamp(a, 63, True)
    stamp_flush(a, 1, 8)
    a(f"{Lend}:", "s_endpgm")
    a("L_k2_slow:")
    a(f"s_mov_b32 s15, {KVF:#x}", f"v_mov_b32 v{VC}, {f32(-3.0e38)}", f"v_mov_b32 v{VC+1}, {f32(-3.0e38)}")
    a("L_k2_mx:")
    a(f"buffer_load_dwordx4 {vr(VK,4)}, v{V_L16}, s[52:55], s15 offen", "s_waitcnt vmcnt(0)")
    mfma32(a, VS, VK, VQ, None)
    mfma32(a, VS + 16, VK, VQ + 4, None)
    a("s_nop 7", "s_nop 4")
    for t in range(2):
        for i in range(8):
            a(f"v_max3_f32 v{VC+t}, v{VS+16*t+2*i}, v{VS+16*t+2*i+1}, v{VC+t}")
    a("s_add_u32 s15, s15, 2048", f"s_cmp_lt_u32 s15, {KVF+64*2048:#x}", "s_cbranch_scc1 L_k2_mx")
    a(f"v_mov_b32 v{VC+2}, v{VC}", f"v_mov_b32 v{VC+3}, v{VC+1}", "s_nop 1",
      f"v_permlane32_swap_b32 v{VC}, v{VC+2}", f"v_permlane32_swap_b32 v{VC+1}, v{VC+3}", "s_nop 1",
      f"v_max_f32 v{VC}, v{VC}, v{VC+2}", f"v_max_f32 v{VC+1}, v{VC+1}, v{VC+3}")
    attention(a, vm_pre, True)
    a("s_branch L_k2_done")
    return a.text() + kernel_desc(name, 256, nsgpr=102), f"; @launch kernel={name} grid=(256,1,1) block=(512,1,1) lds={LDS}"
```

```python
class A:
    def __init__(self):
        self.lines = []
        self.uid = 0
    def __call__(self, s, *more):
        for t in (s,) + more:
            for l in t.split("\n"):
                l = l.rstrip()
                if l.strip() == "":
                    continue
                if l.strip().endswith(":") or l.startswith("."):
                    self.lines.append(l.strip())
                else:
                    self.lines.append("    " + l.strip())
    def c(self, s):
        self.lines.append("    ; " + s)
    def label(self, base):
        self.uid += 1
        return f"L_{base}_{self.uid}"
    def text(self):
        return "\n".join(self.lines) + "\n"

def vr(a, n):
    return f"v[{a}:{a+n-1}]" if n > 1 else f"v{a}"
def sr(a, n):
    return f"s[{a}:{a+n-1}]" if n > 1 else f"s{a}"

def kernel_begin(a, name):
    a(".text", f".globl {name}", ".p2align 8", f".type {name},@function", f"{name}:")

def kernel_desc(name, nvgpr, nsgpr=96, accum=None):
    if accum is None:
        accum = (nvgpr + 3) // 4 * 4
    return f""".section .rodata,"a"
.p2align 6
.amdhsa_kernel {name}
  .amdhsa_next_free_vgpr {nvgpr}
  .amdhsa_next_free_sgpr {nsgpr}
  .amdhsa_accum_offset {accum}
  .amdhsa_group_segment_fixed_size 0
  .amdhsa_kernarg_size 104
  .amdhsa_user_sgpr_count 2
  .amdhsa_user_sgpr_kernarg_segment_ptr 1
  .amdhsa_system_sgpr_workgroup_id_x 1
.end_amdhsa_kernel
"""

def srd(a, d, base, nbytes):
    a(f"s_mov_b32 s{d}, s{base}", f"s_and_b32 s{d+1}, s{base+1}, 0xffff",
      f"s_mov_b32 s{d+2}, {nbytes:#x}", f"s_mov_b32 s{d+3}, 0x00020000")

def mfma32(a, d, A_, B_, c):
    cs = "0" if c is None else vr(c, 16)
    a(f"v_mfma_f32_32x32x16_bf16 {vr(d,16)}, {vr(A_,4)}, {vr(B_,4)}, {cs}")
def mfma16(a, d, A_, B_, c):
    cs = "0" if c is None else vr(c, 4)
    a(f"v_mfma_f32_16x16x32_bf16 {vr(d,4)}, {vr(A_,4)}, {vr(B_,4)}, {cs}")

import struct
def f32(x):
    return "0x%08x" % struct.unpack("<I", struct.pack("<f", x))[0]

QF   = 0x000000
KVF  = 0x200000
KMAX = 0x220000
WOF  = 0x240000
W1F  = 0x2C0000
W2F  = 0x440000
OF   = 0x000000
HF   = 0x800000
FF   = 0xA00000
WS_BYTES = 0x1000000
KA = dict(x=0, wq=8, wk=16, wv=24, wo=32, bx=40, w1=48, b1=56, w2=64, b2=72, out=80, dbg=88, ws=96)

import os
STAMP = os.environ.get("STAMP", "0") == "1"
STAMP_BASE = 0xF80000
NSTAMP = 8
STAMP_NAMES = {}
def stamp(a, idx, real=False, name=None):
    if not STAMP:
        return
    keep = os.environ.get("KEEP")
    if keep and idx not in (0, 1, 59, 60, 61, 62, 63) and idx not in [int(x) for x in keep.split(",")]:
        return
    op = "s_memrealtime" if real else "s_memtime"
    a(f"{op} s[92:93]", "s_waitcnt lgkmcnt(0)")
    if idx < 2:
        a(f"s_mov_b32 s{80+idx}, s92")
    else:
        a(f"v_writelane_b32 v0, s92, {idx}")
def stamp_flush(a, kidx, vt=0, wave="s3", srdreg=52):
    if not STAMP:
        return
    a("s_mov_b64 exec, -1", "v_writelane_b32 v0, s80, 0", "v_writelane_b32 v0, s81, 1")
    a(f"s_lshl_b32 s94, s2, 4", f"s_add_u32 s94, s94, {wave}", "s_lshl_b32 s94, s94, 8",
      f"s_add_u32 s94, s94, {0x1000000 + kidx*0x100000:#x}", f"v_lshlrev_b32 v{vt}, 2, v1")
    a(f"buffer_store_dword v0, v{vt}, s[{srdreg}:{srdreg+3}], s94 offen")
if STAMP:
    WS_BYTES = 0x1200000
FLAGS = 0x230000
```

```python
from lib import *
from k1 import load_ptrs
from k1b import wg_decode2, rstd
from k2 import SM_THR
from k4 import GK1, GK2
import os
from pro import prologue_merged, KFL
MERGED = os.environ.get('MERGED', '1') == '1'
KVS = ' sc1' if MERGED else ''

LDS = 163840
L_STG = 131072
HST = 0x238000
STF = 0x440000

VQ, VK, VV, VP, VC, VO, VS = 4, 12, 20, 36, 44, 60, 92
VW = 128
V_LDSKV = 2
V_L16 = 3
V_TR = 124
V_WG = 125
V_W2G = 126
V_X = 127
SPIN = 1 << 20
TOUCH = os.environ.get("TOUCH", "1") == "1"

class VM:
    def __init__(self, a): self.a = a; self.ops = []
    def issue(self, tag, *lines):
        self.a(*lines); self.ops.append(tag)
    def wait(self, tag, extra=""):
        idx = max(i for i, t in enumerate(self.ops) if t == tag)
        n = len(self.ops) - 1 - idx
        assert n < 64
        self.a(f"s_waitcnt vmcnt({n}){extra}")
    def reset(self): self.ops = []

class LG(VM):
    def wait(self, tag, extra=""):
        idx = max(i for i, t in enumerate(self.ops) if t == tag)
        n = min(15, len(self.ops) - 1 - idx)
        self.a(f"s_waitcnt lgkmcnt({n})")

def half_body(a, ab, par, pre, mid, slow, first=False, sal=None):
    S = VS + 16 * ab; So = VS + 16 * (ab ^ 1); O = VO + 16 * ab; Oo = VO + 16 * (ab ^ 1)
    def e(i):
        a(f"v_exp_f32 v{S+i}, v{S+i}")
        if sal: a(sal.pop(0))
    def p(i): a(f"v_cvt_pk_bf16_f32 v{VP+i//2}, v{S+i}, v{S+i+1}")
    kpar = par if ab == 0 else par ^ 1
    mfma32(a, So, VK + 4 * kpar, VQ + 4 * (ab ^ 1), None if slow else VC)
    pre()
    if slow:
        for i in range(16):
            a(f"v_sub_f32 v{S+i}, v{S+i}, v{VC+ab}")
    e(0); e(1); e(2); e(3); p(0)
    vpar = par ^ 1 if ab == 0 else par
    if not (first and ab == 0):
        mfma32(a, Oo, VV + 8 * vpar + 4, VP + 4, Oo)
    mid()
    e(4); e(5); p(2); e(6); e(7); p(4); e(8); e(9); p(6); e(10); e(11)
    mfma32(a, O, VV + 8 * par, VP, None if first else O)
    p(8); e(12); e(13); p(10); e(14); e(15); p(12); p(14)

def kv_dma(vm, c, hf):
    off = c * 8192 + hf * 65536
    vm.issue(f"kv{c}", f"s_add_u32 m0, s10, {off}", f"s_add_u32 s13, s11, {off}",
             f"buffer_load_dwordx4 v{V_L16}, s[52:55], s13 offen{KVS} lds")

def tr_read(a, dst, areg, off):
    a(f"ds_read_b64_tr_b16 {vr(dst,2)}, v{areg} offset:{off}", f"ds_read_b64_tr_b16 {vr(dst+2,2)}, v{areg} offset:{off+256}")

WO_T0 = 20
def w1_schedule():
    reads = {t: [] for t in range(32)}
    issues = {t: [] for t in range(32)}
    issues[0] = [0, 1]; issues[1] = [2, 3]
    f = 0
    for t in range(3, 32):
        n = 2 if t in (9, 17, 25) else 1
        for _ in range(n):
            if f < 32:
                reads[t].append(f)
                if f + 4 < 32: issues[t].append(f + 4)
                f += 1
    assert f == 32
    return reads, issues

PRIO = os.environ.get("PRIO", "1") == "1"
BARS = {3: "kv3", 15: "kv7"} if os.environ.get("BARS", "2") == "2" else {3: "kv1", 7: "kv3", 15: "kv7"}
def prio_schedule():
    P = {}
    ends = sorted(BARS) + [32]
    start = 0
    for e in ends:
        n = 2 * (e - start)
        l0 = 1; l1 = max(1, round(n * 0.06)); l2 = max(1, round(n * 0.21))
        P[2 * start] = 3
        P[2 * e - l0 - l1 - l2] = 2
        P[2 * e - l0 - l1] = 1
        P[2 * e - l0] = 0
        start = e
    return P

def attention(a, vm0, slow, sal):
    vm = VM(a); vm.ops = list(vm0.ops)
    reads, issues = w1_schedule()
    vm.wait("kv0"); a("s_barrier")
    stamp(a, 4); stamp(a, 59, True)
    PS = prio_schedule() if PRIO else {0: 1}
    a(f"ds_read_b128 {vr(VK,4)}, v{V_LDSKV}")
    a("s_mov_b64 exec, s[60:61]",
      f"ds_read_b128 {vr(VV,4)}, v{V_LDSKV} offset:1024", f"ds_read_b128 {vr(VV+4,4)}, v{V_LDSKV} offset:768",
      "s_mov_b64 exec, -1")
    a("s_waitcnt lgkmcnt(0)")
    mfma32(a, VS, VK, VQ, None if slow else VC)
    a("s_nop 7", "s_nop 2")
    def w1_issue(f):
        vm.issue(f"w1_{f}", f"s_add_u32 m0, s66, {(f&3)*1024}", f"s_add_u32 s13, s67, {f*16*2752}",
                 f"buffer_load_dwordx4 v{V_WG}, s[44:47], s13 offen lds")
    for t in range(32):
        par = t & 1
        if t in BARS: vm.wait(BARS[t]); a("s_barrier")
        if t in (4, 8, 12, 16, 20, 24, 28): stamp(a, 4 + t // 4)
        base = (t + 1) * 2048
        def preA():
            if t < 31:
                a(f"ds_read_b128 {vr(VK+4*(par^1),4)}, v{V_LDSKV} offset:{base}")
            if reads[t]:
                vm.wait(f"w1_{reads[t][-1]}")
                for f in reads[t]:
                    tr_read(a, VW + 4 * f, V_TR, (f & 3) * 1024)
        def midA():
            if t < 31:
                a("s_mov_b64 exec, s[60:61]",
                  f"ds_read_b128 {vr(VV+8*(par^1),4)}, v{V_LDSKV} offset:{base+1024}",
                  f"ds_read_b128 {vr(VV+8*(par^1)+4,4)}, v{V_LDSKV} offset:{base+768}",
                  "s_mov_b64 exec, -1")
            if len(BARS) == 3:
                if t < 12:
                    kv_dma(vm, 2 + t // 2, t & 1)
            else:
                if t < 2:
                    kv_dma(vm, 2 + t, 0); kv_dma(vm, 2 + t, 1)
                elif 3 <= t < 11:
                    kv_dma(vm, 4 + (t - 3) // 2, (t - 3) & 1)
            if t in (17, 18, 19):
                i = t - 17
                vm.issue("pf", f"s_add_u32 s13, s62, {i}", "s_and_b32 s14, s13, 7", "s_lshr_b32 s13, s13, 3", "s_lshl_b32 s13, s13, 14",
                         "s_lshl_b32 s14, s14, 7", "s_add_u32 s13, s13, s14",
                         f"buffer_load_dword v{V_X}, v{V_W2G}, s[56:59], s13 offen")
            TT = (2, 4, 6, 8, 10, 11, 12)
            if TOUCH and t in TT:
                i = TT.index(t)
                reg = [100, 101, 101, 64, 64, 95, 63][i]
                off = [0, 0, 1024, 0, 1024, 0, 0][i]
                vm.issue("pf", f"buffer_load_dword v{V_X}, v{V_L16}, s[52:55], s{reg} offen offset:{off} sc1")
        def preB():
            if issues[t]:
                w1_issue(issues[t][0])
            if t == 30:
                vm.issue("xcc", f"buffer_load_dword v{V_X}, v{V_L16}, s[52:55], s68 offen sc1")
        def midB():
            if len(issues[t]) > 1:
                w1_issue(issues[t][1])
            i = t - WO_T0
            if 0 <= i < 8:
                q = i >> 1
                ldsoff = (q >> 1) * 65536 + (i & 1) * 16384 + (q & 1) * 8192
                vm.issue("wo", f"s_add_u32 m0, s10, {ldsoff}", f"s_add_u32 s13, s69, {q*8*16384 + (i&1)*64}",
                         f"buffer_load_dwordx4 v{V_W2G}, s[48:51], s13 offen lds")
        if 2 * t in PS: a(f"s_setprio {PS[2*t]}")
        half_body(a, 0, par, preA, midA, slow, t == 0, sal)
        a("s_waitcnt lgkmcnt(0)")
        if 2 * t + 1 in PS: a(f"s_setprio {PS[2*t+1]}")
        half_body(a, 1, par, preB, midB, slow, t == 0, sal)
        if t == 1: assert not sal
    a("s_nop 1")

def real_addr(a):
    a(f"v_lshrrev_b32 v{V_X}, 5, v1", f"v_lshlrev_b32 v{V_TR}, 9, v{V_X}",
      f"v_bfe_u32 v{V_X}, v1, 2, 2", f"v_lshl_or_b32 v{V_TR}, v{V_X}, 6, v{V_TR}",
      f"v_bfe_u32 v{V_X}, v1, 4, 1", f"v_lshl_or_b32 v{V_TR}, v{V_X}, 5, v{V_TR}",
      f"v_and_b32 v{V_X}, 1, v1", f"v_lshl_or_b32 v{V_TR}, v{V_X}, 4, v{V_TR}",
      f"v_bfe_u32 v{V_X}, v1, 1, 1", f"v_lshl_or_b32 v{V_TR}, v{V_X}, 3, v{V_TR}",
      f"v_add_u32 v{V_TR}, s66, v{V_TR}",
      f"v_lshrrev_b32 v{V_X}, 2, v1", f"v_lshlrev_b32 v{V_W2G}, 10, v{V_X}",
      f"v_and_b32 v{V_X}, 3, v1", f"v_lshl_or_b32 v{V_W2G}, v{V_X}, 4, v{V_W2G}",
      f"v_lshlrev_b32 v{V_X}, 2, v1")

def handoff(a, tag, word, shadow1=None, shadow2=None):
    a("s_lshl_b32 s13, s5, 5", "s_lshl_b32 s14, s3, 2", "s_add_u32 s13, s13, s14", "s_add_u32 s13, s13, s68",
      "v_mov_b32 v4, 1", "v_lshlrev_b32 v5, 2, v1")
    if shadow1: shadow1()
    a("s_waitcnt vmcnt(0) lgkmcnt(0)", "s_mov_b64 exec, 1")
    a("s_cmp_eq_u32 s42, 0", f"s_cbranch_scc1 L_{tag}_fast")
    a("buffer_wbl2 sc1", "s_waitcnt vmcnt(0)", f"buffer_store_dword v4, v5, s[52:55], s13 offen offset:{word*256} sc1", f"s_branch L_{tag}_set")
    a(f"L_{tag}_fast:", f"buffer_store_dword v4, v5, s[52:55], s13 offen offset:{word*256}")
    a(f"L_{tag}_set:", "s_mov_b64 exec, -1", "s_mov_b32 s13, 0")
    if shadow2: shadow2()
    a(f"L_{tag}_poll:", f"buffer_load_dword v4, v5, s[52:55], s68 offen offset:{word*256} sc1",
      "s_add_u32 s13, s13, 1", f"s_cmp_gt_u32 s13, {SPIN}", f"s_cbranch_scc1 L_{tag}_out",
      "s_waitcnt vmcnt(0)", "v_cmp_eq_u32 vcc, 0, v4", f"s_cbranch_vccnz L_{tag}_poll")
    a(f"L_{tag}_out:")
    a("s_cmp_eq_u32 s42, 0", f"s_cbranch_scc1 L_{tag}_go", "buffer_inv sc1", "s_waitcnt vmcnt(0)", f"L_{tag}_go:")

def gelu_ops(X, T, n, c, st, pk=False):
    K2, K1, IR = st, st + 2, st + 4
    L = []
    if pk:
        P = lambda r: f"v[{r}:{r+1}]"
        if c is not None:
            L += [f"v_pk_add_f32 {P(X+i)}, {P(X+i)}, {P(c+i)}" for i in range(0, n, 2)]
        L += [f"v_pk_mul_f32 {P(T+i)}, {P(X+i)}, {P(X+i)}" for i in range(0, n, 2)]
        L += [f"v_pk_fma_f32 {P(T+i)}, {P(T+i)}, {P(K2)}, {P(K1)} op_sel_hi:[1,0,0]" for i in range(0, n, 2)]
        L += [f"v_pk_mul_f32 {P(T+i)}, {P(T+i)}, {P(X+i)}" for i in range(0, n, 2)]
        L += [f"v_exp_f32 v{T+i}, v{T+i}" for i in range(n)]
        L += [f"v_pk_fma_f32 {P(T+i)}, {P(T+i)}, {P(IR)}, {P(IR)} op_sel_hi:[1,0,0]" for i in range(0, n, 2)]
        L += [f"v_rcp_f32 v{T+i}, v{T+i}" for i in range(n)]
        L += [f"v_pk_mul_f32 {P(X+i)}, {P(X+i)}, {P(T+i)}" for i in range(0, n, 2)]
    else:
        if c is not None:
            L += [f"v_add_f32 v{X+i}, v{X+i}, v{c+i}" for i in range(n)]
        L += [f"v_mul_f32 v{T+i}, v{X+i}, v{X+i}" for i in range(n)]
        L += [f"v_fma_f32 v{T+i}, v{T+i}, v{K2}, v{K1}" for i in range(n)]
        L += [f"v_mul_f32 v{T+i}, v{T+i}, v{X+i}" for i in range(n)]
        L += [f"v_exp_f32 v{T+i}, v{T+i}" for i in range(n)]
        L += [f"v_fma_f32 v{T+i}, v{T+i}, v{IR}, v{IR}" for i in range(n)]
        L += [f"v_rcp_f32 v{T+i}, v{T+i}" for i in range(n)]
        L += [f"v_mul_f32 v{X+i}, v{X+i}, v{T+i}" for i in range(n)]
    L += [f"v_cvt_pk_bf16_f32 v{T+i}, v{X+2*i}, v{X+2*i+1}" for i in range(n // 2)]
    return L

def slot_addr(i):
    sl = i % 10
    return (V_TR, sl * 8192) if sl < 8 else (V_X, (sl - 8) * 8192)
NA = int(os.environ.get("NA", "4"))
NL = int(os.environ.get("NL", "4"))

def stream(a, vm, lg, steps, window, fillers, sync_stamp=None, on_sync=None):
    synced = set()
    pend = []
    nxt = 0
    def issue_upto(lim):
        nonlocal nxt
        while nxt < min(len(steps), lim):
            st = steps[nxt]
            if st["need"] is not None and st["need"] not in synced:
                vm.wait(st["need"]); a("s_barrier"); synced.add(st["need"])
                if sync_stamp is not None: stamp(a, sync_stamp + len(synced) - 1)
                pend.append(len(synced) - 1)
            for k, ins in enumerate(st["reads"]):
                lg.issue(f"{st['id']}_{k}", ins)
            nxt += 1
            if pend and on_sync is not None and (nxt >= min(len(steps), lim) or (steps[nxt]["need"] not in synced and steps[nxt]["need"] is not None)):
                while pend: on_sync(pend.pop(0))
    for n, st in enumerate(steps):
        issue_upto(n + window)
        if "pre" in st: st["pre"]()
        for k, fn in enumerate(st["mf"]):
            lg.wait(f"{st['id']}_{k}")
            fn()
        issue_upto(n + window + 1)
        fillers(n)

def gen_k2f(name):
    a = A()
    kernel_begin(a, name)
    Lend = "L_k2_end"
    a("s_cmp_ge_u32 s2, 256", f"s_cbranch_scc1 {Lend}")
    stamp(a, 0, True); stamp(a, 1)
    load_ptrs(a)
    if os.environ.get("CPF", "1") == "1":
        a("s_getpc_b64 s[12:13]", "s_bfe_u32 s14, s2, 0x30003", "s_lshl_b32 s14, s14, 13", "v_lshlrev_b32 v2, 7, v0", "v_subrev_u32 v2, 0xe000, v2",
          "v_add_u32 v2, s14, v2", "v_cmp_le_u32 vcc, 448, v0", "s_cmp_lt_u32 s14, 0x8000", "s_cselect_b64 s[14:15], vcc, 0", "s_cmp_eq_u64 s[14:15], 0",
          "s_cbranch_scc1 L_cpf", "global_load_dword v123, v2, s[12:13]", "L_cpf:")
    wg_decode2(a)
    def early():
        srd(a, 44, 28, 512*2752)
    def setup():
        a("s_lshr_b32 s13, s3, 1", "s_add_u32 s13, s13, 2", "s_min_u32 s43, s13, s3",
          "s_mul_i32 s14, s5, 6", "s_mul_i32 s15, s5, 5", "s_add_u32 s15, s15, 3", "s_min_u32 s14, s14, s15",
          "s_add_u32 s65, s14, s43", "s_lshl_b32 s67, s65, 6")
        a(f"v_lshrrev_b32 v{V_WG}, 2, v1", "s_movk_i32 s13, 2752", f"v_mul_u32_u24 v{V_WG}, s13, v{V_WG}",
          f"v_and_b32 v{V_X}, 3, v1", f"v_lshl_add_u32 v{V_WG}, v{V_X}, 4, v{V_WG}")
        real_addr(a)
        a("s_mov_b32 s60, 0xffff0000", "s_mov_b32 s61, 0xffff0000")
        a("s_and_b32 s70, s3, 1", "s_bfe_u32 s71, s3, 0x10001", "s_lshr_b32 s72, s3, 2")
        a("s_lshl_b32 s12, s72, 16", f"v_add_u32 v{V_LDSKV}, s12, v{V_L16}")
        a("v_and_b32 v40, 27, v1", "v_cmp_eq_u32 vcc, 0, v40", "v_mov_b32 v41, 0x3f803f80", "s_nop 0", f"v_cndmask_b32 v{VV}, 0, v41, vcc",
          f"v_mov_b32 v{VV+1}, v{VV}")
        for i in range(2, 16, 2):
            a(f"v_mov_b64 v[{VV+i}:{VV+i+1}], v[{VV}:{VV+1}]")
    def later_scalars():
        t = A()
        srd(t, 48, 24, 512*1024)
        srd(t, 56, 32, 1376*1024)
        t("s_lshl_b32 s69, s3, 14", "s_lshl_b32 s12, s5, 7", "s_add_u32 s69, s69, s12")
        t("s_lshr_b32 s12, s2, 3", "s_lshl_b32 s12, s12, 3", "s_add_u32 s12, s12, s3", "s_mul_i32 s62, s12, 3")
        t("s_lshl_b32 s63, s4, 1", "s_add_u32 s63, s63, s72", "s_lshl_b32 s63, s63, 5",
          "s_lshl_b32 s12, s5, 2", "s_add_u32 s63, s63, s12", "s_and_b32 s12, s3, 3", "s_add_u32 s63, s63, s12", "s_lshl_b32 s63, s63, 10")
        t("s_lshl_b32 s73, s5, 1", "s_add_u32 s73, s73, s70", "s_lshl_b32 s73, s73, 1", "s_add_u32 s73, s73, s72",
          "s_lshl_b32 s75, s4, 1", "s_add_u32 s75, s75, s71",
          "s_lshl_b32 s74, s75, 15", "s_lshl_b32 s12, s73, 5", "s_add_u32 s74, s74, s12")
        assert OF == 0
        t("s_lshl_b32 s100, s75, 5", "s_add_u32 s100, s100, s73", "s_lshl_b32 s100, s100, 10", f"s_add_u32 s100, s100, {HF:#x}")
        t("s_and_b32 s99, s70, s72",
          "s_lshl_b32 s101, s4, 1", "s_add_u32 s101, s101, s99", "s_mul_i32 s101, s101, 86", "s_lshl_b32 s12, s65, 1", "s_add_u32 s101, s101, s12",
          "s_lshl_b32 s101, s101, 10", f"s_add_u32 s101, s101, {FF:#x}")
        t("s_xor_b32 s64, s72, 1", f"s_mul_i32 s64, s64, {86*1024}", "s_add_u32 s64, s64, s101",
          "s_lshl_b32 s95, s4, 14", "s_lshl_b32 s12, s5, 11", "s_add_u32 s95, s95, s12", "s_lshl_b32 s12, s70, 10", "s_add_u32 s95, s95, s12",
          f"s_add_u32 s95, s95, {STF:#x}")
        return [l.strip() for l in t.lines]
    assert MERGED
    vm = VM(a)
    def after_flags():
        a(f"s_add_u32 s11, s10, {KVF:#x}")
        kv_dma(vm, 0, 0); kv_dma(vm, 0, 1)
    def before_b5():
        kv_dma(vm, 1, 0); kv_dma(vm, 1, 1)
        a("s_cmp_eq_u32 s3, 0", "s_cbranch_scc0 L_fl2", "v_add_u32 v108, 1, v108", "s_mov_b64 exec, 1",
          f"buffer_store_dword v108, v{V_L16}, s[52:55], s82 offen sc1", "s_mov_b64 exec, -1", "L_fl2:")
    prologue_merged(a, early, setup, VQ, after_flags, before_b5)
    a("v_sqrt_f32 v37, v36", "s_waitcnt lgkmcnt(0)")
    a(f"v_cmp_nge_f32 vcc, {f32(SM_THR)}, v37")
    a("s_cmp_eq_u64 vcc, 0", "s_cbranch_scc0 L_k2_slow")
    for i in range(16):
        a(f"v_sub_f32 v{VC+i}, 0, v37")
    vm_pre = vm
    attention(a, vm_pre, False, later_scalars())
    a("L_k2_done:")
    mfma32(a, VO + 16, VV + 8 + 4, VP + 4, VO + 16)
    a("s_setprio 0")
    stamp(a, 12)
    a(f"v_add_u32 v4, s66, v{V_L16}", "s_xor_b32 s13, s66, 0x4000", f"v_add_u32 v5, s13, v{V_L16}",
      "v_lshlrev_b32 v6, 2, v1", "v_add_u32 v7, s13, v6", "v_add_u32 v6, s66, v6")
    a(f"v_subrev_u32 v9, s66, v{V_TR}", "s_lshl_b32 s13, s72, 5", "v_xor_b32 v9, s13, v9",
      "s_lshl_b32 s13, s72, 16", "s_lshl_b32 s14, s70, 14", "s_add_u32 s13, s13, s14", "v_add_u32 v9, s13, v9")
    a(f"ds_write_b128 v4, {vr(VO+24,4)}", f"ds_write_b128 v4, {vr(VO+28,4)} offset:1024", f"ds_write_b32 v6, v{VO+16} offset:2048")
    a("v_and_b32 v10, 31, v1", "v_lshrrev_b32 v11, 5, v1", "v_lshlrev_b32 v11, 4, v11", "v_lshl_or_b32 v10, v10, 10, v11")
    srd(a, 76, 16, 2048*1024)
    a("s_waitcnt vmcnt(0)")
    a("s_mov_b64 exec, 0xff", "s_mov_b32 s13, 0")
    a("L_xc_chk:", f"v_cmp_eq_u32 vcc, 0, v{V_X}", "s_cbranch_vccz L_xc_ok",
      "s_add_u32 s13, s13, 1", f"s_cmp_gt_u32 s13, {SPIN}", "s_cbranch_scc1 L_xc_ok",
      f"buffer_load_dword v{V_X}, v{V_L16}, s[52:55], s68 offen sc1", "s_waitcnt vmcnt(0)", "s_branch L_xc_chk")
    a("L_xc_ok:", f"v_cmp_ne_u32 vcc, s42, v{V_X}", "s_mov_b64 exec, -1", "s_cmp_lg_u64 vcc, 0", "s_cselect_b32 s42, 1, 0")
    if os.environ.get("FORCE_SLOW", "0") == "1":
        a("s_mov_b32 s42, 1")
    a("buffer_load_dwordx4 v[12:15], v10, s[76:79], s74 offen")
    a("v_and_b32 v16, 31, v1", "v_cmp_eq_u32 vcc, 0, v16", "v_cmp_eq_u32 s[14:15], 17, v16", "s_or_b64 vcc, vcc, s[14:15]",
      "v_mov_b32 v55, 0x3f803f80", "s_nop 1", "v_cndmask_b32 v56, 0, v55, vcc", "v_mov_b32 v57, v56", "v_mov_b32 v58, v56", "v_mov_b32 v59, v56")
    a("s_waitcnt lgkmcnt(0)", "s_barrier")
    stamp(a, 13); stamp(a, 60, True)
    a(f"ds_read_b32 v8, v7 offset:2048", f"ds_read_b128 {vr(VS,4)}, v5", f"ds_read_b128 {vr(VS+4,4)}, v5 offset:1024")
    a("s_waitcnt lgkmcnt(2)", f"v_add_f32 v8, v8, v{VO}", "v_rcp_f32 v8, v8", "s_waitcnt lgkmcnt(0)")
    for i in range(8):
        a(f"v_add_f32 v{VO+8+i}, v{VO+8+i}, v{VS+i}")
    for i in range(8):
        a(f"v_mul_f32 v{VO+8+i}, v8, v{VO+8+i}")
    for i in range(4):
        a(f"v_cvt_pk_bf16_f32 v{VP+i}, v{VO+8+2*i}, v{VO+9+2*i}")
    a(f"buffer_store_dwordx4 {vr(VP,4)}, v{V_L16}, s[52:55], s63 offen")
    for p in range(8):
        tr_read(a, 60 + 4 * p, 9, p * 1024)
    a("s_lshl_b32 s13, s71, 16", "s_lshl_b32 s15, s72, 14", "s_add_u32 s13, s13, s15", "s_add_u32 s13, s13, 32768",
      f"v_add_u32 v8, s13, v{V_L16}")
    a("s_lshr_b32 s13, s3, 1", "s_lshl_b32 s13, s13, 10",
      "s_lshl_b32 s15, s4, 16", f"s_add_u32 s15, s15, {OF:#x}", "s_add_u32 s15, s15, s13", "s_lshl_b32 s14, s70, 15", "s_add_u32 s15, s15, s14",
      "s_lshl_b32 s12, s70, 16", "s_add_u32 s12, s12, s13", "s_add_u32 s12, s12, 32768")
    stamp(a, 14)
    def cs_part(k0, k1):
        for kt in range(k0, k1):
            mfma16(a, 40 + 4 * (kt & 1), 56, VW + 4 * kt, None if kt < 2 else 40 + 4 * (kt & 1))
    handoff(a, "x1", 1, lambda: cs_part(0, 16), lambda: cs_part(16, 32))
    stamp(a, 17)
    vm = VM(a); lg = LG(a)
    def o_dma(c):
        for kq in range(2):
            vm.issue(f"o{c}", f"s_add_u32 m0, s12, {(16*kq+4*c)*1024}", f"s_add_u32 s13, s15, {(16*kq+4*c)*1024}",
                     f"buffer_load_dwordx4 v{V_L16}, s[52:55], s13 offen sc1 lds")
    o_dma(0); o_dma(1); o_dma(2)
    a("v_add_f32 v40, v40, v44", "v_add_f32 v41, v41, v45", "v_lshlrev_b32 v42, 2, v1", "v_add_u32 v42, s66, v42",
      "v_add_u32 v54, s66, v11", "s_mov_b64 exec, 0xffff")
    lg.issue("csw", "ds_write2_b32 v42, v40, v41 offset0:192 offset1:208" if False else "ds_write_b32 v42, v40 offset:3072")
    lg.issue("csw", "ds_write_b32 v42, v41 offset:3136")
    a("s_mov_b64 exec, -1")
    steps = []
    for p in range(16):
        steps.append(dict(id=f"o{p}", need=f"o{p//4}", reads=[f"ds_read_b128 {vr(92+4*(p&3),4)}, v8 offset:{p*1024}"],
                          mf=[lambda p=p: mfma32(a, 16, 60 + 4 * (p & 7), 92 + 4 * (p & 3), None if p == 0 else 16)]))
        if p >= 8:
            steps[-1]["pre"] = lambda p=p: lg.wait(f"wo{p}")
    def fill0(p):
        if p < 8:
            lg.issue(f"wo{p+8}", f"ds_read_b64_tr_b16 {vr(60+4*p,2)}, v9 offset:{(8+p)*1024}")
            lg.issue(f"wo{p+8}", f"ds_read_b64_tr_b16 {vr(62+4*p,2)}, v9 offset:{(8+p)*1024+256}")
    stream(a, vm, lg, steps, 4, fill0, 18, lambda k: o_dma(3) if k == 0 else None)
    stamp(a, 22)
    a(f"v_add_u32 v4, s66, v{V_L16}", "s_xor_b32 s13, s66, 0x4000", f"v_add_u32 v5, s13, v{V_L16}")
    a("s_lshl_b32 s15, s4, 14", "s_lshl_b32 s13, s73, 9", "s_add_u32 s15, s15, s13", "s_lshl_b32 s13, s71, 8", "s_add_u32 s15, s15, s13",
      f"s_add_u32 s15, s15, {STF:#x}")
    a("v_mov_b32 v60, 0", "v_mov_b32 v61, 0", "v_lshlrev_b32 v64, 3, v1", "s_nop 0")
    a("ds_write_b128 v4, v[24:27]", "ds_write_b128 v4, v[28:31] offset:1024")
    for i in range(4):
        a(f"v_lshlrev_b32 v32, 16, v{12+i}", f"v_and_b32 v33, 0xffff0000, v{12+i}",
          f"v_add_f32 v{16+2*i}, v{16+2*i}, v32", f"v_add_f32 v{17+2*i}, v{17+2*i}, v33")
    srd(a, 76, 30, 2752)
    a("s_waitcnt lgkmcnt(0)", "s_barrier")
    stamp(a, 23)
    a("ds_read_b128 v[32:35], v5", "ds_read_b128 v[36:39], v5 offset:1024")
    a("buffer_load_dwordx4 v[24:27], v11, s[76:79], s67 offen", "buffer_load_dwordx4 v[28:31], v11, s[76:79], s67 offen offset:32")
    a("s_waitcnt lgkmcnt(0)")
    for i in range(8):
        a(f"v_add_f32 v{16+i}, v{16+i}, v{32+i}")
    for i in range(4):
        a(f"v_cvt_pk_bf16_f32 v{12+i}, v{16+2*i}, v{17+2*i}")
    a(f"buffer_store_dwordx4 v[12:15], v{V_L16}, s[52:55], s100 offen")
    for i in range(4):
        a(f"v_dot2c_f32_bf16 v60, v55, v{12+i}", f"v_dot2c_f32_bf16 v61, v{12+i}, v{12+i}")
    a("s_nop 2", "v_mov_b32 v62, v60", "v_mov_b32 v63, v61", "s_nop 1",
      "v_permlane32_swap_b32 v60, v62", "v_permlane32_swap_b32 v61, v63", "s_nop 1",
      "v_add_f32 v60, v60, v62", "v_add_f32 v61, v61, v63",
      "s_mov_b64 exec, 0xffffffff", "buffer_store_dwordx2 v[60:61], v64, s[52:55], s15 offen", "s_mov_b64 exec, -1")
    a("s_add_u32 s96, s10, 81920",
      "s_lshr_b32 s98, s3, 1", "s_lshl_b32 s97, s98, 14", "s_lshl_b32 s13, s5, 7", "s_add_u32 s97, s97, s13",
      "s_lshl_b32 s13, s70, 6", "s_add_u32 s97, s97, s13")
    a(f"v_subrev_u32 v{V_TR}, s66, v{V_TR}", "s_lshl_b32 s13, s72, 5", f"v_xor_b32 v{V_TR}, s13, v{V_TR}", f"v_add_u32 v{V_TR}, s96, v{V_TR}", f"v_add_u32 v{V_X}, 0x10000, v{V_TR}")
    a("s_lshl_b32 s13, s99, 15", f"v_add_u32 v7, s13, v{V_L16}",
      "v_and_b32 v8, 31, v1", "v_lshlrev_b32 v8, 3, v8", "v_lshl_add_u32 v8, v11, 9, v8",
      "s_lshl_b32 s13, s99, 8", "s_add_u32 s13, s13, 65536", "v_add_u32 v8, s13, v8",
      "v_and_b32 v9, 31, v1", "v_lshlrev_b32 v9, 4, v9", "s_lshl_b32 s13, s99, 10", "v_add_u32 v9, s13, v9")
    a("s_lshl_b32 s15, s4, 16", f"s_add_u32 s15, s15, {HF:#x}", "s_add_u32 s15, s15, s10")
    a("s_lshl_b32 s12, s4, 14", f"s_add_u32 s12, s12, {STF:#x}", "s_add_u32 s12, s12, s10")
    stamp(a, 24)
    def sh2():
        a("v_mov_b32 v39, v54")
        for q in range(4):
            a(f"ds_read_b128 {vr(40+4*q,4)}, v39 offset:{3072+32*q}")
    def sh2b():
        for i in range(NA):
            a(f"s_add_u32 m0, s96, {i*8192}", f"s_add_u32 s14, s97, {i*65536}", f"buffer_load_dwordx4 v{V_W2G}, s[56:59], s14 offen lds")
        for i in range(8):
            a(f"v_lshlrev_b32 v{64+2*i}, 16, v{24+i}", f"v_and_b32 v{65+2*i}, 0xffff0000, v{24+i}")
    handoff(a, "x2", 2, sh2, sh2b)
    stamp(a, 27)
    PK = os.environ.get("PK", "0") == "1"
    BW = 96
    ST0, ST1 = 32, 112
    def P2(r): return f"v[{r}:{r+1}]"
    def stats_fillers(addr, st):
        m, q = st + 6, st + 7
        F = []
        def add2(d, x, y):
            if PK: return [f"v_pk_add_f32 {P2(d)}, {P2(x)}, {P2(y)}"]
            return [f"v_add_f32 v{d}, v{x}, v{y}", f"v_add_f32 v{d+1}, v{x+1}, v{y+1}"]
        for b in range(2):
            F.append(("lds", [(f"st{st}_{b}", f"ds_read2st64_b64 {vr(80+4*i,4)}, v{addr} offset0:{8*b+2*i} offset1:{8*b+2*i+1}") for i in range(4)]))
            F.append(("nop",))
            ops = []
            for i in range(4):
                ops += add2(80 + 4 * i, 80 + 4 * i, 82 + 4 * i)
            F.append(("valu", f"st{st}_{b}", ops))
            ops = add2(80, 80, 84) + add2(88, 88, 92)
            if b == 0:
                ops += add2(m, 80, 88)
                F.append(("valu", None, ops))
            else:
                ops += add2(80, 80, 88) + add2(m, m, 80) + [f"v_mov_b32 v{st}, v{m}", f"v_mov_b32 v{st+1}, v{q}"]
                F.append(("valu", None, ops))
                ops = [f"v_permlane32_swap_b32 v{m}, v{st}", f"v_permlane32_swap_b32 v{q}, v{st+1}", "s_nop 1"] + add2(m, m, st) + \
                      [f"v_mul_f32 v{m}, {f32(1/512)}, v{m}", f"v_mul_f32 v{q}, {f32(1/512)}, v{q}",
                       f"v_fma_f32 v{q}, -v{m}, v{m}, v{q}", f"v_max_f32 v{q}, 0, v{q}", f"v_add_f32 v{q}, {f32(1e-5)}, v{q}"]
                F.append(("valu", None, ops))
                ops = [f"v_rsq_f32 v{st+1}, v{q}", f"v_sqrt_f32 v{st+4}, v{q}",
                       f"v_mul_f32 v{st+2}, {f32(GK1)}, v{st+1}",
                       f"v_mul_f32 v{st+3}, v{st+1}, v{st+1}", f"v_mul_f32 v{st+3}, {f32(0.044715)}, v{st+3}",
                       f"v_mul_f32 v{st}, v{st+2}, v{st+3}"]
                F.append(("valu", None, ops))
        return F
    def cinit(dst, st):
        F = []
        for h in range(4):
            if PK:
                ops = [f"v_pk_mul_f32 {P2(dst+i)}, {P2(64+i)}, {P2(st+4)} op_sel_hi:[1,0]" for i in range(4*h, 4*h+4, 2)]
                ops += [f"v_pk_fma_f32 {P2(dst+i)}, {P2(st+6)}, {P2(40+i)}, {P2(dst+i)} op_sel_hi:[0,1,1] neg_lo:[1,0,0] neg_hi:[1,0,0]" for i in range(4*h, 4*h+4, 2)]
            else:
                ops = [f"v_mul_f32 v{dst+i}, v{64+i}, v{st+4}" for i in range(4*h, 4*h+4)]
                ops += [f"v_fma_f32 v{dst+i}, -v{st+6}, v{40+i}, v{dst+i}" for i in range(4*h, 4*h+4)]
            F.append(("valu", None, ops))
        return F
    vm0 = VM(a)
    def h_dma(vm, c):
        for rt in range(2):
            vm.issue(f"h{c}", f"s_add_u32 m0, s10, {rt*32768 + c*8192}", f"s_add_u32 s13, s15, {rt*32768 + c*8192}",
                     f"buffer_load_dwordx4 v{V_L16}, s[52:55], s13 offen sc1 lds")
    FB = os.environ.get("FB", "1") == "1"
    h_dma(vm0, 0)
    for i in range(2):
        vm0.issue("h0", f"s_add_u32 m0, s10, {65536 + i*8192}", f"s_add_u32 s13, s12, {i*8192}",
                  f"buffer_load_dwordx4 v{V_L16}, s[52:55], s13 offen sc1 lds")
    if FB: a("s_barrier")
    h_dma(vm0, 1)
    a("s_cmp_ge_u32 s3, 4", "s_cbranch_scc1 L_f1_s")
    SPRIO = int(os.environ.get("SPRIO", "1"))
    for cls in ("L", "S"):
        vm = VM(a); vm.ops = list(vm0.ops); lg = LG(a)
        if cls == "S":
            a("L_f1_s:", f"s_setprio {SPRIO}")
        def w2_dma(i):
            vm.issue(f"w2_{i}", f"s_add_u32 m0, s96, {(i%10)*8192}", f"s_add_u32 s13, s97, {i*65536}",
                     f"buffer_load_dwordx4 v{V_W2G}, s[56:59], s13 offen lds")
        def readout(i, wait=True):
            if wait: vm.wait(f"w2_{i}")
            ar, of = slot_addr(i)
            lg.issue(f"r{i}", f"ds_read_b64_tr_b16 {vr(VW+4*i,2)}, v{ar} offset:{of}")
            lg.issue(f"r{i}", f"ds_read_b64_tr_b16 {vr(VW+4*i+2,2)}, v{ar} offset:{of+256}")
        def on_sync(k):
            if k == 0:
                h_dma(vm, 2); h_dma(vm, 3)
        def run(f):
            if f[0] == "lds":
                for tag, ins in f[1]: lg.issue(tag, ins)
            elif f[0] == "valu":
                if f[1]: lg.wait(f[1])
                a(*f[2])
            elif f[0] == "fn":
                f[1]()
        steps = []
        for kt in range(32):
            need = "h0" if kt < 8 else ("h1" if kt < 16 else "h3")
            steps.append(dict(id=f"b{kt}", need=need, reads=[f"ds_read_b128 {vr(BW+4*(kt&3),4)}, v7 offset:{kt*1024}"],
                              mf=[lambda kt=kt: mfma32(a, 16, VW + 4 * kt, BW + 4 * (kt & 3), None if kt == 0 else 16)]))
        if cls == "L":
            for kt in range(32):
                steps.append(dict(id=f"c{kt}", need=None, reads=[f"ds_read_b128 {vr(BW+4*(kt&3),4)}, v7 offset:{32768+kt*1024}"],
                                  mf=[lambda kt=kt: mfma32(a, 80, VW + 4 * kt, BW + 4 * (kt & 3), 80)]))
            fill = [("lds", [("rc", f"ds_read_b128 {vr(ST0,4)}, v9"), ("rc", f"ds_read_b128 {vr(ST0+4,4)}, v9 offset:512"),
                             ("rc", f"ds_read_b128 {vr(ST1,4)}, v9 offset:1024"), ("rc", f"ds_read_b128 {vr(ST1+4,4)}, v9 offset:1536")]),
                    ("nop",), ("nop",), ("valu", "rc", ["s_nop 0"])] + cinit(80, ST1) + cinit(64, ST0)
            G = [("v", x) for x in gelu_ops(16, 40, 8, 64, ST0, PK)] + [("st", f"buffer_store_dwordx4 v[40:43], v{V_L16}, s[52:55], s101 offen")] + \
                [("v", x) for x in gelu_ops(24, 48, 8, 72, ST0, PK)] + [("st", f"buffer_store_dwordx4 v[48:51], v{V_L16}, s[52:55], s101 offen offset:1024")]
            r1 = list(range(NA, 10)); r2 = list(range(10, 22 - NL))
            def fillers(n):
                if n >= 13 and (n - 13) % 3 == 0 and r1:
                    w2_dma(r1.pop(0))
                if n >= 13 and fill:
                    run(fill.pop(0))
                kt = n - 32
                if 0 <= kt < 10: readout(kt, kt >= NA)
                if kt >= 5 and (kt - 5) % 2 == 0 and r2:
                    assert r2[0] - 10 <= kt - 5
                    w2_dma(r2.pop(0))
                if kt >= 3:
                    per = 4 if kt < 10 else 5
                    for _ in range(per):
                        if G:
                            k, ins = G.pop(0)
                            if k == "v": a(ins)
                            else: vm.issue("fst", ins)
                if n == 31: stamp(a, 34)
            stream(a, vm, lg, steps, 4, fillers, 29, on_sync)
            assert not fill and not G
            stamp(a, 35)
            a(f"s_add_u32 s15, s101, {86*1024}")
            assert not r1 and not r2
            vm.wait(f"w2_{21-NL}")
            for i in range(10, 16): readout(i, False)
            a(*gelu_ops(80, 16, 16, None, ST1, pk=True))
            vm.issue("fst", f"buffer_store_dwordx4 v[16:19], v{V_L16}, s[52:55], s15 offen")
            vm.issue("fst", f"buffer_store_dwordx4 v[20:23], v{V_L16}, s[52:55], s15 offen offset:1024")
            for i in range(16, 22 - NL): readout(i, False)
            a("s_branch L_f1_done")
        else:
            fill = stats_fillers(8, ST0) + [("lds", [("rcw", f"ds_write_b128 v9, {vr(ST0,4)}"), ("rcw", f"ds_write_b128 v9, {vr(ST0+4,4)} offset:512")]),
                                            ("fn", lambda: lg.wait("rcw"))]
            assert len(fill) == 12
            fill2 = cinit(64, ST0)
            r1 = list(range(NA, 10))
            def fillers(n):
                if fill: run(fill.pop(0))
                elif n >= 13 and fill2: run(fill2.pop(0))
                if n >= 13 and (n - 13) % 2 == 0 and r1:
                    w2_dma(r1.pop(0))
                if 27 <= n < 32:
                    if 2 * (n - 27) + 1 >= NA: vm.wait(f"w2_{2*(n-27)+1}")
                    readout(2 * (n - 27), False); readout(2 * (n - 27) + 1, False)
            stream(a, vm, lg, steps, 4, fillers, 29, on_sync)
            assert not fill and not fill2
            stamp(a, 34)
            a("s_setprio 0")
            lg.wait("r9")
            a("s_nop 5")
            gl = gelu_ops(16, 40, 16, 64, ST0, PK)
            r2 = list(range(10, 22 - NL))
            for n, ins in enumerate(gl):
                if n % 12 == 0 and r2: w2_dma(r2.pop(0))
                a(ins)
            assert not r2
            a("s_cmp_eq_u32 s43, 5", "s_cselect_b32 s13, s5, 0", "s_cmp_ge_u32 s13, 3", "s_cselect_b32 s13, s55, s101", "s_cselect_b32 s14, s54, 0", "s_add_u32 s13, s13, s14")
            vm.issue("fst", f"buffer_store_dwordx4 v[40:43], v{V_L16}, s[52:55], s13 offen")
            vm.issue("fst", f"buffer_store_dwordx4 v[44:47], v{V_L16}, s[52:55], s13 offen offset:1024")
            stamp(a, 35)
            vm.wait(f"w2_{21-NL}")
            for i in range(10, 22 - NL):
                readout(i, False)
    a("L_f1_done:")
    srd(a, 76, 34, 1024)
    a("s_lshl_b32 s13, s73, 5", "buffer_load_dwordx4 v[48:51], v11, s[76:79], s13 offen")
    a("s_lshl_b32 s13, s71, 13", "s_lshl_b32 s14, s98, 10", "s_add_u32 s13, s13, s14", f"v_add_u32 v52, s13, v{V_L16}",
      "v_xor_b32 v60, 0x2000, v52")
    for b in (1, 2):
        a(f"v_add_u32 v{52+b}, {b*65536:#x}, v52", f"v_add_u32 v{60+b}, {b*65536:#x}, v60")
    a("s_mul_i32 s15, s4, 176128", f"s_add_u32 s15, s15, {FF:#x}", "s_add_u32 s15, s15, s10")
    stamp(a, 36)
    def sh3():
        for i in range(22 - NL, 22):
            a(f"s_add_u32 m0, s96, {(i%10)*8192}", f"s_add_u32 s14, s97, {i*65536}", f"buffer_load_dwordx4 v{V_W2G}, s[56:59], s14 offen lds")
    handoff(a, "x3", 3, None, sh3)
    stamp(a, 38); stamp(a, 61, True)
    vm = VM(a); lg = LG(a)
    def f_dma(c):
        for rt in range(2):
            vm.issue(f"f{c}", f"s_add_u32 m0, s10, {(c%10)*16384 + rt*8192}", f"s_add_u32 s13, s15, {rt*86*1024 + c*8192}",
                     f"buffer_load_dwordx4 v{V_L16}, s[52:55], s13 offen sc1 lds")
    NF0 = 3
    for c in range(NF0):
        f_dma(c)
        if c == 0 and FB: a("s_barrier")
    for i in range(22 - NL, 22):
        tr_read(a, VW + 4 * i, *slot_addr(i))
    needs = {c: c for c in range(11)}
    WIN = 2
    steps = []
    for i in range(22):
        c, h = i >> 1, i & 1
        sl = c % 10
        off = (sl & 3) * 16384 + h * 4096
        rb = 64 + 8 * (i % (WIN + 1)) if False else 64 + 8 * (i % WIN)
        st = dict(id=f"x{i}", need=f"f{needs[c]}",
                  reads=[f"ds_read_b128 {vr(rb+4*s,4)}, v{(52,60)[s]+sl//4} offset:{off}" for s in range(2)],
                  mf=[lambda i=i, s=s, rb=rb: mfma32(a, 16 + 16 * s, VW + 4 * i, rb + 4 * s, None if i == 0 else 16 + 16 * s) for s in range(2)])
        if i == 21:
            st["pre"] = lambda: a("s_waitcnt lgkmcnt(0)", "s_cmp_ge_u32 s98, 2", "s_cbranch_scc1 L_f2_skip")
        steps.append(st)
    stream(a, vm, lg, steps, WIN, lambda n: None, 40, lambda k: f_dma(k + NF0) if k + NF0 < 11 else None)
    a("L_f2_skip:")
    stamp(a, 51)
    a("s_mul_i32 s13, s3, 6144", "s_add_u32 s13, s13, 16384", f"v_add_u32 v4, s13, v{V_L16}")
    for sg in (1, 2, 3):
        a(f"s_xor_b32 s14, s3, {sg<<1}", "s_mul_i32 s14, s14, 6144", f"s_add_u32 s14, s14, {16384+(sg-1)*2048}", f"v_add_u32 v{4+sg}, s14, v{V_L16}")
    octs = {1: 32, 2: 24, 3: 40}
    for sg in (2, 1, 3):
        a(f"ds_write_b128 v4, {vr(octs[sg],4)} offset:{(sg-1)*2048}", f"ds_write_b128 v4, {vr(octs[sg]+4,4)} offset:{(sg-1)*2048+1024}")
    srd(a, 76, 36, 2048*1024)
    for src in (12, 48):
        for i in range(4):
            a(f"v_lshlrev_b32 v60, 16, v{src+i}", f"v_and_b32 v61, 0xffff0000, v{src+i}",
              f"v_add_f32 v{16+2*i}, v{16+2*i}, v60", f"v_add_f32 v{17+2*i}, v{17+2*i}, v61")
    a("s_waitcnt lgkmcnt(0)", "s_barrier")
    for sg in (1, 2, 3):
        a(f"ds_read_b128 {vr(56+8*sg,4)}, v{4+sg}", f"ds_read_b128 {vr(60+8*sg,4)}, v{4+sg} offset:1024")
    for sg in (1, 2, 3):
        a(f"s_waitcnt lgkmcnt({2*(3-sg)})")
        for i in range(8):
            a(f"v_add_f32 v{16+i}, v{16+i}, v{56+8*sg+i}")
    for i in range(4):
        a(f"v_cvt_pk_bf16_f32 v{24+i}, v{16+2*i}, v{17+2*i}")
    a("buffer_store_dwordx4 v[24:27], v10, s[76:79], s74 offen")
    stamp(a, 52)
    if STAMP: a("s_waitcnt vmcnt(0)")
    stamp(a, 62); stamp(a, 63, True)
    stamp_flush(a, 0, 8)
    a(f"{Lend}:", "s_endpgm")
    a("L_k2_slow:")
    a(f"s_mov_b32 s15, {KVF:#x}", f"v_mov_b32 v{VC}, {f32(-3.0e38)}", f"v_mov_b32 v{VC+1}, {f32(-3.0e38)}")
    a("L_k2_mx:")
    a(f"buffer_load_dwordx4 {vr(VK,4)}, v{V_L16}, s[52:55], s15 offen sc1", "s_waitcnt vmcnt(0)")
    mfma32(a, VS, VK, VQ, None)
    mfma32(a, VS + 16, VK, VQ + 4, None)
    a("s_nop 7", "s_nop 4")
    for t in range(2):
        for i in range(8):
            a(f"v_max3_f32 v{VC+t}, v{VS+16*t+2*i}, v{VS+16*t+2*i+1}, v{VC+t}")
    a("s_add_u32 s15, s15, 2048", f"s_cmp_lt_u32 s15, {KVF+64*2048:#x}", "s_cbranch_scc1 L_k2_mx")
    a(f"v_mov_b32 v{VC+2}, v{VC}", f"v_mov_b32 v{VC+3}, v{VC+1}", "s_nop 1",
      f"v_permlane32_swap_b32 v{VC}, v{VC+2}", f"v_permlane32_swap_b32 v{VC+1}, v{VC+3}", "s_nop 1",
      f"v_max_f32 v{VC}, v{VC}, v{VC+2}", f"v_max_f32 v{VC+1}, v{VC+1}, v{VC+3}")
    attention(a, vm_pre, True, later_scalars())
    a("s_branch L_k2_done")
    return a.text() + kernel_desc(name, 256, nsgpr=102), f"; @launch grid=(256,1,1) block=(512,1,1) lds={LDS}"
```

```python
from lib import *
from k1 import sigma_lane, QSCALE
from k1b import rstd, halves_sum
import os
FSH = int(os.environ.get('FSH', '5'))
KFL = 0x240000
L_STG = 131072
SPIN = 1 << 20

def prologue_merged(a, early, setup, VQ, after_flags, before_b5):
    NW = int(os.environ.get("NW", "3")); NE = int(os.environ.get("NE", "1")); NM = int(os.environ.get("NM", "2"))
    a("v_lshrrev_b32 v4, 3, v1", "v_and_b32 v5, 7, v1",
      "v_lshrrev_b32 v10, 1, v4", "v_xor_b32 v10, v10, v5", "v_lshlrev_b32 v10, 4, v10", "v_lshl_or_b32 v6, v4, 10, v10",
      "v_xor_b32 v7, 64, v6",
      "v_bfe_u32 v10, v4, 1, 1", "v_lshlrev_b32 v10, 2, v10", "v_xor_b32 v10, v10, v5", "v_lshlrev_b32 v10, 4, v10",
      "v_lshl_or_b32 v8, v4, 10, v10",
      "v_lshlrev_b32 v3, 4, v1", f"v_lshlrev_b32 v111, {FSH}, v1")
    a("s_and_b32 s96, s5, 6",
      "s_lshl_b32 s7, s4, 16", "s_lshl_b32 s8, s3, 7", "s_add_u32 s7, s7, s8",
      "s_lshl_b32 s8, s3, 13",
      "s_lshl_b32 s66, s3, 12", f"s_add_u32 s66, s66, {L_STG}",
      "s_lshl_b32 s9, s5, 7", "s_lshr_b32 s6, s2, 6", "s_lshl_b32 s6, s6, 4", "s_add_u32 s6, s6, s3", "s_add_u32 s6, s6, 63",
      "s_lshl_b32 s10, s3, 10", "s_lshl_b32 s11, s3, 11",
      "s_lshl_b32 s68, s4, 10", f"s_add_u32 s68, s68, {FLAGS:#x}",
      "s_getreg_b32 s42, hwreg(HW_REG_XCC_ID)", "s_and_b32 s42, s42, 15", "s_add_u32 s42, s42, 1",
      "s_mov_b32 m0, s66", f"s_mov_b32 s90, {512*32}", "s_mov_b32 s91, 0x00020000", f"s_mov_b32 s78, {2048*1024}", "s_mov_b32 s79, 0x00020000")
    a("s_bitcmp1_b32 s5, 0", "s_cbranch_scc1 L_p_wv", "s_waitcnt lgkmcnt(0)", "s_mov_b32 s88, s20", "s_and_b32 s89, s21, 0xffff", "s_branch L_p_w")
    a("L_p_wv:", "s_waitcnt lgkmcnt(0)", "s_mov_b32 s88, s22", "s_and_b32 s89, s23, 0xffff")
    a("L_p_w:")
    stamp(a, 2)
    def x_dma(i):
        a(f"s_xor_b32 s13, s96, {i}", "s_lshl_b32 s14, s13, 10", "s_add_u32 m0, s8, s14", "s_lshl_b32 s13, s13, 13", "s_add_u32 s13, s13, s7",
          f"buffer_load_dwordx4 v{6+(i&1)}, s[76:79], s13 offen lds")
    def wq_dma(i):
        a(f"s_add_u32 s13, s6, {7*i}", "s_and_b32 s13, s13, 63", "s_lshl_b32 s14, s13, 10", "s_add_u32 m0, s14, 65536",
          "s_lshl_b32 s13, s13, 13", "s_add_u32 s13, s13, s9", "buffer_load_dwordx4 v8, s[84:87], s13 offen lds")
    a("buffer_load_dwordx4 v3, s[88:91], s11 offen lds", "buffer_load_dwordx4 v3, s[88:91], s11 offen offset:1024 lds")
    a("s_mov_b32 s76, s16", "s_and_b32 s77, s17, 0xffff")
    x_dma(0); x_dma(1)
    srd(a, 52, 40, WS_BYTES)
    srd(a, 84, 18, 512*1024)
    a("s_barrier")
    a("s_cmp_eq_u32 s3, 0", "s_cbranch_scc1 L_p_m0", "s_cmp_lt_u32 s3, 3", "s_cbranch_scc1 L_p_m1", "s_cmp_eq_u32 s3, 3", "s_cbranch_scc1 L_p_m3")
    a("s_sub_u32 s82, s3, 4", f"s_lshl_b32 s82, s82, {6+FSH}", f"s_add_u32 s82, s82, {KFL:#x}",
      "buffer_load_dword v108, v111, s[52:55], s82 offen sc1", "s_branch L_p_m1")
    a("L_p_m3:", "v_add_u32 v11, 1, v4", "v_lshlrev_b32 v11, 8, v11", "v_lshl_or_b32 v11, v5, 2, v11", "s_lshl_b32 s13, s5, 5", "v_add_u32 v11, s13, v11",
      "s_lshl_b32 s13, s5, 4", "v_mov_b32 v12, s13", "v_mov_b32 v13, s42", "v_cmp_eq_u32 vcc, 24, v1", "s_nop 1",
      "v_cndmask_b32 v11, v11, v12, vcc", "v_cndmask_b32 v108, 0, v13, vcc", "s_mov_b64 exec, 0x1ffffff",
      "buffer_store_dword v108, v11, s[52:55], s68 offen sc1", "s_mov_b64 exec, -1")
    a("L_p_m1:")
    for i in range(NE): wq_dma(i)
    a("s_branch L_p_md")
    a("L_p_m0:", f"s_lshl_b32 s82, s2, {FSH}", f"s_add_u32 s82, s82, {KFL:#x}", "s_mov_b64 exec, 1",
      "buffer_load_dword v108, v3, s[52:55], s82 offen sc1", "s_mov_b64 exec, -1", "s_setprio 3")
    for i in range(5, 5 + NE): x_dma(i)
    assert NW == 3
    a("L_p_md:")
    KW, KX, KA = 128, 136, 144
    a("v_and_b32 v12, 15, v1", "v_lshrrev_b32 v13, 4, v1",
      "s_lshl_b32 s13, s96, 3", "v_add_u32 v14, s13, v12",
      "v_bfe_u32 v15, v14, 1, 3", "v_xor_b32 v15, v15, v13", "v_lshlrev_b32 v14, 7, v14", "v_lshl_or_b32 v14, v15, 4, v14",
      "v_add_u32 v14, s8, v14", "v_xor_b32 v15, 64, v14",
      "v_lshlrev_b32 v16, 3, v12", "v_lshl_or_b32 v16, v13, 8, v16", "v_add_u32 v16, s66, v16",
      "v_add_u32 v17, s66, v3",
      f"v_mov_b64 v[{KA+4}:{KA+5}], 0", f"v_mov_b64 v[{KA+6}:{KA+7}], 0", "s_mov_b32 s83, 0x3f803f80",
      "v_lshlrev_b32 v18, 4, v13", "v_mov_b32 v109, 0")
    a("s_lshl_b32 s13, s4, 1", "s_lshr_b32 s14, s5, 2", "s_add_u32 s13, s13, s14", "s_lshl_b32 s13, s13, 11", f"s_add_u32 s97, s13, {KVF:#x}",
      "s_bfe_u32 s14, s5, 0x10001", "s_lshl_b32 s14, s14, 8", "s_bitcmp1_b32 s5, 0", "s_cbranch_scc1 L_p_av")
    a("s_add_u32 s97, s97, s14",
      "v_lshrrev_b32 v19, 1, v13", "v_lshlrev_b32 v19, 9, v19", "v_lshl_or_b32 v19, v12, 4, v19", "v_and_b32 v10, 1, v13", "v_lshl_or_b32 v19, v10, 3, v19",
      "s_branch L_p_ad", "L_p_av:")
    sigma_lane(a, 19, 12, 10)
    a("s_xor_b32 s14, s14, 256", "s_add_u32 s97, s97, s14", "s_add_u32 s97, s97, 1024",
      "v_lshlrev_b32 v19, 4, v19", "v_and_b32 v10, 1, v13", "v_lshl_or_b32 v19, v10, 3, v19", "v_lshrrev_b32 v10, 1, v13", "v_lshl_or_b32 v19, v10, 9, v19")
    a("L_p_ad:")
    XA, WA = 112, 116
    early()
    setup()
    a("v_and_b32 v4, 31, v1", "v_lshrrev_b32 v5, 5, v1", "v_bfe_u32 v11, v4, 1, 3", "v_xor_b32 v11, v11, v5",
      "s_mul_i32 s12, s72, 4160", "s_lshl_b32 s15, s70, 15", "s_add_u32 s12, s12, s15",
      "v_lshlrev_b32 v11, 4, v11", "v_lshl_or_b32 v11, v4, 7, v11", f"v_xor_b32 v{XA}, s12, v11")
    for j in range(1, 4):
        a(f"v_xor_b32 v{XA+j}, {32*j}, v{XA}")
    a("v_bfe_u32 v10, v1, 4, 1", "v_and_b32 v11, 1, v1", "v_lshl_or_b32 v10, v10, 1, v11",
      "v_bfe_u32 v11, v1, 3, 1", "v_lshl_or_b32 v10, v11, 2, v10", "v_lshlrev_b32 v10, 4, v10",
      "v_bfe_u32 v11, v1, 1, 1", "v_lshl_or_b32 v10, v11, 3, v10",
      "v_bfe_u32 v11, v1, 2, 2", "v_lshl_or_b32 v10, v11, 7, v10", "v_lshl_or_b32 v10, v5, 10, v10",
      "s_lshl_b32 s13, s70, 5", "s_add_u32 s15, s15, s13", "s_lshl_b32 s13, s71, 6", "s_add_u32 s15, s15, s13",
      "s_lshl_b32 s13, s72, 12", "s_add_u32 s15, s15, s13", "s_add_u32 s15, s15, 65536", f"v_xor_b32 v{WA}, s15, v10")
    for j in range(1, 4):
        a(f"v_xor_b32 v{WA+j}, {2048*j}, v{WA}")
    a("s_lshl_b32 s13, s72, 8", f"s_add_u32 s13, s13, {L_STG}", "v_lshl_add_u32 v104, v4, 3, s13",
      "v_lshl_add_u32 v106, v1, 2, s66",
      "s_lshl_b32 s13, s71, 13", "s_lshl_b32 s14, s70, 6", "s_add_u32 s13, s13, s14", f"s_add_u32 s13, s13, {L_STG}", "v_lshl_add_u32 v105, v5, 4, s13",
      "v_xor_b32 v107, 64, v105",
      "v_xor_b32 v110, 0x4000, v17", "v_xor_b32 v103, 0x1000, v17", "v_xor_b32 v102, 0x4000, v106", "v_lshl_add_u32 v101, v1, 3, s66",
      "v_bfe_u32 v9, v1, 1, 3", "v_lshlrev_b32 v9, 4, v9", "v_lshl_or_b32 v9, v1, 7, v9", "v_add_u32 v9, s8, v9",
      "s_lshl_b32 s13, s3, 4", f"s_add_u32 s13, s13, {L_STG+640-64}", "v_lshl_add_u32 v100, v13, 2, s13",
      f"s_mov_b32 s13, {L_STG+640}", "v_lshl_add_u32 v95, v12, 2, s13",
      "v_cmp_eq_u32 vcc, 0, v4", "v_cmp_eq_u32 s[12:13], 17, v4", "s_or_b64 vcc, vcc, s[12:13]", "v_mov_b32 v10, s83", "v_mov_b64 v[96:97], 0",
      "v_cndmask_b32 v120, 0, v10, vcc", "v_mov_b32 v121, v120", "v_mov_b32 v122, v120",
      "v_mov_b64 v[98:99], 0", "v_mov_b32 v36, 0")
    stamp(a, 3)
    a("s_cmp_eq_u32 s3, 0", "s_cbranch_scc1 L_p_r0")
    for i in range(NE, NW): wq_dma(i)
    a("s_branch L_p_r1", "L_p_r0:")
    for i in range(5 + NE, 8): x_dma(i)
    a("L_p_r1:")
    a("s_sub_u32 s13, s3, 1", "s_cmp_lt_u32 s13, 2", "s_cbranch_scc0 L_p_w3", f"s_waitcnt vmcnt({NW})", "L_p_w3:", f"s_waitcnt vmcnt({NW+1})")
    stamp(a, 56)
    for kt in range(2):
        for e in range(2):
            a(f"ds_read_b64_tr_b16 {vr(KW+4*kt+2*e,2)}, v16 offset:{kt*1024+e*128}")
    a(f"ds_read_b128 {vr(KX,4)}, v14", f"ds_read_b128 {vr(KX+4,4)}, v15")
    for i in range(2, 5): x_dma(i)
    a("v_mov_b32 v123, v120", "s_waitcnt lgkmcnt(0)")
    a("s_bitcmp1_b32 s5, 0", "s_cbranch_scc1 L_p_mv")
    mfma16(a, KA, KW, KX, None); mfma16(a, KA, KW + 4, KX + 4, KA)
    a("s_branch L_p_mk", "L_p_mv:")
    mfma16(a, KA, KX, KW, None); mfma16(a, KA, KX + 4, KW + 4, KA)
    a("L_p_mk:")
    for e in range(8):
        a(f"v_dot2c_f32_bf16 v{KA+4}, s83, v{KX+e}", f"v_dot2c_f32_bf16 v{KA+5}, v{KX+e}, v{KX+e}", f"v_dot2c_f32_bf16 v{KA+6}, s83, v{KW+e}")
    a(f"ds_write_b128 v17, {vr(KA,4)} offset:2048", "s_nop 1", f"ds_write_b128 v17, {vr(KA+4,4)} offset:3072")
    a(f"s_waitcnt vmcnt({NW+3}) lgkmcnt(0)", "s_barrier")
    stamp(a, 57)
    a("s_cmp_eq_u32 s3, 0", "s_cbranch_scc1 L_p_fin")
    for i in range(5, 8): x_dma(i)
    for i in range(NW, NW + NM): wq_dma(i)
    a("s_barrier")
    for i in range(NW + NM, 9): wq_dma(i)
    a("s_cmp_eq_u32 s3, 1", "s_cbranch_scc0 L_p_n9")
    wq_dma(9)
    a("L_p_n9:", f"s_waitcnt vmcnt({9-NW})", "s_branch L_p_q")
    a("L_p_fin:")
    for w in range(1, 8):
        a(f"ds_read_b128 {vr(KA+8*w,4)}, v17 offset:{w*4096+2048}", f"ds_read_b128 {vr(KA+4+8*w,4)}, v17 offset:{w*4096+3072}")
    a("v_add_u32 v108, 1, v108")
    for w in range(1, 8):
        a(f"s_waitcnt lgkmcnt({2*(7-w)})")
        for i in range(0, 8, 2):
            a(f"v_pk_add_f32 v[{KA+i}:{KA+1+i}], v[{KA+i}:{KA+1+i}], v[{KA+8*w+i}:{KA+1+8*w+i}]")
    M, R, C, T = KA + 4, KA + 5, KA + 6, KA + 8
    for swp in ("v_permlane32_swap_b32", "v_permlane16_swap_b32"):
        a(f"v_mov_b32 v{T}, v{M}", f"v_mov_b32 v{T+1}, v{R}", f"v_mov_b32 v{T+2}, v{C}", "s_nop 0",
          f"{swp} v{M}, v{T}", f"{swp} v{R}, v{T+1}", f"{swp} v{C}, v{T+2}", "s_nop 0",
          f"v_add_f32 v{M}, v{M}, v{T}", f"v_add_f32 v{R}, v{R}, v{T+1}", f"v_add_f32 v{C}, v{C}, v{T+2}")
    a("s_bitcmp1_b32 s5, 0", "s_cbranch_scc1 L_p_fv")
    for i in range(4):
        a(f"ds_bpermute_b32 v{T+i}, v18, v{C} offset:{4*i}")
    rstd(a, M, R)
    a("s_waitcnt lgkmcnt(0)")
    for i in range(4):
        a(f"v_fma_f32 v{KA+i}, -v{M}, v{T+i}, v{KA+i}")
    for i in range(4):
        a(f"v_mul_f32 v{KA+i}, v{R}, v{KA+i}")
    a(f"v_cvt_pk_bf16_f32 v12, v{KA}, v{KA+1}", f"v_cvt_pk_bf16_f32 v13, v{KA+2}, v{KA+3}")
    a("buffer_store_dwordx2 v[12:13], v19, s[52:55], s97 offen sc1", "s_barrier")
    a("v_dot2c_f32_bf16 v109, v12, v12", "v_dot2c_f32_bf16 v109, v13, v13", "s_nop 2")
    halves_sum(a, 109, 11)
    a("v_mov_b32 v11, v109", "s_nop 1", "v_permlane16_swap_b32 v109, v11", "s_nop 1", "v_add_f32 v109, v109, v11")
    for sh in (8, 4, 2, 1):
        a("s_nop 1", f"v_max_f32_dpp v109, v109, v109 row_ror:{sh} row_mask:0xf bank_mask:0xf")
    a("s_branch L_p_pub")
    a("L_p_fv:")
    rstd(a, M, R)
    a("s_nop 0")
    for i in range(4):
        a(f"ds_bpermute_b32 v{T+i}, v18, v{M} offset:{4*i}", f"ds_bpermute_b32 v{T+4+i}, v18, v{R} offset:{4*i}")
    a("s_waitcnt lgkmcnt(0)")
    for i in range(4):
        a(f"v_fma_f32 v{KA+i}, -v{T+i}, v{C}, v{KA+i}")
    for i in range(4):
        a(f"v_mul_f32 v{KA+i}, v{T+4+i}, v{KA+i}")
    a(f"v_cvt_pk_bf16_f32 v12, v{KA}, v{KA+1}", f"v_cvt_pk_bf16_f32 v13, v{KA+2}, v{KA+3}")
    a("buffer_store_dwordx2 v[12:13], v19, s[52:55], s97 offen sc1", "s_barrier")
    a("L_p_pub:")
    stamp(a, 16)
    a("s_waitcnt vmcnt(1)")
    a("L_p_q:")
    stamp(a, 15)
    for i in range(8):
        if i: a(f"v_xor_b32 v10, {16*i}, v9")
        a(f"ds_read_b128 {vr(128+4*i,4)}, v{10 if i else 9}")
    for i in range(8):
        a(f"s_waitcnt lgkmcnt({7-i})")
        for e in range(4):
            r = 128 + 4 * i + e
            a(f"v_dot2c_f32_bf16 v{96+2*(e&1)}, s83, v{r}", f"v_dot2c_f32_bf16 v{97+2*(e&1)}, v{r}, v{r}")
    a("s_nop 2", "v_pk_add_f32 v[96:97], v[96:97], v[98:99]", "ds_write_b64 v101, v[96:97]")
    a("s_waitcnt vmcnt(0)")
    a("s_cmp_eq_u32 s3, 0", "s_cbranch_scc0 L_p_f1", "s_mov_b64 exec, 1",
      "buffer_store_dwordx2 v[108:109], v3, s[52:55], s82 offen sc1", "s_mov_b64 exec, -1", "s_setprio 0")
    stamp(a, 58)
    a("L_p_f1:", "s_waitcnt lgkmcnt(0)", "s_barrier")
    stamp(a, 55)
    B0, AC = 128, 44
    PP = int(os.environ.get("PP", "10"))
    lgq = []
    def rd(tag, ins): a(ins); lgq.append(tag)
    def wt(tag):
        idx = max(i for i, t in enumerate(lgq) if t == tag)
        a(f"s_waitcnt lgkmcnt({min(15, len(lgq)-1-idx)})")
    def issue(p):
        grp, j = p >> 2, p & 3
        b = B0 + 8 * p
        rd(p, f"ds_read_b128 {vr(b,4)}, v{XA+j} offset:{grp*8192}")
        rd(p, f"ds_read_b64_tr_b16 {vr(b+4,2)}, v{WA+j} offset:{grp*8192}")
        rd(p, f"ds_read_b64_tr_b16 {vr(b+6,2)}, v{WA+j} offset:{grp*8192+512}")
    def pk(op, d, x, y, z=None, mod=""):
        ops = ", ".join(f"v[{r}:{r+1}]" for r in ([d, x, y] + ([z] if z is not None else [])))
        a(f"v_pk_{op}_f32 {ops} {mod}")
    ST = 128
    for p in range(4): issue(p)
    for p in range(16):
        wt(p)
        b = B0 + 8 * p
        mfma32(a, AC, b + 4, b, None if p == 0 else AC)
        if p + 4 < 16: issue(p + 4)
        if (p & 3) < 2:
            mfma16(a, 96, 120, b + 4, None if p == 0 else 96)
        if p == PP:
            a("s_cmp_lt_u32 s3, 4", "s_cbranch_scc1 L_p_e1", "buffer_load_dwordx2 v[14:15], v111, s[52:55], s82 offen sc1", "L_p_e1:")
        if p == 6:
            for s_ in range(4):
                rd("st", f"ds_read2st64_b64 {vr(ST+4*s_,4)}, v104 offset0:{16*s_} offset1:{16*s_+8}")
        if p == 11:
            for i in range(8): a(f"v_add_f32 v{ST+i}, v{ST+i}, v{ST+8+i}")
        if p == 12:
            for st_ in (4, 2):
                for i in range(st_): a(f"v_add_f32 v{ST+i}, v{ST+i}, v{ST+st_+i}")
        if p == 14:
            rstd(a, ST, ST + 1)
    a("s_nop 3", "s_mov_b64 exec, 0xffff", "ds_write_b32 v106, v96 offset:512", "ds_write_b32 v106, v97 offset:576", "s_mov_b64 exec, -1")
    a(f"v_mul_f32 v{ST+2}, {f32(QSCALE)}, v{ST+1}", "s_nop 2")
    a(f"ds_write_b128 v17, {vr(AC+8,4)} offset:2048", f"ds_write_b128 v17, {vr(AC+12,4)} offset:3072")
    stamp(a, 54)
    a("s_cmp_lt_u32 s3, 4", "s_cbranch_scc1 L_p_np")
    a("s_mov_b32 s13, 0", "s_branch L_p_chk")
    a("L_p_poll:", "buffer_load_dwordx2 v[14:15], v111, s[52:55], s82 offen sc1",
      "s_add_u32 s13, s13, 1", f"s_cmp_gt_u32 s13, {SPIN}", "s_cbranch_scc1 L_p_out",
      "L_p_chk:", "s_waitcnt vmcnt(0)", "v_cmp_eq_u32 vcc, v14, v108", "s_cbranch_vccnz L_p_poll")
    a("L_p_out:", "s_waitcnt vmcnt(0)")
    for sh in (8, 4, 2, 1):
        a(f"v_max_f32_dpp v15, v15, v15 row_ror:{sh} row_mask:0xf bank_mask:0xf", "s_nop 1")
    a("ds_write_b32 v100, v15")
    a("L_p_np:")
    a("s_waitcnt lgkmcnt(0)", "s_barrier")
    stamp(a, 53)
    E, CS = 136, 144
    a(f"ds_read_b128 {vr(E,4)}, v103 offset:2048", f"ds_read_b128 {vr(E+4,4)}, v103 offset:3072")
    for s_, (reg, o) in enumerate(((105, 0), (107, 4096), (105, 16384), (107, 20480))):
        a(f"ds_read_b128 {vr(CS+8*s_,4)}, v{reg} offset:{512+o}", f"ds_read_b128 {vr(CS+4+8*s_,4)}, v{reg} offset:{512+o+32}")
    a("ds_read_b32 v38, v95")
    after_flags()
    a("s_waitcnt lgkmcnt(9)")
    for i in range(0, 8, 2): pk("add", AC + i, AC + i, E + i)
    a("s_waitcnt lgkmcnt(5)")
    for i in range(0, 8, 2): pk("add", CS + i, CS + i, CS + 8 + i)
    a("s_waitcnt lgkmcnt(0)")
    for i in range(0, 8, 2): pk("add", CS + 16 + i, CS + 16 + i, CS + 24 + i)
    for i in range(0, 8, 2): pk("add", CS + i, CS + i, CS + 16 + i)
    for i in range(0, 8, 2): pk("fma", AC + i, ST, CS + i, AC + i, "op_sel_hi:[0,1,1] neg_lo:[1,0,0] neg_hi:[1,0,0]")
    for i in range(0, 8, 2): pk("mul", AC + i, ST + 2, AC + i, None, "op_sel_hi:[0,1]")
    for i in range(4):
        a(f"v_cvt_pk_bf16_f32 v{VQ+i}, v{AC+2*i}, v{AC+1+2*i}")
    a(f"ds_write_b128 v17, {vr(VQ,4)} offset:1024")
    for i in range(4):
        a(f"v_dot2c_f32_bf16 v36, v{VQ+i}, v{VQ+i}")
    for sh in (8, 4):
        a(f"v_max_f32_dpp v38, v38, v38 row_ror:{sh} row_mask:0xf bank_mask:0xf", "s_nop 1")
    a("v_mov_b32 v37, v36", "v_max_f32_dpp v38, v38, v38 row_ror:2 row_mask:0xf bank_mask:0xf", "s_nop 0",
      "v_permlane32_swap_b32 v36, v37", "v_max_f32_dpp v38, v38, v38 row_ror:1 row_mask:0xf bank_mask:0xf", "v_add_f32 v36, v36, v37",
      "s_nop 0", "ds_write_b32 v106, v36 offset:768")
    before_b5()
    a("s_waitcnt lgkmcnt(0)", "s_barrier")
    a("ds_read_b32 v37, v102 offset:768", f"ds_read_b128 {vr(VQ+4,4)}, v110 offset:1024", "s_waitcnt lgkmcnt(1)",
      "v_max_f32 v36, v36, v37", "v_mul_f32 v36, v36, v38")
```

```python
import sys
from lib import *
from k2m import gen_k2f
NAME = "sequential_preLN__grouped_kv_mqa__dense_activation_gelu__prompt"
ref = open(f"cdna_kernels/{NAME}.s.ref").read().split("\n")
head = [l for l in ref if l.startswith(";") and "@launch" not in l and "Override launch" not in l and "grid=ceil" not in l]
body, launch = gen_k2f(NAME + "_kernel")
out = "\n".join(head) + "\n" + launch + "\n" + '.amdgcn_target "amdgcn-amd-amdhsa--gfx950"\n' + body
dst = sys.argv[1] if len(sys.argv) > 1 else f"cdna_kernels/{NAME}.s"
open(dst, "w").write(out)
print("wrote", dst, len(out))
```

```python
from lib import *
from k1 import load_ptrs
from k1b import wg_decode2, rstd
from k2 import SM_THR
from k4 import GK1, GK2
import os
from pro import prologue_merged, KFL
MERGED = os.environ.get('MERGED', '1') == '1'
KVS = ' sc1' if MERGED else ''

LDS = 163840
L_STG = 131072
HST = 0x238000
STF = 0x440000

VQ, VK, VV, VP, VC, VO, VS = 4, 12, 20, 36, 44, 60, 92
VW = 128
V_LDSKV = 2
V_L16 = 3
V_TR = 124
V_WG = 125
V_W2G = 126
V_X = 127
SPIN = 1 << 20
TOUCH = os.environ.get("TOUCH", "1") == "1"

class VM:
    def __init__(self, a): self.a = a; self.ops = []
    def issue(self, tag, *lines):
        self.a(*lines); self.ops.append(tag)
    def wait(self, tag, extra=""):
        idx = max(i for i, t in enumerate(self.ops) if t == tag)
        n = len(self.ops) - 1 - idx
        assert n < 64
        self.a(f"s_waitcnt vmcnt({n}){extra}")
    def reset(self): self.ops = []

class LG(VM):
    def wait(self, tag, extra=""):
        idx = max(i for i, t in enumerate(self.ops) if t == tag)
        n = min(15, len(self.ops) - 1 - idx)
        self.a(f"s_waitcnt lgkmcnt({n})")

VI = VP + 7
def pv(a, O, V, P):
    a(f"v_smfmac_f32_32x32x32_bf16 {vr(O,16)}, {vr(V,4)}, {vr(P,8)}, v{VI}")

def half_body(a, ab, par, pre, mid, slow, first=False, sal=None, last=False):
    S = VS + 16 * ab; So = VS + 16 * (ab ^ 1); O = VO + 16 * ab; Oo = VO + 16 * (ab ^ 1)
    def e(i):
        a(f"v_exp_f32 v{S+i}, v{S+i}")
        if sal and (len(sal) > NLATE or i % SPR == 0): a(sal.pop(0))
    if slow:
        for i in range(16):
            a(f"v_sub_f32 v{S+i}, v{S+i}, v{VC+ab}")
    e(0); e(1)
    vpar = par ^ 1 if ab == 0 else par
    if not (first and ab == 0):
        pv(a, Oo, VV + 8 * vpar + 4, So + 8)
    mid()
    e(2); e(3); e(4)
    if ab == 1: a("s_waitcnt lgkmcnt(0)")
    kpar = par if ab == 0 else par ^ 1
    if not last:
        mfma32(a, So, VK + 4 * kpar, VQ + 4 * (ab ^ 1), None if (slow or CZ) else VC)
    pre()
    e(5); e(6); e(7); e(8); e(9)
    pv(a, O, VV + 8 * par, S)
    e(10); e(11); e(12); e(13); e(14); e(15)

def kv_dma(vm, c, hf):
    off = c * 8192 + hf * 65536
    vm.issue(f"kv{c}", f"s_add_u32 m0, s10, {off}", f"s_add_u32 s13, s11, {off}",
             f"buffer_load_dwordx4 v{V_L16}, s[52:55], s13 offen{KVS} lds")

def tr_read(a, dst, areg, off):
    a(f"ds_read_b64_tr_b16 {vr(dst,2)}, v{areg} offset:{off}", f"ds_read_b64_tr_b16 {vr(dst+2,2)}, v{areg} offset:{off+256}")

WO_T0 = 20
def w1_schedule():
    reads = {t: [] for t in range(32)}
    issues = {t: [] for t in range(32)}
    issues[0] = [0, 1]; issues[1] = [2, 3]
    f = 0
    for t in range(3, 32):
        n = 2 if t in (9, 17, 25) else 1
        for _ in range(n):
            if f < 32:
                reads[t].append(f)
                if f + 4 < 32: issues[t].append(f + 4)
                f += 1
    assert f == 32
    return reads, issues

PRIO = os.environ.get("PRIO", "1") == "1"
BARS = {3: "kv3", 15: "kv7"} if os.environ.get("BARS", "2") == "2" else {3: "kv1", 7: "kv3", 15: "kv7"}
def prio_schedule():
    P = {}
    ends = sorted(BARS) + [32]
    start = 0
    for e in ends:
        n = 2 * (e - start)
        l0 = 1; l1 = max(1, round(n * 0.06)); l2 = max(1, round(n * 0.21))
        P[2 * start] = 3
        P[2 * e - l0 - l1 - l2] = 2
        P[2 * e - l0 - l1] = 1
        P[2 * e - l0] = 0
        start = e
    return P

def attention(a, vm0, slow, sal):
    vm = VM(a); vm.ops = list(vm0.ops)
    reads, issues = w1_schedule()
    vm.wait("kv0"); a("s_barrier")
    stamp(a, 4); stamp(a, 59, True)
    PS = prio_schedule() if PRIO else {0: 1}
    a(f"ds_read_b128 {vr(VK,4)}, v{V_LDSKV}")
    a("s_mov_b64 exec, s[60:61]",
      f"ds_read_b128 {vr(VV,4)}, v{V_LDSKV} offset:1024", f"ds_read_b128 {vr(VV+4,4)}, v{V_LDSKV} offset:768",
      "s_mov_b64 exec, -1")
    a("s_waitcnt lgkmcnt(0)")
    mfma32(a, VS, VK, VQ, None if (slow or CZ) else VC)
    a("s_nop 7", "s_nop 3")
    def w1_issue(f):
        vm.issue(f"w1_{f}", f"s_add_u32 m0, s66, {(f&3)*1024}", f"s_add_u32 s13, s67, {perm32(f)*16*2752}",
                 f"buffer_load_dwordx4 v{V_WG}, s[44:47], s13 offen lds")
    for t in range(32):
        par = t & 1
        if t in BARS: vm.wait(BARS[t]); a("s_barrier")
        if t in (4, 8, 12, 16, 20, 24, 28): stamp(a, 4 + t // 4)
        base = (t + 1) * 2048
        def preA():
            if t < 31:
                a(f"ds_read_b128 {vr(VK+4*(par^1),4)}, v{V_LDSKV} offset:{base}")
            if reads[t]:
                vm.wait(f"w1_{reads[t][-1]}")
                for f in reads[t]:
                    tr_read(a, VW + 4 * f, V_TR, (f & 3) * 1024)
        def midA():
            if t < 31:
                a("s_mov_b64 exec, s[60:61]",
                  f"ds_read_b128 {vr(VV+8*(par^1),4)}, v{V_LDSKV} offset:{base+1024}",
                  f"ds_read_b128 {vr(VV+8*(par^1)+4,4)}, v{V_LDSKV} offset:{base+768}",
                  "s_mov_b64 exec, -1")
            if len(BARS) == 3:
                if t < 12:
                    kv_dma(vm, 2 + t // 2, t & 1)
            else:
                if t < 2:
                    kv_dma(vm, 2 + t, 0); kv_dma(vm, 2 + t, 1)
                elif 3 <= t < 11:
                    kv_dma(vm, 4 + (t - 3) // 2, (t - 3) & 1)
            W2T = tuple(int(x) for x in os.environ.get('W2T', '17,18,19').split(','))
            if t in W2T:
                i = W2T.index(t)
                vm.issue("pf", f"s_add_u32 s13, s62, {i}", "s_and_b32 s14, s13, 7", "s_lshr_b32 s13, s13, 3", "s_lshl_b32 s13, s13, 14",
                         "s_lshl_b32 s14, s14, 7", "s_add_u32 s13, s13, s14",
                         f"buffer_load_dword v{V_X}, v{V_W2G}, s[56:59], s13 offen")
            TT = tuple(int(x) for x in os.environ.get('TT', '2,4,6,8,10,11,12').split(','))
            if TOUCH and t in TT:
                i = TT.index(t)
                reg = [100, 101, 101, 64, 64, 95, 63][i]
                off = [0, 0, 1024, 0, 1024, 0, 0][i]
                vm.issue("pf", f"buffer_load_dword v{V_X}, v{V_L16}, s[52:55], s{reg} offen offset:{off} sc1")
            MW = os.environ.get("MW", "0") == "1"
            if MW and t == 0:
                vm.issue("pf", "s_lshl_b32 s14, s2, 13", "s_add_u32 s14, s14, s10", f"buffer_load_dword v{V_X}, v{V_L16}, s[44:47], s14 offen")
            if MW and t == 2:
                tg = "s" if slow else "f"
                vm.issue("pf", "s_lshl_b32 s14, s2, 13", "s_add_u32 s14, s14, s10", f"s_cmp_ge_u32 s14, {1376*1024}", f"s_cbranch_scc1 L_mw{tg}",
                         f"buffer_load_dword v{V_X}, v{V_L16}, s[56:59], s14 offen", f"s_branch L_mx{tg}", f"L_mw{tg}:",
                         f"s_sub_u32 s14, s14, {1376*1024}", f"buffer_load_dword v{V_X}, v{V_L16}, s[48:51], s14 offen", f"L_mx{tg}:")
            if t == 13:
                vm.issue("pf", f"buffer_load_dword v{V_X}, v{V_L16}, s[84:87], s67 offen")
            if t == 14:
                vm.issue("pf", f"buffer_load_dword v{V_X}, v{V_L16}, s[88:91], 0 offen")
        def preB():
            if issues[t]:
                w1_issue(issues[t][0])
            if t == 28:
                vm.issue("xcc", f"buffer_load_dword v{V_X}, v{V_L16}, s[52:55], s68 offen sc1")
        def midB():
            if t == 31:
                vm.wait("xcc")
                a(f"v_cmp_ne_u32 vcc, s42, v{V_X}", "s_and_b32 s42, vcc_lo, 0xff")
                if os.environ.get("FORCE_SLOW", "0") == "1": a("s_mov_b32 s42, 1")
            if len(issues[t]) > 1:
                w1_issue(issues[t][1])
            i = t - WO_T0
            if 0 <= i < 8:
                q = i >> 1
                ldsoff = (q >> 1) * 65536 + (i & 1) * 16384 + (q & 1) * 8192
                vm.issue("wo", f"s_add_u32 m0, s10, {ldsoff}", f"s_add_u32 s13, s69, {q*8*16384 + (i&1)*64}",
                         f"buffer_load_dwordx4 v{V_W2G}, s[48:51], s13 offen lds")
        if 2 * t in PS: a(f"s_setprio {PS[2*t]}")
        half_body(a, 0, par, preA, midA, slow, t == 0, sal)
        if 2 * t + 1 in PS: a(f"s_setprio {PS[2*t+1]}")
        half_body(a, 1, par, lambda: (preB(), midB()), lambda: None, slow, t == 0, sal, t == 31)
        if t == 1: assert len(sal) <= NLATE
        if t == 12: assert len(sal) <= NLATE - 8
        if t == 30: assert not sal
    a("s_nop 3")

def real_addr(a):
    a(f"v_lshrrev_b32 v{V_X}, 5, v1", f"v_lshlrev_b32 v{V_TR}, 9, v{V_X}",
      f"v_bfe_u32 v{V_X}, v1, 2, 2", f"v_lshl_or_b32 v{V_TR}, v{V_X}, 6, v{V_TR}",
      f"v_bfe_u32 v{V_X}, v1, 4, 1", f"v_lshl_or_b32 v{V_TR}, v{V_X}, 5, v{V_TR}",
      f"v_and_b32 v{V_X}, 1, v1", f"v_lshl_or_b32 v{V_TR}, v{V_X}, 4, v{V_TR}",
      f"v_bfe_u32 v{V_X}, v1, 1, 1", f"v_lshl_or_b32 v{V_TR}, v{V_X}, 3, v{V_TR}",
      f"v_add_u32 v{V_TR}, s66, v{V_TR}",
      f"v_lshrrev_b32 v{V_X}, 2, v1", f"v_lshlrev_b32 v{V_W2G}, 10, v{V_X}",
      f"v_and_b32 v{V_X}, 3, v1", f"v_lshl_or_b32 v{V_W2G}, v{V_X}, 4, v{V_W2G}",
      f"v_lshlrev_b32 v{V_X}, 2, v1")

def handoff(a, tag, word, mask, shadow1=None, shadow2=None, bar=False):
    a("v_mov_b32 v4, 1")
    if shadow1: shadow1()
    a("s_cmp_eq_u32 s42, 0", "s_waitcnt vmcnt(0) lgkmcnt(0)", "s_mov_b64 exec, 1", f"s_cbranch_scc0 L_{tag}_slow")
    a(f"buffer_store_dword v4, v5, s[52:55], s24 offen offset:{word*256}")
    a(f"L_{tag}_set:", f"s_mov_b64 exec, {mask}", f"buffer_load_dword v4, v5, s[52:55], s68 offen offset:{word*256} sc1", "s_mov_b64 exec, -1")
    stamp(a, {1: 25, 2: 26, 3: 37}[word])
    if shadow2: shadow2()
    if bar: a("s_barrier")
    a(f"s_mov_b64 exec, {mask}", "s_mov_b32 s13, 0", "s_waitcnt vmcnt(0)", "v_cmp_eq_u32 vcc, 0, v4", f"s_cbranch_vccz L_{tag}_out")
    a(f"L_{tag}_poll:", f"buffer_load_dword v4, v5, s[52:55], s68 offen offset:{word*256} sc1",
      "s_add_u32 s13, s13, 1", f"s_cmp_gt_u32 s13, {SPIN}", f"s_cbranch_scc1 L_{tag}_out",
      "s_waitcnt vmcnt(0)", "v_cmp_eq_u32 vcc, 0, v4", f"s_cbranch_vccnz L_{tag}_poll")
    a(f"L_{tag}_out:", "s_mov_b64 exec, -1")
    a("s_cmp_eq_u32 s42, 0", f"s_cbranch_scc0 L_{tag}_inv", f"L_{tag}_go:")
    COLD.append([f"L_{tag}_slow:", "buffer_wbl2 sc1", "s_waitcnt vmcnt(0)", f"buffer_store_dword v4, v5, s[52:55], s24 offen offset:{word*256} sc1",
                 f"s_branch L_{tag}_set", f"L_{tag}_inv:", "buffer_inv sc1", "s_waitcnt vmcnt(0)", f"s_branch L_{tag}_go"])
COLD = []
PERM = os.environ.get('PERM', '0') == '1'
CZ = os.environ.get('CZ', '0') == '1'
SPR = int(os.environ.get('SPR', '8'))

def gelu_ops(X, T, n, c, st, pk=False):
    K2, K1, IR = st, st + 2, st + 4
    L = []
    if pk:
        P = lambda r: f"v[{r}:{r+1}]"
        if c is not None:
            L += [f"v_pk_add_f32 {P(X+i)}, {P(X+i)}, {P(c+i)}" for i in range(0, n, 2)]
        L += [f"v_pk_mul_f32 {P(T+i)}, {P(X+i)}, {P(X+i)}" for i in range(0, n, 2)]
        L += [f"v_pk_fma_f32 {P(T+i)}, {P(T+i)}, {P(K2)}, {P(K1)} op_sel_hi:[1,0,0]" for i in range(0, n, 2)]
        L += [f"v_pk_mul_f32 {P(T+i)}, {P(T+i)}, {P(X+i)}" for i in range(0, n, 2)]
        L += [f"v_exp_f32 v{T+i}, v{T+i}" for i in range(n)]
        L += [f"v_pk_fma_f32 {P(T+i)}, {P(T+i)}, {P(IR)}, {P(IR)} op_sel_hi:[1,0,0]" for i in range(0, n, 2)]
        L += [f"v_rcp_f32 v{T+i}, v{T+i}" for i in range(n)]
        L += [f"v_pk_mul_f32 {P(X+i)}, {P(X+i)}, {P(T+i)}" for i in range(0, n, 2)]
    else:
        if c is not None:
            L += [f"v_add_f32 v{X+i}, v{X+i}, v{c+i}" for i in range(n)]
        L += [f"v_mul_f32 v{T+i}, v{X+i}, v{X+i}" for i in range(n)]
        L += [f"v_fma_f32 v{T+i}, v{T+i}, v{K2}, v{K1}" for i in range(n)]
        L += [f"v_mul_f32 v{T+i}, v{T+i}, v{X+i}" for i in range(n)]
        L += [f"v_exp_f32 v{T+i}, v{T+i}" for i in range(n)]
        L += [f"v_fma_f32 v{T+i}, v{T+i}, v{IR}, v{IR}" for i in range(n)]
        L += [f"v_rcp_f32 v{T+i}, v{T+i}" for i in range(n)]
        L += [f"v_mul_f32 v{X+i}, v{X+i}, v{T+i}" for i in range(n)]
    L += [f"v_cvt_pk_bf16_f32 v{T+i}, v{X+2*i}, v{X+2*i+1}" for i in range(n // 2)]
    return L

def slot_of(i): return i % 10 if i < 20 else i - 16
def slot_lds(i):
    sl = slot_of(i)
    return sl * 8192 if sl < 4 else (65536 + (sl - 4) * 8192 if sl < 8 else 147456 + (sl - 8) * 8192)
def slot_addr(i):
    sl = slot_of(i)
    return (V_TR, sl * 8192) if sl < 4 else ((V_X, (sl - 4) * 8192) if sl < 8 else (V_WG, (sl - 8) * 8192))
def perm32(n): return 4 * (n % 8) + n // 8
def perm16(n): return 4 * (n % 4) + n // 4
F2ORD = [(r, h) for r in range(9) for h in range(2)] + [(9, 0), (10, 0), (9, 1), (10, 1)]
def w2off(i): return (44 * F2ORD[i][1] + F2ORD[i][0]) * 16384
NA = int(os.environ.get("NA", "4"))
NL = int(os.environ.get("NL", "2"))

def stream(a, vm, lg, steps, window, fillers, sync_stamp=None, on_sync=None):
    synced = set()
    pend = []
    nxt = 0
    def issue_upto(lim):
        nonlocal nxt
        while nxt < min(len(steps), lim):
            st = steps[nxt]
            if st["need"] is not None and st["need"] not in synced:
                vm.wait(st["need"]); a("s_barrier"); synced.add(st["need"])
                if sync_stamp is not None: stamp(a, sync_stamp + len(synced) - 1)
                pend.append(len(synced) - 1)
            for k, ins in enumerate(st["reads"]):
                lg.issue(f"{st['id']}_{k}", ins)
            nxt += 1
            if pend and on_sync is not None and (nxt >= min(len(steps), lim) or (steps[nxt]["need"] not in synced and steps[nxt]["need"] is not None)):
                while pend: on_sync(pend.pop(0))
    for n, st in enumerate(steps):
        issue_upto(n + window)
        if "pre" in st: st["pre"]()
        for k, fn in enumerate(st["mf"]):
            lg.wait(f"{st['id']}_{k}")
            fn()
        issue_upto(n + window + 1)
        fillers(n)

def gen_k2f(name):
    a = A()
    kernel_begin(a, name)
    Lend = "L_k2_end"
    a("s_cmp_ge_u32 s2, 256", f"s_cbranch_scc1 {Lend}")
    stamp(a, 0, True); stamp(a, 1)
    load_ptrs(a)
    if os.environ.get("CPF", "1") == "1":
        a("s_getpc_b64 s[12:13]", "s_bfe_u32 s14, s2, 0x30003", "s_lshl_b32 s14, s14, 13", "v_lshlrev_b32 v2, 7, v0", "v_subrev_u32 v2, 0xe000, v2",
          "v_add_u32 v2, s14, v2", "v_cmp_le_u32 vcc, 448, v0", "s_cmp_lt_u32 s14, 0x8000", "s_cselect_b64 s[14:15], vcc, 0", "s_cmp_eq_u64 s[14:15], 0",
          "s_cbranch_scc1 L_cpf", "global_load_dword v123, v2, s[12:13]", "L_cpf:")
    wg_decode2(a)
    def early():
        srd(a, 44, 28, 512*2752)
    def setup():
        a("s_lshr_b32 s13, s3, 1", "s_add_u32 s13, s13, 2", "s_min_u32 s43, s13, s3",
          "s_mul_i32 s14, s5, 6", "s_mul_i32 s15, s5, 5", "s_add_u32 s15, s15, 3", "s_min_u32 s14, s14, s15",
          "s_add_u32 s65, s14, s43", "s_lshl_b32 s67, s65, 6")
        a(f"v_lshrrev_b32 v{V_WG}, 2, v1", "s_movk_i32 s13, 2752", f"v_mul_u32_u24 v{V_WG}, s13, v{V_WG}",
          f"v_and_b32 v{V_X}, 3, v1", f"v_lshl_add_u32 v{V_WG}, v{V_X}, 4, v{V_WG}")
        real_addr(a)
        a("s_mov_b32 s60, 0xffff0000", "s_mov_b32 s61, 0xffff0000")
        a("s_and_b32 s70, s3, 1", "s_bfe_u32 s71, s3, 0x10001", "s_lshr_b32 s72, s3, 2")
        a("s_lshl_b32 s12, s72, 16", f"v_add_u32 v{V_LDSKV}, s12, v{V_L16}")
        a("v_and_b32 v40, 27, v1", "v_cmp_eq_u32 vcc, 0, v40", "v_mov_b32 v41, 0x3f803f80", "s_nop 0", f"v_cndmask_b32 v{VV}, 0, v41, vcc",
          f"v_mov_b32 v{VV+1}, v{VV}")
        for i in range(2, 16, 2):
            a(f"v_mov_b64 v[{VV+i}:{VV+i+1}], v[{VV}:{VV+1}]")
        for i in range(0, 32, 2):
            a(f"v_mov_b64 v[{VO+i}:{VO+i+1}], 0")
        a(f"v_mov_b32 v{VI}, 0xdddddddd")
    def later_scalars():
        t = A()
        srd(t, 48, 24, 512*1024)
        srd(t, 56, 32, 1376*1024)
        t("s_lshl_b32 s69, s3, 14", "s_lshl_b32 s12, s5, 7", "s_add_u32 s69, s69, s12")
        t("s_lshr_b32 s12, s2, 3", "s_lshl_b32 s12, s12, 3", "s_add_u32 s12, s12, s3", "s_mul_i32 s62, s12, 3")
        t("s_lshl_b32 s63, s4, 1", "s_add_u32 s63, s63, s72", "s_lshl_b32 s63, s63, 5",
          "s_lshl_b32 s12, s5, 2", "s_add_u32 s63, s63, s12", "s_and_b32 s12, s3, 3", "s_add_u32 s63, s63, s12", "s_lshl_b32 s63, s63, 10")
        t("s_lshl_b32 s73, s5, 1", "s_add_u32 s73, s73, s70", "s_lshl_b32 s73, s73, 1", "s_add_u32 s73, s73, s72",
          "s_lshl_b32 s75, s4, 1", "s_add_u32 s75, s75, s71",
          "s_lshl_b32 s74, s75, 15", "s_lshl_b32 s12, s73, 5", "s_add_u32 s74, s74, s12")
        assert OF == 0
        t("s_lshl_b32 s100, s75, 5", "s_add_u32 s100, s100, s73", "s_lshl_b32 s100, s100, 10", f"s_add_u32 s100, s100, {HF:#x}")
        t("s_and_b32 s99, s70, s72",
          "s_lshl_b32 s101, s4, 1", "s_add_u32 s101, s101, s99", "s_mul_i32 s101, s101, 86", "s_lshl_b32 s12, s65, 1", "s_add_u32 s101, s101, s12",
          "s_lshl_b32 s101, s101, 10", f"s_add_u32 s101, s101, {FF:#x}")
        t("s_xor_b32 s64, s72, 1", f"s_mul_i32 s64, s64, {86*1024}", "s_add_u32 s64, s64, s101",
          "s_lshl_b32 s95, s4, 14", "s_lshl_b32 s12, s5, 11", "s_add_u32 s95, s95, s12", "s_lshl_b32 s12, s70, 10", "s_add_u32 s95, s95, s12",
          f"s_add_u32 s95, s95, {STF:#x}")
        global NLATE
        n0 = len(t.lines)
        srd(t, 84, 30, 2752)
        srd(t, 88, 34, 1024)
        srd(t, 20, 36, 2048*1024)
        t("s_lshl_b32 s6, s3, 12", "s_lshl_b32 s7, s4, 16", "s_add_u32 s7, s7, s6",
          "s_lshl_b32 s12, s3, 3", "s_mov_b64 s[8:9], 0xff", "s_lshl_b64 s[8:9], s[8:9], s12")
        t("s_add_u32 s12, s3, 2", "s_lshr_b32 s12, s12, 3", "s_add_u32 s12, s12, s3", "s_max_u32 s15, s12, 1", "s_sub_u32 s15, s15, 1", "s_lshl_b32 s15, s15, 3",
          "s_min_u32 s12, s12, 1", "s_mul_i32 s12, s12, 0xff00", "s_or_b32 s18, s12, 0xff", "s_mov_b32 s19, 0", "s_lshl_b64 s[18:19], s[18:19], s15")
        t("s_lshl_b32 s24, s5, 5", "s_lshl_b32 s12, s3, 2", "s_add_u32 s24, s24, s12", "s_add_u32 s24, s24, s68")
        t("s_lshl_b32 s26, s4, 14", f"s_add_u32 s26, s26, {STF:#x}", "s_lshl_b32 s12, s73, 9", "s_add_u32 s25, s26, s12", "s_lshl_b32 s12, s71, 8", "s_add_u32 s25, s25, s12",
          "s_lshl_b32 s27, s3, 11", "s_add_u32 s26, s26, s27", f"s_add_u32 s27, s27, {L_STG}")
        t("s_mul_i32 s28, s4, 176128", f"s_add_u32 s28, s28, {FF:#x}", "s_mul_i32 s12, s3, 11264", "s_add_u32 s28, s28, s12")
        t("s_lshr_b32 s98, s3, 1", f"s_mul_i32 s97, s98, {11*16384}", "s_lshl_b32 s12, s5, 7", "s_add_u32 s97, s97, s12", "s_lshl_b32 s12, s70, 6", "s_add_u32 s97, s97, s12")
        t("s_lshl_b32 s12, s72, 5", "s_xor_b32 s39, s66, s12", "s_lshl_b32 s12, s72, 16", "s_xor_b32 s38, s39, s12", "s_lshl_b32 s12, s70, 14", "s_xor_b32 s38, s38, s12",
          "s_xor_b32 s39, s39, s10")
        t("s_lshl_b32 s32, s71, 16", "s_lshl_b32 s12, s72, 14", "s_add_u32 s32, s32, s12", "s_add_u32 s32, s32, 32768",
          "s_lshl_b32 s33, s99, 16", "s_add_u32 s33, s33, 32768",
          "s_lshl_b32 s29, s99, 8", f"s_add_u32 s29, s29, {L_STG}", "s_lshl_b32 s96, s99, 12", "s_add_u32 s96, s96, 32768",
          "s_lshl_b32 s16, s71, 13", "s_lshl_b32 s12, s98, 10", "s_add_u32 s16, s16, s12", "s_lshl_b32 s17, s73, 5")
        NLATE = len(t.lines) - n0
        return [l.strip() for l in t.lines]
    assert MERGED
    vm = VM(a)
    def after_flags():
        a(f"s_add_u32 s11, s10, {KVF:#x}")
        kv_dma(vm, 0, 0); kv_dma(vm, 0, 1)
    def before_b5():
        kv_dma(vm, 1, 0); kv_dma(vm, 1, 1)
        a("s_cmp_eq_u32 s3, 0", "s_cbranch_scc0 L_fl2", "v_add_u32 v108, 1, v108", "s_mov_b64 exec, 1",
          f"buffer_store_dword v108, v{V_L16}, s[52:55], s82 offen sc1", "s_mov_b64 exec, -1", "L_fl2:")
    prologue_merged(a, early, setup, VQ, after_flags, before_b5)
    a("v_sqrt_f32 v37, v36", "s_waitcnt lgkmcnt(0)", "s_mov_b32 s82, 0x07060302")
    a(f"v_cmp_nge_f32 vcc, {f32(SM_THR)}, v37")
    a("s_cmp_eq_u64 vcc, 0", "s_cbranch_scc0 L_k2_slow")
    for i in range(16):
        a(f"v_sub_f32 v{VC+i}, 0, v37")
    vm_pre = vm
    attention(a, vm_pre, False, later_scalars())
    a("L_k2_done:")
    pv(a, VO + 16, VV + 8 + 4, VS + 24)
    a("s_setprio 0")
    stamp(a, 12)
    def pk(op, d, x, y, z=None, mod=""):
        ops = ", ".join(f"v[{r}:{r+1}]" for r in ([d, x, y] + ([z] if z is not None else [])))
        a(f"v_pk_{op}_f32 {ops} {mod}")
    a(f"v_add_u32 v6, s66, v{V_L16}", "v_lshlrev_b32 v5, 2, v1", "v_xor_b32 v7, 0x4000, v6", "v_add_u32 v16, s66, v5", "v_xor_b32 v17, 0x4000, v16",
      "v_and_b32 v18, 31, v1", "v_lshrrev_b32 v11, 5, v1", "v_lshlrev_b32 v11, 4, v11", "v_lshl_or_b32 v10, v18, 10, v11",
      f"v_xor_b32 v9, s38, v{V_TR}", f"v_add_u32 v8, s32, v{V_L16}", "buffer_load_dwordx4 v[12:15], v10, s[76:79], s74 offen")
    a(f"ds_write_b128 v6, {vr(VO+24,4)}", f"ds_write_b128 v6, {vr(VO+28,4)} offset:1024", f"ds_write_b32 v16, v{VO+16} offset:2048")
    a("v_cmp_eq_u32 vcc, 0, v18", "v_cmp_eq_u32 s[14:15], 17, v18", "s_or_b64 vcc, vcc, s[14:15]", "v_mov_b32 v55, s83")
    a("s_waitcnt lgkmcnt(0)", "s_barrier")
    stamp(a, 13); stamp(a, 60, True)
    a(f"ds_read_b32 v18, v17 offset:2048", f"ds_read_b128 {vr(VS,4)}, v7", f"ds_read_b128 {vr(VS+4,4)}, v7 offset:1024")
    a("v_cndmask_b32 v56, 0, v55, vcc", "v_mov_b32 v57, v56", "v_mov_b64 v[58:59], v[56:57]")
    a("s_waitcnt lgkmcnt(2)", f"v_add_f32 v18, v18, v{VO}", "v_rcp_f32 v18, v18", "s_waitcnt lgkmcnt(0)")
    for i in range(0, 8, 2): pk("add", VO + 8 + i, VO + 8 + i, VS + i)
    for i in range(0, 8, 2): pk("mul", VO + 8 + i, 18, VO + 8 + i, None, "op_sel_hi:[0,1]")
    for i in range(4):
        a(f"v_cvt_pk_bf16_f32 v{VP+i}, v{VO+8+2*i}, v{VO+9+2*i}")
    a(f"buffer_store_dwordx4 {vr(VP,4)}, v{V_L16}, s[52:55], s63 offen")
    stamp(a, 14)
    def cs_part(k0, k1):
        for kt in range(k0, k1):
            mfma16(a, 52, 56, VW + 4 * kt, None if kt == 0 else 52)
    C0, C1, C2, C3 = [int(x) for x in os.environ.get("CSP", "4,12,20,26").split(",")]
    def sh1b():
        for p in range(16):
            tr_read(a, 60 + 4 * p, 9, perm16(p) * 1024)
            if C0 + p < C1: cs_part(C0 + p, C0 + p + 1)
        for i in range(4):
            a(f"v_lshlrev_b32 v{16+2*i}, 16, v{12+i}", f"v_and_b32 v{17+2*i}, 0xffff0000, v{12+i}")
        for i in range(0, 8, 2):
            a(f"v_mov_b64 v[{24+i}:{25+i}], 0")
    handoff(a, "x1", 1, "s[8:9]", lambda: cs_part(0, C0), sh1b)
    stamp(a, 17)
    vm = VM(a); lg = LG(a)
    for half in range(2):
        for rt in range(2):
            a(f"s_add_u32 m0, s6, {32768 + rt*65536}", f"s_add_u32 s13, s7, {OF + rt*32768}")
            for i in (2 * half, 2 * half + 1):
                vm.issue(f"o{half}", f"buffer_load_dwordx4 v{V_L16}, s[52:55], s13 offen offset:{i*1024} sc1 lds")
    cs_part(C1, C2)
    a(f"v_xor_b32 v{V_TR}, s39, v{V_TR}", f"v_add_u32 v{V_X}, 0x10000, v{V_TR}", f"v_add_u32 v{V_WG}, 0x24000, v{V_TR}", "s_waitcnt lgkmcnt(0)")
    steps = []
    for p in range(16):
        steps.append(dict(id=f"o{p}", need=f"o{p//8}", reads=[f"ds_read_b128 {vr(32+4*(p%5),4)}, v8 offset:{perm16(p)*1024}"],
                          mf=[lambda p=p: mfma32(a, 16, 60 + 4 * p, 32 + 4 * (p % 5), 16)]))
    def fill0(p):
        i = p - 4
        if 0 <= i < NA:
            a(f"s_add_u32 m0, s10, {slot_lds(i)}", f"s_add_u32 s14, s97, {w2off(i)}", f"buffer_load_dwordx4 v{V_W2G}, s[56:59], s14 offen lds")
        if p == 13:
            a("buffer_load_dwordx4 v[80:83], v11, s[84:87], s67 offen", "buffer_load_dwordx4 v[84:87], v11, s[84:87], s67 offen offset:32")
    stream(a, vm, lg, steps, 5, fill0, 18)
    stamp(a, 22)
    a("v_mov_b64 v[60:61], 0", "v_lshlrev_b32 v64, 3, v1",
      "v_and_b32 v9, 31, v1", "v_lshlrev_b32 v8, 3, v9", "v_lshl_add_u32 v8, v11, 9, v8", "v_add_u32 v8, s29, v8",
      "v_lshl_add_u32 v9, v9, 4, s96", "s_nop 4")
    a("ds_write_b128 v6, v[24:27]", "ds_write_b128 v6, v[28:31] offset:1024")
    a("s_waitcnt lgkmcnt(0)", "s_barrier")
    stamp(a, 23)
    a("ds_read_b128 v[32:35], v7", "ds_read_b128 v[36:39], v7 offset:1024")
    a(f"v_add_u32 v7, s33, v{V_L16}", "v_add_u32 v6, 0x10000, v7")
    a("s_waitcnt lgkmcnt(0)")
    for i in range(0, 8, 2): pk("add", 16 + i, 16 + i, 32 + i)
    for i in range(4):
        a(f"v_cvt_pk_bf16_f32 v{12+i}, v{16+2*i}, v{17+2*i}")
    a(f"buffer_store_dwordx4 v[12:15], v{V_L16}, s[52:55], s100 offen")
    for i in range(4):
        a(f"v_dot2c_f32_bf16 v60, s83, v{12+i}", f"v_dot2c_f32_bf16 v61, v{12+i}, v{12+i}")
    a("s_nop 2", "v_mov_b64 v[62:63], v[60:61]", "s_nop 1",
      "v_permlane32_swap_b32 v60, v62", "v_permlane32_swap_b32 v61, v63", "s_nop 0",
      "v_pk_add_f32 v[60:61], v[60:61], v[62:63]",
      "s_mov_b64 exec, 0xffffffff", "buffer_store_dwordx2 v[60:61], v64, s[52:55], s25 offen", "s_mov_b64 exec, -1")
    stamp(a, 24)
    def sh2b():
        cs_part(C2, C3)
        for i in range(8):
            a(f"v_lshlrev_b32 v{64+2*i}, 16, v{80+i}", f"v_and_b32 v{65+2*i}, 0xffff0000, v{80+i}")
    handoff(a, "x2", 2, "s[8:9]", None, sh2b, bar=True)
    stamp(a, 27)
    PK = os.environ.get("PK", "0") == "1"
    BW = 96
    ST0, ST1 = 32, 112
    def P2(r): return f"v[{r}:{r+1}]"
    def stats_fillers(addr, st):
        m, q = st + 6, st + 7
        F = []
        def add2(d, x, y):
            if PK: return [f"v_pk_add_f32 {P2(d)}, {P2(x)}, {P2(y)}"]
            return [f"v_add_f32 v{d}, v{x}, v{y}", f"v_add_f32 v{d+1}, v{x+1}, v{y+1}"]
        for b in range(2):
            F.append(("lds", [(f"st{st}_{b}", f"ds_read2st64_b64 {vr(80+4*i,4)}, v{addr} offset0:{8*b+2*i} offset1:{8*b+2*i+1}") for i in range(4)]))
            F.append(("nop",))
            ops = []
            for i in range(4):
                ops += add2(80 + 4 * i, 80 + 4 * i, 82 + 4 * i)
            F.append(("valu", f"st{st}_{b}", ops))
            ops = add2(80, 80, 84) + add2(88, 88, 92)
            if b == 0:
                ops += add2(m, 80, 88)
                F.append(("valu", None, ops))
            else:
                ops += add2(80, 80, 88) + add2(m, m, 80) + [f"v_mov_b32 v{st}, v{m}", f"v_mov_b32 v{st+1}, v{q}"]
                F.append(("valu", None, ops))
                ops = ["s_nop 1", f"v_permlane32_swap_b32 v{m}, v{st}", f"v_permlane32_swap_b32 v{q}, v{st+1}", "s_nop 1"] + add2(m, m, st) + \
                      [f"v_mul_f32 v{m}, {f32(1/512)}, v{m}", f"v_mul_f32 v{q}, {f32(1/512)}, v{q}",
                       f"v_fma_f32 v{q}, -v{m}, v{m}, v{q}", f"v_max_f32 v{q}, 0, v{q}", f"v_add_f32 v{q}, {f32(1e-5)}, v{q}"]
                F.append(("valu", None, ops))
                ops = [f"v_rsq_f32 v{st+1}, v{q}", f"v_sqrt_f32 v{st+4}, v{q}",
                       f"v_mul_f32 v{st+2}, {f32(GK1)}, v{st+1}",
                       f"v_mul_f32 v{st+3}, v{st+1}, v{st+1}", f"v_mul_f32 v{st+3}, {f32(0.044715)}, v{st+3}",
                       f"v_mul_f32 v{st}, v{st+2}, v{st+3}"]
                F.append(("valu", None, ops))
        return F
    def cinit(dst, st):
        F = []
        for h in range(4):
            if PK:
                ops = [f"v_pk_mul_f32 {P2(dst+i)}, {P2(64+i)}, {P2(st+4)} op_sel_hi:[1,0]" for i in range(4*h, 4*h+4, 2)]
                ops += [f"v_pk_fma_f32 {P2(dst+i)}, {P2(st+6)}, {P2(40+i)}, {P2(dst+i)} op_sel_hi:[0,1,1] neg_lo:[1,0,0] neg_hi:[1,0,0]" for i in range(4*h, 4*h+4, 2)]
            else:
                ops = [f"v_mul_f32 v{dst+i}, v{64+i}, v{st+4}" for i in range(4*h, 4*h+4)]
                ops += [f"v_fma_f32 v{dst+i}, -v{st+6}, v{40+i}, v{dst+i}" for i in range(4*h, 4*h+4)]
            F.append(("valu", None, ops))
        return F
    vm0 = VM(a)
    HS = int(os.environ.get("HS", "12"))
    def h_dma(cs_, vm0=vm0):
        for rt in range(2):
            a(f"s_add_u32 m0, s6, {32768 + rt*65536}", f"s_add_u32 s13, s7, {HF + rt*32768}")
            for c in cs_:
                vm0.issue(f"h{cs_[-1]}", f"buffer_load_dwordx4 v{V_L16}, s[52:55], s13 offen offset:{c*1024} sc1 lds")
    FB = os.environ.get("FB", "1") == "1"
    h_dma([0])
    if FB: a("s_barrier")
    a("s_mov_b32 m0, s27", "s_nop 0")
    for i in range(2):
        vm0.issue("h1", f"buffer_load_dwordx4 v{V_L16}, s[52:55], s26 offen offset:{i*1024} sc1 lds")
    HP = os.environ.get("HP", "1") == "1"
    h_dma([1])
    if not HP: h_dma([2, 3])
    cs_part(C3, 32)
    a("s_add_u32 s13, s10, 155648", "v_add_u32 v48, s13, v5", "v_add_u32 v39, s13, v11", "s_nop 3", "s_mov_b64 exec, 0xffff",
      "ds_write_b32 v48, v52", "ds_write_b32 v48, v53 offset:64", "s_mov_b64 exec, -1")
    for q in range(4):
        a(f"ds_read_b128 {vr(40+4*q,4)}, v39 offset:{32*q}")
    a("s_cmp_ge_u32 s3, 4", "s_cbranch_scc1 L_f1_s")
    SPRIO = int(os.environ.get("SPRIO", "1"))
    for cls in ("L", "S"):
        vm = VM(a); vm.ops = list(vm0.ops); lg = LG(a)
        if cls == "S":
            a("L_f1_s:", f"s_setprio {SPRIO}")
        def w2_dma(i):
            vm.issue(f"w2_{i}", f"s_add_u32 m0, s10, {slot_lds(i)}", f"s_add_u32 s13, s97, {w2off(i)}",
                     f"buffer_load_dwordx4 v{V_W2G}, s[56:59], s13 offen lds")
        def readout(i, wait=True):
            if wait and i >= NA: vm.wait(f"w2_{i}")
            ar, of = slot_addr(i)
            lg.issue(f"r{i}", f"ds_read_b64_tr_b16 {vr(VW+4*i,2)}, v{ar} offset:{of}")
            lg.issue(f"r{i}", f"ds_read_b64_tr_b16 {vr(VW+4*i+2,2)}, v{ar} offset:{of+256}")
        on_sync = (lambda k: h_dma([2, 3], vm) if k == 0 else None) if HP else None
        def run(f):
            if f[0] == "lds":
                for tag, ins in f[1]: lg.issue(tag, ins)
            elif f[0] == "valu":
                if f[1]: lg.wait(f[1])
                a(*f[2])
            elif f[0] == "fn":
                f[1]()
        W1 = int(os.environ.get("W1", "5"))
        bufs = ([96, 100, 104, 108, 120, 60, 56] if cls == "L" else [96, 100, 104, 108, 112, 116, 120])[:W1]
        def mk(n, kt, rt, need):
            acc = 80 if rt else 16
            b = bufs[n % W1]
            return dict(id=f"b{n}", need=need, reads=[f"ds_read_b128 {vr(b,4)}, v{7-rt} offset:{perm32(kt)*1024}"],
                        mf=[lambda: mfma32(a, acc, VW + 4 * kt, b, None if kt == 0 else acc)])
        if cls == "L":
            order = [(kt, rt) for kt in range(HS) for rt in range(2)] + [(kt, 0) for kt in range(HS, 32)] + [(kt, 1) for kt in range(HS, 32)]
            steps = []
            for n, (kt, rt) in enumerate(order):
                need = "h0" if n < 8 + W1 else ("h1" if n < 20 + W1 else "h3")
                assert (kt < 8 or n >= 8 + W1) and (kt < 16 or n >= 20 + W1)
                steps.append(mk(n, kt, rt, need))
            P3 = 32 + HS
            fill = [("lds", [("rc", f"ds_read_b128 {vr(ST0,4)}, v9"), ("rc", f"ds_read_b128 {vr(ST0+4,4)}, v9 offset:512"),
                             ("rc", f"ds_read_b128 {vr(ST1,4)}, v9 offset:4096"), ("rc", f"ds_read_b128 {vr(ST1+4,4)}, v9 offset:4608")]),
                    ("nop",), ("nop",), ("valu", "rc", ["s_nop 0"])]
            for i in range(16):
                fill.append(("valu", None, [f"v_mul_f32 v56, v{64+i}, v{ST1+4}", f"v_mul_f32 v{64+i}, v{64+i}, v{ST0+4}",
                                            f"v_fma_f32 v{64+i}, -v{ST0+6}, v{40+i}, v{64+i}", f"v_fma_f32 v{40+i}, -v{ST1+6}, v{40+i}, v56"]))
            OFFL = os.environ.get("OFFL", "0") == "1"
            if OFFL:
                G = [("v", f"v_add_f32 v{16+i}, v{16+i}, v{64+i}") for i in range(16)] + \
                    [("l", f"ds_write_b128 v8, {vr(16+4*q,4)} offset:{1024*q}") for q in range(4)] + [("b", None)]
                per = 10
            else:
                G = [("v", x) for x in gelu_ops(16, 56, 8, 64, ST0, PK)] + [("st", f"buffer_store_dwordx4 v[56:59], v{V_L16}, s[52:55], s101 offen")] + \
                    [("v", x) for x in gelu_ops(24, 64, 8, 72, ST0, PK)] + [("st", f"buffer_store_dwordx4 v[64:67], v{V_L16}, s[52:55], s101 offen offset:1024")]
                per = -(-len(G) // (64 - P3 - 3))
            a(f"v_add_u32 v8, s66, v{V_L16}")
            r1 = list(range(NA, 10)); r2 = list(range(10, 22 - NL)); ro = list(range(10))
            done_at = {}; iss_at = {}
            def fillers(n):
                if n >= 21 and fill:
                    run(fill.pop(0))
                if n >= 21 and n % 2 == 1 and r1:
                    iss_at[r1[0]] = n; w2_dma(r1.pop(0))
                if n >= 22 and n % 2 == 0 and ro and n >= iss_at.get(ro[0], -99) + 9 and ro[0] not in r1:
                    i = ro.pop(0); assert 2 * i + 1 <= n and i < HS
                    readout(i); done_at[i] = n
                elif n % 2 == 1 and not r1 and r2 and n >= done_at.get(r2[0] - 10, 99) + W1 + 1:
                    w2_dma(r2.pop(0))
                if n >= P3 + 3:
                    assert not fill
                    for _ in range(per):
                        if G:
                            if G[0][0] == "b" and n < P3 + 7: break
                            k, ins = G.pop(0)
                            if k == "v": a(ins)
                            elif k == "l": lg.issue("ow", ins)
                            elif k == "b":
                                lg.wait("ow"); a("s_barrier")
                            else: vm.issue("fst", ins)
                if n == P3 - 1: stamp(a, 34)
            stream(a, vm, lg, steps, W1, fillers, 29, on_sync)
            assert not fill and not G and not r1 and not r2 and not ro
            stamp(a, 35)
            vm.wait(f"w2_{21-NL}")
            for i in range(10, 16): readout(i, False)
            a(*gelu_ops(80, 16, 16, 40, ST1, pk=True))
            vm.issue("fst", f"buffer_store_dwordx4 v[16:19], v{V_L16}, s[52:55], s64 offen")
            vm.issue("fst", f"buffer_store_dwordx4 v[20:23], v{V_L16}, s[52:55], s64 offen offset:1024")
            for i in range(16, 22 - NL): readout(i, False)
            a("s_branch L_f1_done")
        else:
            steps = [mk(kt, kt, 0, "h0" if kt < 8 else ("h1" if kt < 16 else "h3")) for kt in range(32)]
            fill = [f for f in stats_fillers(8, ST0) if f[0] != "nop"] + \
                   [("lds", [("rcw", f"ds_write_b128 v9, {vr(ST0,4)}"), ("rcw", f"ds_write_b128 v9, {vr(ST0+4,4)} offset:512")]),
                    ("fn", lambda: lg.wait("rcw"))]
            fill2 = cinit(64, ST0)
            r1 = list(range(NA, 10))
            def fillers(n):
                if 8 - W1 <= n < 16 - W1:
                    for _ in range(-(-len(fill) // (16 - W1 - n))): run(fill.pop(0))
                elif n >= 13 and fill2: run(fill2.pop(0))
                if n >= 13 and ((n - 13) % 2 == 0 or NA < 4) and r1:
                    w2_dma(r1.pop(0))
                if 27 <= n < 32:
                    if 2 * (n - 27) + 1 >= NA: vm.wait(f"w2_{2*(n-27)+1}")
                    readout(2 * (n - 27), False); readout(2 * (n - 27) + 1, False)
            stream(a, vm, lg, steps, W1, fillers, 29, on_sync)
            assert not fill and not fill2
            stamp(a, 34)
            a("s_setprio 0")
            lg.wait("r9")
            a("s_nop 5")
            gl = gelu_ops(16, 40, 16, 64, ST0, PK)
            r2 = list(range(10, 22 - NL))
            for n, ins in enumerate(gl):
                if n % 12 == 0 and r2: w2_dma(r2.pop(0))
                a(ins)
            assert not r2
            a("s_cmp_eq_u32 s43, 5", "s_cselect_b32 s13, s5, 0", "s_cmp_ge_u32 s13, 3", "s_cselect_b32 s13, s55, s101", "s_cselect_b32 s14, s54, 0", "s_add_u32 s13, s13, s14")
            vm.issue("fst", f"buffer_store_dwordx4 v[40:43], v{V_L16}, s[52:55], s13 offen")
            vm.issue("fst", f"buffer_store_dwordx4 v[44:47], v{V_L16}, s[52:55], s13 offen offset:1024")
            stamp(a, 35)
            if OFFL:
                a("v_and_b32 v9, 0xffffefff, v9", "s_sub_u32 s13, s66, 16384", f"v_add_u32 v8, s13, v{V_L16}")
                a(f"ds_read_b128 {vr(ST0,4)}, v9", f"ds_read_b128 {vr(ST0+4,4)}, v9 offset:512")
                a(f"s_mul_i32 s13, s99, {86*1024}", "s_sub_u32 s15, s101, s13", "s_sub_u32 s13, s43, s3", "s_add_u32 s13, s13, 4", "s_lshl_b32 s13, s13, 11",
                  "s_sub_u32 s15, s15, s13", "s_barrier")
                for q in range(4):
                    a(f"ds_read_b128 {vr(16+4*q,4)}, v8 offset:{1024*q}")
            vm.wait(f"w2_{21-NL}")
            for i in range(10, 22 - NL):
                readout(i, False)
            if OFFL:
                a(f"s_waitcnt lgkmcnt({min(15, 2*(12-NL))})")
                a(*gelu_ops(16, 64, 16, None, ST0, os.environ.get("PK2", "0") == "1"))
                vm.issue("fst", f"buffer_store_dwordx4 v[64:67], v{V_L16}, s[52:55], s15 offen")
                vm.issue("fst", f"buffer_store_dwordx4 v[68:71], v{V_L16}, s[52:55], s15 offen offset:1024")
    a("L_f1_done:")
    stamp(a, 36)
    def sh3():
        a("buffer_load_dwordx4 v[48:51], v11, s[88:91], s17 offen")
        for i in range(22 - NL, 22):
            a(f"s_add_u32 m0, s10, {slot_lds(i)}", f"s_add_u32 s14, s97, {w2off(i)}", f"buffer_load_dwordx4 v{V_W2G}, s[56:59], s14 offen lds")
        a(f"v_add_u32 v52, s16, v{V_L16}", "v_xor_b32 v60, 0x2000, v52")
        for b in (1, 2):
            a(f"v_add_u32 v{52+b}, {b*65536:#x}, v52", f"v_add_u32 v{60+b}, {b*65536:#x}, v60")
        a("s_mul_i32 s13, s3, 6144", "s_add_u32 s13, s13, 16384", f"v_add_u32 v6, s13, v{V_L16}")
        for sg in (1, 2, 3):
            a(f"s_xor_b32 s14, s3, {sg<<1}", "s_mul_i32 s14, s14, 6144", f"s_add_u32 s14, s14, {16384+(sg-1)*2048}", f"v_add_u32 v{6+sg}, s14, v{V_L16}")
    handoff(a, "x3", 3, "s[18:19]", None, sh3, bar=True)
    stamp(a, 38); stamp(a, 61, True)
    vm = VM(a); lg = LG(a)
    def f_dma(c):
        for rt in range(2):
            vm.issue(f"f{c}", f"s_add_u32 m0, s10, {(c%10)*16384 + rt*8192}", f"s_add_u32 s13, s28, {rt*86*1024 + c*1024}",
                     f"buffer_load_dwordx4 v{V_L16}, s[52:55], s13 offen sc1 lds")
    NF0 = int(os.environ.get('NF0', '4'))
    for c in range(NF0):
        f_dma(c)
        if c == 0 and FB: a("s_barrier")
    for i in range(22 - NL, 22):
        tr_read(a, VW + 4 * i, *slot_addr(i))
    for i in range(4):
        a(f"v_lshlrev_b32 v{16+2*i}, 16, v{12+i}", f"v_and_b32 v{17+2*i}, 0xffff0000, v{12+i}",
          f"v_lshlrev_b32 v{24+2*i}, 16, v{48+i}", f"v_and_b32 v{25+2*i}, 0xffff0000, v{48+i}")
    for i in range(0, 8, 2): pk("add", 16 + i, 16 + i, 24 + i)
    for i in range(0, 8, 2): a(f"v_mov_b64 v[{24+i}:{25+i}], 0")
    a("s_waitcnt lgkmcnt(0)")
    if os.environ.get("WB", "0") == "1":
        a("s_cmp_eq_u32 s3, 7", "s_cbranch_scc0 L_wb", "s_cmp_lt_u32 s2, 8", "s_cbranch_scc0 L_wb", "buffer_wbl2 sc1", "L_wb:")
    if os.environ.get("F2G", "0") == "1":
        needs = {0: 0, 1: 1, 2: 3, 3: 3, 4: 5, 5: 5, 6: 7, 7: 7, 8: 10, 9: 10, 10: 10}
        extra = {0: [4], 1: [5, 6], 2: [7, 8], 3: [9, 10]}
        assert NF0 == 4
    else:
        needs = {c: c for c in range(11)}
        extra = {k: [k + NF0] for k in range(11 - NF0)}
    WIN = int(os.environ.get('WIN', '2'))
    steps = []
    for i in range(22):
        c, h = F2ORD[i]
        sl = c % 10
        off = (sl & 3) * 16384 + h * 4096
        rb = 64 + 8 * (i % (WIN + 1)) if False else 64 + 8 * (i % WIN)
        st = dict(id=f"x{i}", need=f"f{needs[c]}",
                  reads=[f"ds_read_b128 {vr(rb+4*s,4)}, v{(52,60)[s]+sl//4} offset:{off}" for s in range(2)],
                  mf=[lambda i=i, s=s, rb=rb: mfma32(a, 16 + 16 * s, VW + 4 * i, rb + 4 * s, None if (i == 0 and s == 1) else 16 + 16 * s) for s in range(2)])
        if i == 20:
            st["pre"] = lambda: a("s_cmp_eq_u32 s98, 3", "s_cbranch_scc1 L_f2_skip")
        steps.append(st)
    stream(a, vm, lg, steps, WIN, lambda n: None, 40, lambda k: [f_dma(c) for c in extra.get(k, [])])
    a("L_f2_skip:", "s_waitcnt lgkmcnt(0)")
    stamp(a, 51)
    octs = {1: 32, 2: 24, 3: 40}
    a("s_nop 7", "s_nop 1")
    for sg in (2, 1, 3):
        a(f"ds_write_b128 v6, {vr(octs[sg],4)} offset:{(sg-1)*2048}", f"ds_write_b128 v6, {vr(octs[sg]+4,4)} offset:{(sg-1)*2048+1024}")
    a("s_waitcnt lgkmcnt(0)", "s_barrier")
    for sg in (1, 2, 3):
        a(f"ds_read_b128 {vr(56+8*sg,4)}, v{6+sg}", f"ds_read_b128 {vr(60+8*sg,4)}, v{6+sg} offset:1024")
    for sg in (1, 2, 3):
        a(f"s_waitcnt lgkmcnt({2*(3-sg)})")
        for i in range(0, 8, 2): pk("add", 16 + i, 16 + i, 56 + 8 * sg + i)
    for i in range(4):
        a(f"v_cvt_pk_bf16_f32 v{24+i}, v{16+2*i}, v{17+2*i}")
    a("buffer_store_dwordx4 v[24:27], v10, s[20:23], s74 offen")
    stamp(a, 52)
    if STAMP: a("s_waitcnt vmcnt(0)")
    stamp(a, 62); stamp(a, 63, True)
    stamp_flush(a, 0, 8)
    a(f"{Lend}:", "s_endpgm")
    for blk in COLD: a(*blk)
    a("L_k2_slow:")
    a(f"s_mov_b32 s15, {KVF:#x}", f"v_mov_b32 v{VC}, {f32(-3.0e38)}", f"v_mov_b32 v{VC+1}, {f32(-3.0e38)}")
    a("L_k2_mx:")
    a(f"buffer_load_dwordx4 {vr(VK,4)}, v{V_L16}, s[52:55], s15 offen sc1", "s_waitcnt vmcnt(0)")
    mfma32(a, VS, VK, VQ, None)
    mfma32(a, VS + 16, VK, VQ + 4, None)
    a("s_nop 7", "s_nop 4")
    for t in range(2):
        for i in range(8):
            a(f"v_max3_f32 v{VC+t}, v{VS+16*t+2*i}, v{VS+16*t+2*i+1}, v{VC+t}")
    a("s_add_u32 s15, s15, 2048", f"s_cmp_lt_u32 s15, {KVF+64*2048:#x}", "s_cbranch_scc1 L_k2_mx")
    a(f"v_mov_b32 v{VC+2}, v{VC}", f"v_mov_b32 v{VC+3}, v{VC+1}", "s_nop 1",
      f"v_permlane32_swap_b32 v{VC}, v{VC+2}", f"v_permlane32_swap_b32 v{VC+1}, v{VC+3}", "s_nop 1",
      f"v_max_f32 v{VC}, v{VC}, v{VC+2}", f"v_max_f32 v{VC+1}, v{VC+1}, v{VC+3}")
    attention(a, vm_pre, True, later_scalars())
    a("s_branch L_k2_done")
    return a.text() + kernel_desc(name, 256, nsgpr=102), f"; @launch grid=(256,1,1) block=(512,1,1) lds={LDS}"
```

```python
from lib import *
from k1 import load_ptrs
from k1b import wg_decode2, rstd
from k2 import SM_THR
from k4 import GK1, GK2
import os
from pro import prologue_merged, KFL
MERGED = os.environ.get('MERGED', '1') == '1'
KVS = ' sc1' if MERGED else ''

LDS = 163840
L_STG = 131072
HST = 0x238000
STF = 0x440000

VQ, VK, VV, VP, VC, VO, VS = 4, 12, 20, 36, 44, 60, 92
VW = 128
V_LDSKV = 2
V_L16 = 3
V_TR = 124
V_WG = 125
V_W2G = 126
V_X = 127
SPIN = 1 << 20
TOUCH = os.environ.get("TOUCH", "1") == "1"

class VM:
    def __init__(self, a): self.a = a; self.ops = []
    def issue(self, tag, *lines):
        self.a(*lines); self.ops.append(tag)
    def wait(self, tag, extra=""):
        idx = max(i for i, t in enumerate(self.ops) if t == tag)
        n = len(self.ops) - 1 - idx
        assert n < 64
        self.a(f"s_waitcnt vmcnt({n}){extra}")
    def reset(self): self.ops = []

class LG(VM):
    def wait(self, tag, extra=""):
        idx = max(i for i, t in enumerate(self.ops) if t == tag)
        n = min(15, len(self.ops) - 1 - idx)
        self.a(f"s_waitcnt lgkmcnt({n})")

VI = VP + 7
def pv(a, O, V, P):
    a(f"v_smfmac_f32_32x32x32_bf16 {vr(O,16)}, {vr(V,4)}, {vr(P,8)}, v{VI}")

def half_body(a, ab, par, pre, mid, slow, first=False, sal=None, last=False):
    S = VS + 16 * ab; So = VS + 16 * (ab ^ 1); O = VO + 16 * ab; Oo = VO + 16 * (ab ^ 1)
    def e(i):
        a(f"v_exp_f32 v{S+i}, v{S+i}")
        if sal and (len(sal) > NLATE or i % SPR == 0): a(sal.pop(0))
    if slow:
        for i in range(16):
            a(f"v_sub_f32 v{S+i}, v{S+i}, v{VC+ab}")
    e(0); e(1)
    vpar = par ^ 1 if ab == 0 else par
    if not (first and ab == 0):
        pv(a, Oo, VV + 8 * vpar + 4, So + 8)
    mid()
    e(2); e(3); e(4)
    if ab == 1: a("s_waitcnt lgkmcnt(0)")
    kpar = par if ab == 0 else par ^ 1
    if not last:
        mfma32(a, So, VK + 4 * kpar, VQ + 4 * (ab ^ 1), None if (slow or CZ) else VC)
    pre()
    e(5); e(6); e(7); e(8); e(9)
    pv(a, O, VV + 8 * par, S)
    e(10); e(11); e(12); e(13); e(14); e(15)

def kv_dma(vm, c, hf):
    off = c * 8192 + hf * 65536
    vm.issue(f"kv{c}", f"s_add_u32 m0, s10, {off}", f"s_add_u32 s13, s11, {off}",
             f"buffer_load_dwordx4 v{V_L16}, s[52:55], s13 offen{KVS} lds")

def tr_read(a, dst, areg, off):
    a(f"ds_read_b64_tr_b16 {vr(dst,2)}, v{areg} offset:{off}", f"ds_read_b64_tr_b16 {vr(dst+2,2)}, v{areg} offset:{off+256}")

V_R0, V_R1 = VP + 5, VP + 6
DIST = int(os.environ.get("DIST", "5"))
KVB = int(os.environ.get('KVB', '15'))
def bg_schedule():
    slots = [("A", i * 1024, 0, 31) for i in range(4)]
    slots += [("B", o, 0, KVB - 5 if KVB > 15 else 14) for o in (49152, 114688, 57344, 122880)]
    wo_places = [(q >> 1) * 65536 + n * 16384 + (q & 1) * 8192 for q in range(4) for n in range(2)]
    slots += [("C", o, 15, 28) for o in wo_places]
    free = {i: sl[2] for i, sl in enumerate(slots)}
    busy = []
    reads = {t: [] for t in range(32)}; issues = {t: [] for t in range(32)}
    released = {}
    f = 0
    for t in range(32):
        while busy and len(reads[t]) < 2 and t - busy[0][2] >= DIST:
            fr, sl, _ = busy.pop(0); reads[t].append((fr, slots[sl])); free[sl] = t; released[sl] = t
        cand = [i for i in free if free[i] <= t and t + DIST + 1 <= slots[i][3] + (1 if slots[i][0] == "A" else 0)]
        cand.sort(key=lambda i: slots[i][3])
        for i in cand:
            if f < 32 and len(issues[t]) < 2:
                issues[t].append((f, slots[i])); busy.append((f, i, t)); del free[i]; f += 1
    assert f == 32 and not busy, (f, busy)
    last = {i: max(released.get(i, slots[i][2]), slots[i][2]) for i in range(len(slots))}
    kv = {}; wo = {}
    tt = 0
    for i in sorted(range(4, 8), key=lambda i: last[i]):
        tt = max(tt + (1 if KVB > 15 else 0), last[i]); kv.setdefault(tt, []).append((6 + (i - 4) // 2, (i - 4) & 1))
    assert tt <= KVB - 2, tt
    tt = 0
    for i in sorted(range(8, 16), key=lambda i: last[i]):
        tt = max(tt, last[i], 20)
        if len(wo.get(tt, [])) >= 2: tt += 1
        wo.setdefault(tt, []).append(i - 8)
    assert tt <= 28, tt
    return reads, issues, kv, wo

MISC = {}
for _it in os.environ.get("MISC", "4:t0,9:t6,9:t1,14:t2,14:w0,24:w1,24:w2,26:t3,26:t4,27:t5,27:b1,28:b2").split(","):
    _t, _x = _it.split(":"); MISC.setdefault(int(_t), []).append(_x); assert 2 <= int(_t) <= 29
PRIO = os.environ.get("PRIO", "1") == "1"
BARS = {3: "kv3", 15: "kv5", KVB: "kvL"}
def prio_schedule():
    P = {}
    ends = sorted(BARS) + [32]
    start = 0
    for e in ends:
        n = 2 * (e - start)
        l0 = 1; l1 = max(1, round(n * 0.06)); l2 = max(1, round(n * 0.21))
        P[2 * start] = 3
        P[2 * e - l0 - l1 - l2] = 2
        P[2 * e - l0 - l1] = 1
        P[2 * e - l0] = 0
        start = e
    return P

def attention(a, vm0, slow, sal):
    vm = VM(a); vm.ops = list(vm0.ops)
    reads, issues, kvl, wol = bg_schedule()
    vm.wait("kv0"); a("s_barrier")
    stamp(a, 4); stamp(a, 59, True)
    PS = prio_schedule() if PRIO else {0: 1}
    a(f"ds_read_b128 {vr(VK,4)}, v{V_LDSKV}")
    a("s_mov_b64 exec, s[60:61]",
      f"ds_read_b128 {vr(VV,4)}, v{V_LDSKV} offset:1024", f"ds_read_b128 {vr(VV+4,4)}, v{V_LDSKV} offset:768",
      "s_mov_b64 exec, -1")
    a("s_waitcnt lgkmcnt(0)")
    mfma32(a, VS, VK, VQ, None if (slow or CZ) else VC)
    a("s_nop 7", "s_nop 3")
    def w1_issue(fs):
        f, sl = fs
        vm.issue(f"w1_{f}", f"s_add_u32 m0, {'s66' if sl[0] == 'A' else 's10'}, {sl[1]}", f"s_add_u32 s13, s67, {perm32(f)*16*2752}",
                 f"buffer_load_dwordx4 v{V_WG}, s[44:47], s13 offen lds")
    for t in range(32):
        par = t & 1
        if t in BARS: vm.wait(BARS[t]); a("s_barrier")
        if t in (4, 8, 12, 16, 20, 24, 28): stamp(a, 4 + t // 4)
        base = (t + 1) * 2048
        def preA():
            if t < 31:
                a(f"ds_read_b128 {vr(VK+4*(par^1),4)}, v{V_LDSKV} offset:{base}")
            if reads[t]:
                vm.wait(f"w1_{reads[t][-1][0]}")
                for f, sl in reads[t]:
                    if sl[0] == "A": tr_read(a, VW + 4 * f, V_TR, sl[1])
                    else: tr_read(a, VW + 4 * f, V_R0 if sl[1] < 65536 else V_R1, sl[1] & 65535)
        def midA():
            if t < 31:
                a("s_mov_b64 exec, s[60:61]",
                  f"ds_read_b128 {vr(VV+8*(par^1),4)}, v{V_LDSKV} offset:{base+1024}",
                  f"ds_read_b128 {vr(VV+8*(par^1)+4,4)}, v{V_LDSKV} offset:{base+768}",
                  "s_mov_b64 exec, -1")
            if t < 2:
                kv_dma(vm, 2 + t, 0); kv_dma(vm, 2 + t, 1)
            elif 4 <= t < 8:
                kv_dma(vm, 4 + (t - 4) // 2, (t - 4) & 1)
            for item in MISC.get(t, []):
                if item[0] == "w":
                    vm.issue("pf", f"s_add_u32 s13, s62, {int(item[1])}", "s_and_b32 s14, s13, 7", "s_lshr_b32 s13, s13, 3", "s_lshl_b32 s13, s13, 14",
                             "s_lshl_b32 s14, s14, 7", "s_add_u32 s13, s13, s14",
                             f"buffer_load_dword v{V_X}, v{V_W2G}, s[56:59], s13 offen")
                elif item[0] == "t":
                    i = int(item[1])
                    reg = [100, 101, 101, 64, 64, 95, 63][i]
                    off = [0, 0, 1024, 0, 1024, 0, 0][i]
                    vm.issue("pf", f"buffer_load_dword v{V_X}, v{V_L16}, s[52:55], s{reg} offen offset:{off} sc1")
                elif item == "po":
                    vm.issue("pf", f"buffer_load_dword v{V_X}, v{V_L16}, s[20:23], s74 offen")
                elif item == "b1":
                    vm.issue("pf", f"buffer_load_dword v{V_X}, v{V_L16}, s[84:87], s67 offen")
                elif item == "b2":
                    vm.issue("pf", f"buffer_load_dword v{V_X}, v{V_L16}, s[88:91], 0 offen")
        def preB():
            if issues[t]:
                w1_issue(issues[t][0])
            if t == 29:
                vm.issue("xcc", f"buffer_load_dword v{V_X}, v{V_L16}, s[52:55], s68 offen sc1")
        def midB():
            if t == 31:
                vm.wait("xcc")
                a(f"v_cmp_ne_u32 vcc, s42, v{V_X}", "s_and_b32 s42, vcc_lo, 0xff")
                if os.environ.get("FORCE_SLOW", "0") == "1": a("s_mov_b32 s42, 1")
            if len(issues[t]) > 1:
                w1_issue(issues[t][1])
            for c, hf in kvl.get(t, []):
                kv_dma(vm, c, hf); vm.ops[-1] = "kvL"
            for i in wol.get(t, []):
                q = i >> 1
                ldsoff = (q >> 1) * 65536 + (i & 1) * 16384 + (q & 1) * 8192
                vm.issue("wo", f"s_add_u32 m0, s10, {ldsoff}", f"s_add_u32 s13, s69, {q*8*16384 + (i&1)*64}",
                         f"buffer_load_dwordx4 v{V_W2G}, s[48:51], s13 offen lds")
        if 2 * t in PS: a(f"s_setprio {PS[2*t]}")
        half_body(a, 0, par, preA, midA, slow, t == 0, sal)
        if 2 * t + 1 in PS: a(f"s_setprio {PS[2*t+1]}")
        half_body(a, 1, par, lambda: (preB(), midB()), lambda: None, slow, t == 0, sal, t == 31)
        if t == 1: assert len(sal) <= NLATE
        if t == 12: assert len(sal) <= NLATE - 8
        if t == 30: assert not sal
    a("s_nop 3")

def real_addr(a):
    a(f"v_lshrrev_b32 v{V_X}, 5, v1", f"v_lshlrev_b32 v{V_TR}, 9, v{V_X}",
      f"v_bfe_u32 v{V_X}, v1, 2, 2", f"v_lshl_or_b32 v{V_TR}, v{V_X}, 6, v{V_TR}",
      f"v_bfe_u32 v{V_X}, v1, 4, 1", f"v_lshl_or_b32 v{V_TR}, v{V_X}, 5, v{V_TR}",
      f"v_and_b32 v{V_X}, 1, v1", f"v_lshl_or_b32 v{V_TR}, v{V_X}, 4, v{V_TR}",
      f"v_bfe_u32 v{V_X}, v1, 1, 1", f"v_lshl_or_b32 v{V_TR}, v{V_X}, 3, v{V_TR}",
      f"v_add_u32 v{V_TR}, s66, v{V_TR}",
      f"v_lshrrev_b32 v{V_X}, 2, v1", f"v_lshlrev_b32 v{V_W2G}, 10, v{V_X}",
      f"v_and_b32 v{V_X}, 3, v1", f"v_lshl_or_b32 v{V_W2G}, v{V_X}, 4, v{V_W2G}",
      f"v_lshlrev_b32 v{V_X}, 2, v1")

def handoff(a, tag, word, mask, shadow1=None, shadow2=None, bar=False):
    a("v_mov_b32 v4, 1")
    if shadow1: shadow1()
    a("s_cmp_eq_u32 s42, 0", "s_waitcnt vmcnt(0) lgkmcnt(0)", "s_mov_b64 exec, 1", f"s_cbranch_scc0 L_{tag}_slow")
    a(f"buffer_store_dword v4, v5, s[52:55], s24 offen offset:{word*256}")
    a(f"L_{tag}_set:", f"s_mov_b64 exec, {mask}", f"buffer_load_dword v4, v5, s[52:55], s68 offen offset:{word*256} sc1", "s_mov_b64 exec, -1")
    stamp(a, {1: 25, 2: 26, 3: 37}[word])
    if shadow2: shadow2()
    if bar: a("s_barrier")
    a(f"s_mov_b64 exec, {mask}", "s_mov_b32 s13, 0", "s_waitcnt vmcnt(0)", "v_cmp_eq_u32 vcc, 0, v4", f"s_cbranch_vccz L_{tag}_out")
    a(f"L_{tag}_poll:", f"buffer_load_dword v4, v5, s[52:55], s68 offen offset:{word*256} sc1",
      "s_add_u32 s13, s13, 1", f"s_cmp_gt_u32 s13, {SPIN}", f"s_cbranch_scc1 L_{tag}_out",
      "s_waitcnt vmcnt(0)", "v_cmp_eq_u32 vcc, 0, v4", f"s_cbranch_vccnz L_{tag}_poll")
    a(f"L_{tag}_out:", "s_mov_b64 exec, -1")
    a("s_cmp_eq_u32 s42, 0", f"s_cbranch_scc0 L_{tag}_inv", f"L_{tag}_go:")
    COLD.append([f"L_{tag}_slow:", "buffer_wbl2 sc1", "s_waitcnt vmcnt(0)", f"buffer_store_dword v4, v5, s[52:55], s24 offen offset:{word*256} sc1",
                 f"s_branch L_{tag}_set", f"L_{tag}_inv:", "buffer_inv sc1", "s_waitcnt vmcnt(0)", f"s_branch L_{tag}_go"])
COLD = []
PERM = os.environ.get('PERM', '0') == '1'
CZ = os.environ.get('CZ', '0') == '1'
SPR = int(os.environ.get('SPR', '8'))

def gelu_ops(X, T, n, c, st, pk=False):
    K2, K1, IR = st, st + 2, st + 4
    L = []
    if pk:
        P = lambda r: f"v[{r}:{r+1}]"
        if c is not None:
            L += [f"v_pk_add_f32 {P(X+i)}, {P(X+i)}, {P(c+i)}" for i in range(0, n, 2)]
        L += [f"v_pk_mul_f32 {P(T+i)}, {P(X+i)}, {P(X+i)}" for i in range(0, n, 2)]
        L += [f"v_pk_fma_f32 {P(T+i)}, {P(T+i)}, {P(K2)}, {P(K1)} op_sel_hi:[1,0,0]" for i in range(0, n, 2)]
        L += [f"v_pk_mul_f32 {P(T+i)}, {P(T+i)}, {P(X+i)}" for i in range(0, n, 2)]
        L += [f"v_exp_f32 v{T+i}, v{T+i}" for i in range(n)]
        L += [f"v_pk_fma_f32 {P(T+i)}, {P(T+i)}, {P(IR)}, {P(IR)} op_sel_hi:[1,0,0]" for i in range(0, n, 2)]
        L += [f"v_rcp_f32 v{T+i}, v{T+i}" for i in range(n)]
        L += [f"v_pk_mul_f32 {P(X+i)}, {P(X+i)}, {P(T+i)}" for i in range(0, n, 2)]
    else:
        if c is not None:
            L += [f"v_add_f32 v{X+i}, v{X+i}, v{c+i}" for i in range(n)]
        L += [f"v_mul_f32 v{T+i}, v{X+i}, v{X+i}" for i in range(n)]
        L += [f"v_fma_f32 v{T+i}, v{T+i}, v{K2}, v{K1}" for i in range(n)]
        L += [f"v_mul_f32 v{T+i}, v{T+i}, v{X+i}" for i in range(n)]
        L += [f"v_exp_f32 v{T+i}, v{T+i}" for i in range(n)]
        L += [f"v_fma_f32 v{T+i}, v{T+i}, v{IR}, v{IR}" for i in range(n)]
        L += [f"v_rcp_f32 v{T+i}, v{T+i}" for i in range(n)]
        L += [f"v_mul_f32 v{X+i}, v{X+i}, v{T+i}" for i in range(n)]
    L += [f"v_cvt_pk_bf16_f32 v{T+i}, v{X+2*i}, v{X+2*i+1}" for i in range(n // 2)]
    return L

def slot_of(i): return i % 10 if i < 20 else i - 16
def slot_lds(i):
    sl = slot_of(i)
    return sl * 8192 if sl < 4 else (65536 + (sl - 4) * 8192 if sl < 8 else 147456 + (sl - 8) * 8192)
def slot_addr(i):
    sl = slot_of(i)
    return (V_TR, sl * 8192) if sl < 4 else ((V_X, (sl - 4) * 8192) if sl < 8 else (V_WG, (sl - 8) * 8192))
def perm32(n): return 4 * (n % 8) + n // 8
def perm16(n): return 4 * (n % 4) + n // 4
F2ORD = [(r, h) for r in range(9) for h in range(2)] + [(9, 0), (10, 0), (9, 1), (10, 1)]
def w2off(i): return (44 * F2ORD[i][1] + F2ORD[i][0]) * 16384
NA = int(os.environ.get("NA", "4"))
NL = int(os.environ.get("NL", "2"))

def stream(a, vm, lg, steps, window, fillers, sync_stamp=None, on_sync=None):
    synced = set()
    pend = []
    nxt = 0
    def issue_upto(lim):
        nonlocal nxt
        while nxt < min(len(steps), lim):
            st = steps[nxt]
            if st["need"] is not None and st["need"] not in synced:
                vm.wait(st["need"]); a("s_barrier"); synced.add(st["need"])
                if sync_stamp is not None: stamp(a, sync_stamp + len(synced) - 1)
                pend.append(len(synced) - 1)
            for k, ins in enumerate(st["reads"]):
                lg.issue(f"{st['id']}_{k}", ins)
            nxt += 1
            if pend and on_sync is not None and (nxt >= min(len(steps), lim) or (steps[nxt]["need"] not in synced and steps[nxt]["need"] is not None)):
                while pend: on_sync(pend.pop(0))
    for n, st in enumerate(steps):
        issue_upto(n + window)
        if "pre" in st: st["pre"]()
        for k, fn in enumerate(st["mf"]):
            lg.wait(f"{st['id']}_{k}")
            fn()
        issue_upto(n + window + 1)
        fillers(n)

def gen_k2f(name):
    a = A()
    kernel_begin(a, name)
    Lend = "L_k2_end"
    a("s_cmp_ge_u32 s2, 256", f"s_cbranch_scc1 {Lend}")
    stamp(a, 0, True); stamp(a, 1)
    load_ptrs(a)
    if os.environ.get("CPF", "1") == "1":
        a("s_getpc_b64 s[12:13]", "s_bfe_u32 s14, s2, 0x30003", "s_lshl_b32 s14, s14, 13", "v_lshlrev_b32 v2, 7, v0", "v_subrev_u32 v2, 0xe000, v2",
          "v_add_u32 v2, s14, v2", "v_cmp_le_u32 vcc, 448, v0", "s_cmp_lt_u32 s14, 0x8000", "s_cselect_b64 s[14:15], vcc, 0", "s_cmp_eq_u64 s[14:15], 0",
          "s_cbranch_scc1 L_cpf", "global_load_dword v123, v2, s[12:13]", "L_cpf:")
    wg_decode2(a)
    def early():
        srd(a, 44, 28, 512*2752)
    def setup():
        a("s_lshr_b32 s13, s3, 1", "s_add_u32 s13, s13, 2", "s_min_u32 s43, s13, s3",
          "s_mul_i32 s14, s5, 6", "s_mul_i32 s15, s5, 5", "s_add_u32 s15, s15, 3", "s_min_u32 s14, s14, s15",
          "s_add_u32 s65, s14, s43", "s_lshl_b32 s67, s65, 6")
        a(f"v_lshrrev_b32 v{V_WG}, 2, v1", "s_movk_i32 s13, 2752", f"v_mul_u32_u24 v{V_WG}, s13, v{V_WG}",
          f"v_and_b32 v{V_X}, 3, v1", f"v_lshl_add_u32 v{V_WG}, v{V_X}, 4, v{V_WG}")
        real_addr(a)
        a("s_mov_b32 s60, 0xffff0000", "s_mov_b32 s61, 0xffff0000")
        a("s_and_b32 s70, s3, 1", "s_bfe_u32 s71, s3, 0x10001", "s_lshr_b32 s72, s3, 2")
        a("s_lshl_b32 s12, s72, 16", f"v_add_u32 v{V_LDSKV}, s12, v{V_L16}")
        a("v_and_b32 v40, 27, v1", "v_cmp_eq_u32 vcc, 0, v40", "v_mov_b32 v41, 0x3f803f80", "s_nop 0", f"v_cndmask_b32 v{VV}, 0, v41, vcc",
          f"v_mov_b32 v{VV+1}, v{VV}")
        for i in range(2, 16, 2):
            a(f"v_mov_b64 v[{VV+i}:{VV+i+1}], v[{VV}:{VV+1}]")
        for i in range(0, 32, 2):
            a(f"v_mov_b64 v[{VO+i}:{VO+i+1}], 0")
        a(f"v_mov_b32 v{VI}, 0xdddddddd", "s_xor_b32 s12, s66, s10", f"v_xor_b32 v{V_R0}, s12, v{V_TR}", f"v_add_u32 v{V_R1}, 0x10000, v{V_R0}")
    def later_scalars():
        t = A()
        srd(t, 48, 24, 512*1024)
        srd(t, 56, 32, 1376*1024)
        t("s_lshl_b32 s69, s3, 14", "s_lshl_b32 s12, s5, 7", "s_add_u32 s69, s69, s12")
        t("s_lshr_b32 s12, s2, 3", "s_lshl_b32 s12, s12, 3", "s_add_u32 s12, s12, s3", "s_mul_i32 s62, s12, 3")
        t("s_lshl_b32 s63, s4, 1", "s_add_u32 s63, s63, s72", "s_lshl_b32 s63, s63, 5",
          "s_lshl_b32 s12, s5, 2", "s_add_u32 s63, s63, s12", "s_and_b32 s12, s3, 3", "s_add_u32 s63, s63, s12", "s_lshl_b32 s63, s63, 10")
        t("s_lshl_b32 s73, s5, 1", "s_add_u32 s73, s73, s70", "s_lshl_b32 s73, s73, 1", "s_add_u32 s73, s73, s72",
          "s_lshl_b32 s75, s4, 1", "s_add_u32 s75, s75, s71",
          "s_lshl_b32 s74, s75, 15", "s_lshl_b32 s12, s73, 5", "s_add_u32 s74, s74, s12")
        assert OF == 0
        t("s_lshl_b32 s100, s75, 5", "s_add_u32 s100, s100, s73", "s_lshl_b32 s100, s100, 10", f"s_add_u32 s100, s100, {HF:#x}")
        t("s_and_b32 s99, s70, s72",
          "s_lshl_b32 s101, s4, 1", "s_add_u32 s101, s101, s99", "s_mul_i32 s101, s101, 86", "s_lshl_b32 s12, s65, 1", "s_add_u32 s101, s101, s12",
          "s_lshl_b32 s101, s101, 10", f"s_add_u32 s101, s101, {FF:#x}")
        t("s_xor_b32 s64, s72, 1", f"s_mul_i32 s64, s64, {86*1024}", "s_add_u32 s64, s64, s101",
          "s_lshl_b32 s95, s4, 14", "s_lshl_b32 s12, s5, 11", "s_add_u32 s95, s95, s12", "s_lshl_b32 s12, s70, 10", "s_add_u32 s95, s95, s12",
          f"s_add_u32 s95, s95, {STF:#x}")
        global NLATE
        n0 = len(t.lines)
        srd(t, 84, 30, 2752)
        srd(t, 88, 34, 1024)
        srd(t, 20, 36, 2048*1024)
        t("s_lshl_b32 s6, s3, 12", "s_lshl_b32 s7, s4, 16", "s_add_u32 s7, s7, s6",
          "s_lshl_b32 s12, s3, 3", "s_mov_b64 s[8:9], 0xff", "s_lshl_b64 s[8:9], s[8:9], s12")
        t("s_add_u32 s12, s3, 2", "s_lshr_b32 s12, s12, 3", "s_add_u32 s12, s12, s3", "s_max_u32 s15, s12, 1", "s_sub_u32 s15, s15, 1", "s_lshl_b32 s15, s15, 3",
          "s_min_u32 s12, s12, 1", "s_mul_i32 s12, s12, 0xff00", "s_or_b32 s18, s12, 0xff", "s_mov_b32 s19, 0", "s_lshl_b64 s[18:19], s[18:19], s15")
        t("s_lshl_b32 s24, s5, 5", "s_lshl_b32 s12, s3, 2", "s_add_u32 s24, s24, s12", "s_add_u32 s24, s24, s68")
        t("s_lshl_b32 s26, s4, 14", f"s_add_u32 s26, s26, {STF:#x}", "s_lshl_b32 s12, s73, 9", "s_add_u32 s25, s26, s12", "s_lshl_b32 s12, s71, 8", "s_add_u32 s25, s25, s12",
          "s_lshl_b32 s27, s3, 11", "s_add_u32 s26, s26, s27", f"s_add_u32 s27, s27, {L_STG}")
        t("s_mul_i32 s28, s4, 176128", f"s_add_u32 s28, s28, {FF:#x}", "s_mul_i32 s12, s3, 11264", "s_add_u32 s28, s28, s12")
        t("s_lshr_b32 s98, s3, 1", f"s_mul_i32 s97, s98, {11*16384}", "s_lshl_b32 s12, s5, 7", "s_add_u32 s97, s97, s12", "s_lshl_b32 s12, s70, 6", "s_add_u32 s97, s97, s12")
        t("s_lshl_b32 s12, s72, 5", "s_xor_b32 s39, s66, s12", "s_lshl_b32 s12, s72, 16", "s_xor_b32 s38, s39, s12", "s_lshl_b32 s12, s70, 14", "s_xor_b32 s38, s38, s12",
          "s_xor_b32 s39, s39, s10")
        t("s_lshl_b32 s32, s71, 16", "s_lshl_b32 s12, s72, 14", "s_add_u32 s32, s32, s12", "s_add_u32 s32, s32, 32768",
          "s_lshl_b32 s33, s99, 16", "s_add_u32 s33, s33, 32768",
          "s_lshl_b32 s29, s99, 8", f"s_add_u32 s29, s29, {L_STG}", "s_lshl_b32 s96, s99, 12", "s_add_u32 s96, s96, 32768",
          "s_lshl_b32 s16, s71, 13", "s_lshl_b32 s12, s98, 10", "s_add_u32 s16, s16, s12", "s_lshl_b32 s17, s73, 5")
        NLATE = len(t.lines) - n0
        return [l.strip() for l in t.lines]
    assert MERGED
    vm = VM(a)
    def after_flags():
        a(f"s_add_u32 s11, s10, {KVF:#x}")
        kv_dma(vm, 0, 0); kv_dma(vm, 0, 1)
    def before_b5():
        kv_dma(vm, 1, 0); kv_dma(vm, 1, 1)
        a("s_cmp_eq_u32 s3, 0", "s_cbranch_scc0 L_fl2", "v_add_u32 v108, 1, v108", "s_mov_b64 exec, 1",
          f"buffer_store_dword v108, v{V_L16}, s[52:55], s82 offen sc1", "s_mov_b64 exec, -1", "L_fl2:")
    prologue_merged(a, early, setup, VQ, after_flags, before_b5)
    a("v_sqrt_f32 v37, v36", "s_waitcnt lgkmcnt(0)", "s_mov_b32 s82, 0x07060302")
    a(f"v_cmp_nge_f32 vcc, {f32(SM_THR)}, v37")
    a("s_cmp_eq_u64 vcc, 0", "s_cbranch_scc0 L_k2_slow")
    for i in range(16):
        a(f"v_sub_f32 v{VC+i}, 0, v37")
    vm_pre = vm
    attention(a, vm_pre, False, later_scalars())
    a("L_k2_done:")
    pv(a, VO + 16, VV + 8 + 4, VS + 24)
    a("s_setprio 0")
    stamp(a, 12)
    def pk(op, d, x, y, z=None, mod=""):
        ops = ", ".join(f"v[{r}:{r+1}]" for r in ([d, x, y] + ([z] if z is not None else [])))
        a(f"v_pk_{op}_f32 {ops} {mod}")
    a(f"v_add_u32 v6, s66, v{V_L16}", "v_lshlrev_b32 v5, 2, v1", "v_xor_b32 v7, 0x4000, v6", "v_add_u32 v16, s66, v5", "v_xor_b32 v17, 0x4000, v16",
      "v_and_b32 v18, 31, v1", "v_lshrrev_b32 v11, 5, v1", "v_lshlrev_b32 v11, 4, v11", "v_lshl_or_b32 v10, v18, 10, v11",
      f"v_xor_b32 v9, s38, v{V_TR}", f"v_add_u32 v8, s32, v{V_L16}", "buffer_load_dwordx4 v[12:15], v10, s[76:79], s74 offen")
    a(f"ds_write_b128 v6, {vr(VO+24,4)}", f"ds_write_b128 v6, {vr(VO+28,4)} offset:1024", f"ds_write_b32 v16, v{VO+16} offset:2048")
    a("v_cmp_eq_u32 vcc, 0, v18", "v_cmp_eq_u32 s[14:15], 17, v18", "s_or_b64 vcc, vcc, s[14:15]", "v_mov_b32 v55, s83")
    a("s_waitcnt lgkmcnt(0)", "s_barrier")
    stamp(a, 13); stamp(a, 60, True)
    a(f"ds_read_b32 v18, v17 offset:2048", f"ds_read_b128 {vr(VS,4)}, v7", f"ds_read_b128 {vr(VS+4,4)}, v7 offset:1024")
    a("v_cndmask_b32 v56, 0, v55, vcc", "v_mov_b32 v57, v56", "v_mov_b64 v[58:59], v[56:57]")
    a("s_waitcnt lgkmcnt(2)", f"v_add_f32 v18, v18, v{VO}", "v_rcp_f32 v18, v18", "s_waitcnt lgkmcnt(0)")
    for i in range(0, 8, 2): pk("add", VO + 8 + i, VO + 8 + i, VS + i)
    for i in range(0, 8, 2): pk("mul", VO + 8 + i, 18, VO + 8 + i, None, "op_sel_hi:[0,1]")
    for i in range(4):
        a(f"v_cvt_pk_bf16_f32 v{VP+i}, v{VO+8+2*i}, v{VO+9+2*i}")
    a(f"buffer_store_dwordx4 {vr(VP,4)}, v{V_L16}, s[52:55], s63 offen")
    stamp(a, 14)
    def cs_part(k0, k1):
        for kt in range(k0, k1):
            mfma16(a, 52, 56, VW + 4 * kt, None if kt == 0 else 52)
    C0, C1, C2, C3 = [int(x) for x in os.environ.get("CSP", "4,12,20,26").split(",")]
    def sh1b():
        for p in range(16):
            tr_read(a, 60 + 4 * p, 9, perm16(p) * 1024)
            if C0 + p < C1: cs_part(C0 + p, C0 + p + 1)
        for i in range(4):
            a(f"v_lshlrev_b32 v{16+2*i}, 16, v{12+i}", f"v_and_b32 v{17+2*i}, 0xffff0000, v{12+i}")
        for i in range(0, 8, 2):
            a(f"v_mov_b64 v[{24+i}:{25+i}], 0")
    handoff(a, "x1", 1, "s[8:9]", lambda: cs_part(0, C0), sh1b)
    stamp(a, 17)
    vm = VM(a); lg = LG(a)
    for half in range(2):
        for rt in range(2):
            a(f"s_add_u32 m0, s6, {32768 + rt*65536}", f"s_add_u32 s13, s7, {OF + rt*32768}")
            for i in (2 * half, 2 * half + 1):
                vm.issue(f"o{half}", f"buffer_load_dwordx4 v{V_L16}, s[52:55], s13 offen offset:{i*1024} sc1 lds")
    cs_part(C1, C2)
    a(f"v_xor_b32 v{V_TR}, s39, v{V_TR}", f"v_add_u32 v{V_X}, 0x10000, v{V_TR}", f"v_add_u32 v{V_WG}, 0x24000, v{V_TR}", "s_waitcnt lgkmcnt(0)")
    steps = []
    for p in range(16):
        steps.append(dict(id=f"o{p}", need=f"o{p//8}", reads=[f"ds_read_b128 {vr(32+4*(p%5),4)}, v8 offset:{perm16(p)*1024}"],
                          mf=[lambda p=p: mfma32(a, 16, 60 + 4 * p, 32 + 4 * (p % 5), 16)]))
    def fill0(p):
        i = p - 4
        if 0 <= i < NA:
            a(f"s_add_u32 m0, s10, {slot_lds(i)}", f"s_add_u32 s14, s97, {w2off(i)}", f"buffer_load_dwordx4 v{V_W2G}, s[56:59], s14 offen lds")
        if p == 13:
            a("buffer_load_dwordx4 v[80:83], v11, s[84:87], s67 offen", "buffer_load_dwordx4 v[84:87], v11, s[84:87], s67 offen offset:32")
    stream(a, vm, lg, steps, 5, fill0, 18)
    stamp(a, 22)
    a("v_mov_b64 v[60:61], 0", "v_lshlrev_b32 v64, 3, v1",
      "v_and_b32 v9, 31, v1", "v_lshlrev_b32 v8, 3, v9", "v_lshl_add_u32 v8, v11, 9, v8", "v_add_u32 v8, s29, v8",
      "v_lshl_add_u32 v9, v9, 4, s96", "s_nop 4")
    a("ds_write_b128 v6, v[24:27]", "ds_write_b128 v6, v[28:31] offset:1024")
    a("s_waitcnt lgkmcnt(0)", "s_barrier")
    stamp(a, 23)
    a("ds_read_b128 v[32:35], v7", "ds_read_b128 v[36:39], v7 offset:1024")
    a(f"v_add_u32 v7, s33, v{V_L16}", "v_add_u32 v6, 0x10000, v7")
    a("s_waitcnt lgkmcnt(0)")
    for i in range(0, 8, 2): pk("add", 16 + i, 16 + i, 32 + i)
    for i in range(4):
        a(f"v_cvt_pk_bf16_f32 v{12+i}, v{16+2*i}, v{17+2*i}")
    a(f"buffer_store_dwordx4 v[12:15], v{V_L16}, s[52:55], s100 offen")
    for i in range(4):
        a(f"v_dot2c_f32_bf16 v60, s83, v{12+i}", f"v_dot2c_f32_bf16 v61, v{12+i}, v{12+i}")
    a("s_nop 2", "v_mov_b64 v[62:63], v[60:61]", "s_nop 1",
      "v_permlane32_swap_b32 v60, v62", "v_permlane32_swap_b32 v61, v63", "s_nop 0",
      "v_pk_add_f32 v[60:61], v[60:61], v[62:63]",
      "s_mov_b64 exec, 0xffffffff", "buffer_store_dwordx2 v[60:61], v64, s[52:55], s25 offen", "s_mov_b64 exec, -1")
    stamp(a, 24)
    def sh2b():
        cs_part(C2, C3)
        for i in range(8):
            a(f"v_lshlrev_b32 v{64+2*i}, 16, v{80+i}", f"v_and_b32 v{65+2*i}, 0xffff0000, v{80+i}")
    handoff(a, "x2", 2, "s[8:9]", None, sh2b, bar=True)
    stamp(a, 27)
    PK = os.environ.get("PK", "0") == "1"
    BW = 96
    ST0, ST1 = 32, 112
    def P2(r): return f"v[{r}:{r+1}]"
    def stats_fillers(addr, st):
        m, q = st + 6, st + 7
        F = []
        def add2(d, x, y):
            if PK: return [f"v_pk_add_f32 {P2(d)}, {P2(x)}, {P2(y)}"]
            return [f"v_add_f32 v{d}, v{x}, v{y}", f"v_add_f32 v{d+1}, v{x+1}, v{y+1}"]
        for b in range(2):
            F.append(("lds", [(f"st{st}_{b}", f"ds_read2st64_b64 {vr(80+4*i,4)}, v{addr} offset0:{8*b+2*i} offset1:{8*b+2*i+1}") for i in range(4)]))
            F.append(("nop",))
            ops = []
            for i in range(4):
                ops += add2(80 + 4 * i, 80 + 4 * i, 82 + 4 * i)
            F.append(("valu", f"st{st}_{b}", ops))
            ops = add2(80, 80, 84) + add2(88, 88, 92)
            if b == 0:
                ops += add2(m, 80, 88)
                F.append(("valu", None, ops))
            else:
                ops += add2(80, 80, 88) + add2(m, m, 80) + [f"v_mov_b32 v{st}, v{m}", f"v_mov_b32 v{st+1}, v{q}"]
                F.append(("valu", None, ops))
                ops = ["s_nop 1", f"v_permlane32_swap_b32 v{m}, v{st}", f"v_permlane32_swap_b32 v{q}, v{st+1}", "s_nop 1"] + add2(m, m, st) + \
                      [f"v_mul_f32 v{m}, {f32(1/512)}, v{m}", f"v_mul_f32 v{q}, {f32(1/512)}, v{q}",
                       f"v_fma_f32 v{q}, -v{m}, v{m}, v{q}", f"v_max_f32 v{q}, 0, v{q}", f"v_add_f32 v{q}, {f32(1e-5)}, v{q}"]
                F.append(("valu", None, ops))
                ops = [f"v_rsq_f32 v{st+1}, v{q}", f"v_sqrt_f32 v{st+4}, v{q}",
                       f"v_mul_f32 v{st+2}, {f32(GK1)}, v{st+1}",
                       f"v_mul_f32 v{st+3}, v{st+1}, v{st+1}", f"v_mul_f32 v{st+3}, {f32(0.044715)}, v{st+3}",
                       f"v_mul_f32 v{st}, v{st+2}, v{st+3}"]
                F.append(("valu", None, ops))
        return F
    def cinit(dst, st):
        F = []
        for h in range(4):
            if PK:
                ops = [f"v_pk_mul_f32 {P2(dst+i)}, {P2(64+i)}, {P2(st+4)} op_sel_hi:[1,0]" for i in range(4*h, 4*h+4, 2)]
                ops += [f"v_pk_fma_f32 {P2(dst+i)}, {P2(st+6)}, {P2(40+i)}, {P2(dst+i)} op_sel_hi:[0,1,1] neg_lo:[1,0,0] neg_hi:[1,0,0]" for i in range(4*h, 4*h+4, 2)]
            else:
                ops = [f"v_mul_f32 v{dst+i}, v{64+i}, v{st+4}" for i in range(4*h, 4*h+4)]
                ops += [f"v_fma_f32 v{dst+i}, -v{st+6}, v{40+i}, v{dst+i}" for i in range(4*h, 4*h+4)]
            F.append(("valu", None, ops))
        return F
    vm0 = VM(a)
    HS = int(os.environ.get("HS", "12"))
    def h_dma(cs_, vm0=vm0):
        for rt in range(2):
            a(f"s_add_u32 m0, s6, {32768 + rt*65536}", f"s_add_u32 s13, s7, {HF + rt*32768}")
            for c in cs_:
                vm0.issue(f"h{cs_[-1]}", f"buffer_load_dwordx4 v{V_L16}, s[52:55], s13 offen offset:{c*1024} sc1 lds")
    FB = os.environ.get("FB", "1") == "1"
    h_dma([0])
    if FB: a("s_barrier")
    a("s_mov_b32 m0, s27", "s_nop 0")
    for i in range(2):
        vm0.issue("h1", f"buffer_load_dwordx4 v{V_L16}, s[52:55], s26 offen offset:{i*1024} sc1 lds")
    HP = os.environ.get("HP", "1") == "1"
    h_dma([1])
    if not HP: h_dma([2, 3])
    cs_part(C3, 32)
    a("s_add_u32 s13, s10, 155648", "v_add_u32 v48, s13, v5", "v_add_u32 v39, s13, v11", "s_nop 3", "s_mov_b64 exec, 0xffff",
      "ds_write_b32 v48, v52", "ds_write_b32 v48, v53 offset:64", "s_mov_b64 exec, -1")
    for q in range(4):
        a(f"ds_read_b128 {vr(40+4*q,4)}, v39 offset:{32*q}")
    a("s_cmp_ge_u32 s3, 4", "s_cbranch_scc1 L_f1_s")
    SPRIO = int(os.environ.get("SPRIO", "1"))
    for cls in ("L", "S"):
        vm = VM(a); vm.ops = list(vm0.ops); lg = LG(a)
        if cls == "S":
            a("L_f1_s:", f"s_setprio {SPRIO}")
        def w2_dma(i):
            vm.issue(f"w2_{i}", f"s_add_u32 m0, s10, {slot_lds(i)}", f"s_add_u32 s13, s97, {w2off(i)}",
                     f"buffer_load_dwordx4 v{V_W2G}, s[56:59], s13 offen lds")
        def readout(i, wait=True):
            if wait and i >= NA: vm.wait(f"w2_{i}")
            ar, of = slot_addr(i)
            lg.issue(f"r{i}", f"ds_read_b64_tr_b16 {vr(VW+4*i,2)}, v{ar} offset:{of}")
            lg.issue(f"r{i}", f"ds_read_b64_tr_b16 {vr(VW+4*i+2,2)}, v{ar} offset:{of+256}")
        on_sync = (lambda k: h_dma([2, 3], vm) if k == 0 else None) if HP else None
        def run(f):
            if f[0] == "lds":
                for tag, ins in f[1]: lg.issue(tag, ins)
            elif f[0] == "valu":
                if f[1]: lg.wait(f[1])
                a(*f[2])
            elif f[0] == "fn":
                f[1]()
        W1 = int(os.environ.get("W1", "5"))
        bufs = ([96, 100, 104, 108, 120, 60, 56] if cls == "L" else [96, 100, 104, 108, 112, 116, 120])[:W1]
        def mk(n, kt, rt, need):
            acc = 80 if rt else 16
            b = bufs[n % W1]
            return dict(id=f"b{n}", need=need, reads=[f"ds_read_b128 {vr(b,4)}, v{7-rt} offset:{perm32(kt)*1024}"],
                        mf=[lambda: mfma32(a, acc, VW + 4 * kt, b, None if kt == 0 else acc)])
        if cls == "L":
            order = [(kt, rt) for kt in range(HS) for rt in range(2)] + [(kt, 0) for kt in range(HS, 32)] + [(kt, 1) for kt in range(HS, 32)]
            steps = []
            for n, (kt, rt) in enumerate(order):
                need = "h0" if n < 8 + W1 else ("h1" if n < 20 + W1 else "h3")
                assert (kt < 8 or n >= 8 + W1) and (kt < 16 or n >= 20 + W1)
                steps.append(mk(n, kt, rt, need))
            P3 = 32 + HS
            fill = [("lds", [("rc", f"ds_read_b128 {vr(ST0,4)}, v9"), ("rc", f"ds_read_b128 {vr(ST0+4,4)}, v9 offset:512"),
                             ("rc", f"ds_read_b128 {vr(ST1,4)}, v9 offset:4096"), ("rc", f"ds_read_b128 {vr(ST1+4,4)}, v9 offset:4608")]),
                    ("nop",), ("nop",), ("valu", "rc", ["s_nop 0"])]
            for i in range(16):
                fill.append(("valu", None, [f"v_mul_f32 v56, v{64+i}, v{ST1+4}", f"v_mul_f32 v{64+i}, v{64+i}, v{ST0+4}",
                                            f"v_fma_f32 v{64+i}, -v{ST0+6}, v{40+i}, v{64+i}", f"v_fma_f32 v{40+i}, -v{ST1+6}, v{40+i}, v56"]))
            OFFL = os.environ.get("OFFL", "0") == "1"
            if OFFL:
                G = [("v", f"v_add_f32 v{16+i}, v{16+i}, v{64+i}") for i in range(16)] + \
                    [("l", f"ds_write_b128 v8, {vr(16+4*q,4)} offset:{1024*q}") for q in range(4)] + [("b", None)]
                per = 10
            else:
                G = [("v", x) for x in gelu_ops(16, 56, 8, 64, ST0, PK)] + [("st", f"buffer_store_dwordx4 v[56:59], v{V_L16}, s[52:55], s101 offen")] + \
                    [("v", x) for x in gelu_ops(24, 64, 8, 72, ST0, PK)] + [("st", f"buffer_store_dwordx4 v[64:67], v{V_L16}, s[52:55], s101 offen offset:1024")]
                per = -(-len(G) // (64 - P3 - 3))
            a(f"v_add_u32 v8, s66, v{V_L16}")
            r1 = list(range(NA, 10)); r2 = list(range(10, 22 - NL)); ro = list(range(10))
            done_at = {}; iss_at = {}
            def fillers(n):
                if n >= 21 and fill:
                    run(fill.pop(0))
                if n >= 21 and n % 2 == 1 and r1:
                    iss_at[r1[0]] = n; w2_dma(r1.pop(0))
                if n >= 22 and n % 2 == 0 and ro and n >= iss_at.get(ro[0], -99) + 9 and ro[0] not in r1:
                    i = ro.pop(0); assert 2 * i + 1 <= n and i < HS
                    readout(i); done_at[i] = n
                elif n % 2 == 1 and not r1 and r2 and n >= done_at.get(r2[0] - 10, 99) + W1 + 1:
                    w2_dma(r2.pop(0))
                if n >= P3 + 3:
                    assert not fill
                    for _ in range(per):
                        if G:
                            if G[0][0] == "b" and n < P3 + 7: break
                            k, ins = G.pop(0)
                            if k == "v": a(ins)
                            elif k == "l": lg.issue("ow", ins)
                            elif k == "b":
                                lg.wait("ow"); a("s_barrier")
                            else: vm.issue("fst", ins)
                if n == P3 - 1: stamp(a, 34)
            stream(a, vm, lg, steps, W1, fillers, 29, on_sync)
            assert not fill and not G and not r1 and not r2 and not ro
            stamp(a, 35)
            vm.wait(f"w2_{21-NL}")
            for i in range(10, 16): readout(i, False)
            a(*gelu_ops(80, 16, 16, 40, ST1, pk=True))
            vm.issue("fst", f"buffer_store_dwordx4 v[16:19], v{V_L16}, s[52:55], s64 offen")
            vm.issue("fst", f"buffer_store_dwordx4 v[20:23], v{V_L16}, s[52:55], s64 offen offset:1024")
            for i in range(16, 22 - NL): readout(i, False)
            a("s_branch L_f1_done")
        else:
            steps = [mk(kt, kt, 0, "h0" if kt < 8 else ("h1" if kt < 16 else "h3")) for kt in range(32)]
            fill = [f for f in stats_fillers(8, ST0) if f[0] != "nop"] + \
                   [("lds", [("rcw", f"ds_write_b128 v9, {vr(ST0,4)}"), ("rcw", f"ds_write_b128 v9, {vr(ST0+4,4)} offset:512")]),
                    ("fn", lambda: lg.wait("rcw"))]
            fill2 = cinit(64, ST0)
            r1 = list(range(NA, 10))
            def fillers(n):
                if 8 - W1 <= n < 16 - W1:
                    for _ in range(-(-len(fill) // (16 - W1 - n))): run(fill.pop(0))
                elif n >= 13 and fill2: run(fill2.pop(0))
                if n >= 13 and ((n - 13) % 2 == 0 or NA < 4) and r1:
                    w2_dma(r1.pop(0))
                if 27 <= n < 32:
                    if 2 * (n - 27) + 1 >= NA: vm.wait(f"w2_{2*(n-27)+1}")
                    readout(2 * (n - 27), False); readout(2 * (n - 27) + 1, False)
            stream(a, vm, lg, steps, W1, fillers, 29, on_sync)
            assert not fill and not fill2
            stamp(a, 34)
            a("s_setprio 0")
            lg.wait("r9")
            a("s_nop 5")
            gl = gelu_ops(16, 40, 16, 64, ST0, PK)
            r2 = list(range(10, 22 - NL))
            for n, ins in enumerate(gl):
                if n % 12 == 0 and r2: w2_dma(r2.pop(0))
                a(ins)
            assert not r2
            a("s_cmp_eq_u32 s43, 5", "s_cselect_b32 s13, s5, 0", "s_cmp_ge_u32 s13, 3", "s_cselect_b32 s13, s55, s101", "s_cselect_b32 s14, s54, 0", "s_add_u32 s13, s13, s14")
            vm.issue("fst", f"buffer_store_dwordx4 v[40:43], v{V_L16}, s[52:55], s13 offen")
            vm.issue("fst", f"buffer_store_dwordx4 v[44:47], v{V_L16}, s[52:55], s13 offen offset:1024")
            stamp(a, 35)
            if OFFL:
                a("v_and_b32 v9, 0xffffefff, v9", "s_sub_u32 s13, s66, 16384", f"v_add_u32 v8, s13, v{V_L16}")
                a(f"ds_read_b128 {vr(ST0,4)}, v9", f"ds_read_b128 {vr(ST0+4,4)}, v9 offset:512")
                a(f"s_mul_i32 s13, s99, {86*1024}", "s_sub_u32 s15, s101, s13", "s_sub_u32 s13, s43, s3", "s_add_u32 s13, s13, 4", "s_lshl_b32 s13, s13, 11",
                  "s_sub_u32 s15, s15, s13", "s_barrier")
                for q in range(4):
                    a(f"ds_read_b128 {vr(16+4*q,4)}, v8 offset:{1024*q}")
            vm.wait(f"w2_{21-NL}")
            for i in range(10, 22 - NL):
                readout(i, False)
            if OFFL:
                a(f"s_waitcnt lgkmcnt({min(15, 2*(12-NL))})")
                a(*gelu_ops(16, 64, 16, None, ST0, os.environ.get("PK2", "0") == "1"))
                vm.issue("fst", f"buffer_store_dwordx4 v[64:67], v{V_L16}, s[52:55], s15 offen")
                vm.issue("fst", f"buffer_store_dwordx4 v[68:71], v{V_L16}, s[52:55], s15 offen offset:1024")
    a("L_f1_done:")
    stamp(a, 36)
    def sh3():
        a("buffer_load_dwordx4 v[48:51], v11, s[88:91], s17 offen")
        for i in range(22 - NL, 22):
            a(f"s_add_u32 m0, s10, {slot_lds(i)}", f"s_add_u32 s14, s97, {w2off(i)}", f"buffer_load_dwordx4 v{V_W2G}, s[56:59], s14 offen lds")
        a(f"v_add_u32 v52, s16, v{V_L16}", "v_xor_b32 v60, 0x2000, v52")
        for b in (1, 2):
            a(f"v_add_u32 v{52+b}, {b*65536:#x}, v52", f"v_add_u32 v{60+b}, {b*65536:#x}, v60")
        a("s_mul_i32 s13, s3, 6144", "s_add_u32 s13, s13, 16384", f"v_add_u32 v6, s13, v{V_L16}")
        for sg in (1, 2, 3):
            a(f"s_xor_b32 s14, s3, {sg<<1}", "s_mul_i32 s14, s14, 6144", f"s_add_u32 s14, s14, {16384+(sg-1)*2048}", f"v_add_u32 v{6+sg}, s14, v{V_L16}")
    handoff(a, "x3", 3, "s[18:19]", None, sh3, bar=True)
    stamp(a, 38); stamp(a, 61, True)
    vm = VM(a); lg = LG(a)
    def f_dma(c):
        for rt in range(2):
            vm.issue(f"f{c}", f"s_add_u32 m0, s10, {(c%10)*16384 + rt*8192}", f"s_add_u32 s13, s28, {rt*86*1024 + c*1024}",
                     f"buffer_load_dwordx4 v{V_L16}, s[52:55], s13 offen sc1 lds")
    NF0 = int(os.environ.get('NF0', '4'))
    for c in range(NF0):
        f_dma(c)
        if c == 0 and FB: a("s_barrier")
    for i in range(22 - NL, 22):
        tr_read(a, VW + 4 * i, *slot_addr(i))
    for i in range(4):
        a(f"v_lshlrev_b32 v{16+2*i}, 16, v{12+i}", f"v_and_b32 v{17+2*i}, 0xffff0000, v{12+i}",
          f"v_lshlrev_b32 v{24+2*i}, 16, v{48+i}", f"v_and_b32 v{25+2*i}, 0xffff0000, v{48+i}")
    for i in range(0, 8, 2): pk("add", 16 + i, 16 + i, 24 + i)
    for i in range(0, 8, 2): a(f"v_mov_b64 v[{24+i}:{25+i}], 0")
    a("s_waitcnt lgkmcnt(0)")
    if os.environ.get("WB", "0") == "1":
        a("s_cmp_eq_u32 s3, 7", "s_cbranch_scc0 L_wb", "s_cmp_lt_u32 s2, 8", "s_cbranch_scc0 L_wb", "buffer_wbl2 sc1", "L_wb:")
    if os.environ.get("F2G", "0") == "1":
        needs = {0: 0, 1: 1, 2: 3, 3: 3, 4: 5, 5: 5, 6: 7, 7: 7, 8: 10, 9: 10, 10: 10}
        extra = {0: [4], 1: [5, 6], 2: [7, 8], 3: [9, 10]}
        assert NF0 == 4
    else:
        needs = {c: c for c in range(11)}
        extra = {k: [k + NF0] for k in range(11 - NF0)}
    WIN = int(os.environ.get('WIN', '2'))
    steps = []
    for i in range(22):
        c, h = F2ORD[i]
        sl = c % 10
        off = (sl & 3) * 16384 + h * 4096
        rb = 64 + 8 * (i % (WIN + 1)) if False else 64 + 8 * (i % WIN)
        st = dict(id=f"x{i}", need=f"f{needs[c]}",
                  reads=[f"ds_read_b128 {vr(rb+4*s,4)}, v{(52,60)[s]+sl//4} offset:{off}" for s in range(2)],
                  mf=[lambda i=i, s=s, rb=rb: mfma32(a, 16 + 16 * s, VW + 4 * i, rb + 4 * s, None if (i == 0 and s == 1) else 16 + 16 * s) for s in range(2)])
        if i == 20:
            st["pre"] = lambda: a("s_cmp_eq_u32 s98, 3", "s_cbranch_scc1 L_f2_skip")
        steps.append(st)
    stream(a, vm, lg, steps, WIN, lambda n: None, 40, lambda k: [f_dma(c) for c in extra.get(k, [])])
    a("L_f2_skip:", "s_waitcnt lgkmcnt(0)")
    stamp(a, 51)
    octs = {1: 32, 2: 24, 3: 40}
    a("s_nop 7", "s_nop 1")
    for sg in (2, 1, 3):
        a(f"ds_write_b128 v6, {vr(octs[sg],4)} offset:{(sg-1)*2048}", f"ds_write_b128 v6, {vr(octs[sg]+4,4)} offset:{(sg-1)*2048+1024}")
    a("s_waitcnt lgkmcnt(0)", "s_barrier")
    for sg in (1, 2, 3):
        a(f"ds_read_b128 {vr(56+8*sg,4)}, v{6+sg}", f"ds_read_b128 {vr(60+8*sg,4)}, v{6+sg} offset:1024")
    for sg in (1, 2, 3):
        a(f"s_waitcnt lgkmcnt({2*(3-sg)})")
        for i in range(0, 8, 2): pk("add", 16 + i, 16 + i, 56 + 8 * sg + i)
    for i in range(4):
        a(f"v_cvt_pk_bf16_f32 v{24+i}, v{16+2*i}, v{17+2*i}")
    a("buffer_store_dwordx4 v[24:27], v10, s[20:23], s74 offen")
    stamp(a, 52)
    if STAMP: a("s_waitcnt vmcnt(0)")
    stamp(a, 62); stamp(a, 63, True)
    stamp_flush(a, 0, 8)
    a(f"{Lend}:", "s_endpgm")
    for blk in COLD: a(*blk)
    a("L_k2_slow:")
    a(f"s_mov_b32 s15, {KVF:#x}", f"v_mov_b32 v{VC}, {f32(-3.0e38)}", f"v_mov_b32 v{VC+1}, {f32(-3.0e38)}")
    a("L_k2_mx:")
    a(f"buffer_load_dwordx4 {vr(VK,4)}, v{V_L16}, s[52:55], s15 offen sc1", "s_waitcnt vmcnt(0)")
    mfma32(a, VS, VK, VQ, None)
    mfma32(a, VS + 16, VK, VQ + 4, None)
    a("s_nop 7", "s_nop 4")
    for t in range(2):
        for i in range(8):
            a(f"v_max3_f32 v{VC+t}, v{VS+16*t+2*i}, v{VS+16*t+2*i+1}, v{VC+t}")
    a("s_add_u32 s15, s15, 2048", f"s_cmp_lt_u32 s15, {KVF+64*2048:#x}", "s_cbranch_scc1 L_k2_mx")
    a(f"v_mov_b32 v{VC+2}, v{VC}", f"v_mov_b32 v{VC+3}, v{VC+1}", "s_nop 1",
      f"v_permlane32_swap_b32 v{VC}, v{VC+2}", f"v_permlane32_swap_b32 v{VC+1}, v{VC+3}", "s_nop 1",
      f"v_max_f32 v{VC}, v{VC}, v{VC+2}", f"v_max_f32 v{VC+1}, v{VC+1}, v{VC+3}")
    attention(a, vm_pre, True, later_scalars())
    a("s_branch L_k2_done")
    return a.text() + kernel_desc(name, 256, nsgpr=102), f"; @launch grid=(256,1,1) block=(512,1,1) lds={LDS}"
```

```python
from lib import *
from k1 import load_ptrs
from k1b import wg_decode2, rstd
from k2 import SM_THR
from k4 import GK1, GK2
import os
if os.environ.get('PRO', '1') == '2':
    from pro2 import prologue_merged, KFL
else:
    from pro import prologue_merged, KFL
MERGED = os.environ.get('MERGED', '1') == '1'
KVS = ' sc1' if MERGED else ''

LDS = 163840
L_STG = 131072
HST = 0x238000
STF = 0x440000

VQ, VK, VV, VP, VC, VO, VS = 4, 12, 20, 36, 44, 60, 92
VW = 128
V_LDSKV = 2
V_L16 = 3
V_TR = 124
V_WG = 125
V_W2G = 126
V_X = 127
SPIN = 1 << 20
TOUCH = os.environ.get("TOUCH", "1") == "1"

class VM:
    def __init__(self, a): self.a = a; self.ops = []
    def issue(self, tag, *lines):
        self.a(*lines); self.ops.append(tag)
    def wait(self, tag, extra=""):
        idx = max(i for i, t in enumerate(self.ops) if t == tag)
        n = len(self.ops) - 1 - idx
        assert n < 64
        self.a(f"s_waitcnt vmcnt({n}){extra}")
    def reset(self): self.ops = []

class LG(VM):
    def wait(self, tag, extra=""):
        idx = max(i for i, t in enumerate(self.ops) if t == tag)
        n = min(15, len(self.ops) - 1 - idx)
        self.a(f"s_waitcnt lgkmcnt({n})")

VI = VP + 7
def pv(a, O, V, P):
    a(f"v_smfmac_f32_32x32x32_bf16 {vr(O,16)}, {vr(V,4)}, {vr(P,8)}, v{VI}")

def half_body(a, ab, par, pre, mid, slow, first=False, sal=None, last=False):
    S = VS + 16 * ab; So = VS + 16 * (ab ^ 1); O = VO + 16 * ab; Oo = VO + 16 * (ab ^ 1)
    def e(i):
        a(f"v_exp_f32 v{S+i}, v{S+i}")
        if sal and (len(sal) > NLATE or i % SPR == 0): a(sal.pop(0))
    if slow:
        for i in range(16):
            a(f"v_sub_f32 v{S+i}, v{S+i}, v{VC+ab}")
    e(0); e(1)
    vpar = par ^ 1 if ab == 0 else par
    if not (first and ab == 0):
        pv(a, Oo, VV + 8 * vpar + 4, So + 8)
    mid()
    e(2); e(3); e(4)
    if ab == 1: a("s_waitcnt lgkmcnt(0)")
    kpar = par if ab == 0 else par ^ 1
    if not last:
        mfma32(a, So, VK + 4 * kpar, VQ + 4 * (ab ^ 1), None if (slow or CZ) else VC)
    pre()
    e(5); e(6); e(7); e(8); e(9)
    pv(a, O, VV + 8 * par, S)
    e(10); e(11); e(12); e(13); e(14); e(15)

def kv_dma(vm, c, hf):
    off = c * 8192 + hf * 65536
    vm.issue(f"kv{c}", f"s_add_u32 m0, s10, {off}", f"s_add_u32 s13, s11, {off}",
             f"buffer_load_dwordx4 v{V_L16}, s[52:55], s13 offen{KVS} lds")

def tr_read(a, dst, areg, off):
    a(f"ds_read_b64_tr_b16 {vr(dst,2)}, v{areg} offset:{off}", f"ds_read_b64_tr_b16 {vr(dst+2,2)}, v{areg} offset:{off+256}")

V_R0, V_R1 = VP + 5, VP + 6
DIST = int(os.environ.get("DIST", "5"))
T0 = int(os.environ.get("T0", "0"))
KVB = int(os.environ.get('KVB', '15'))
def bg_schedule():
    slots = [("A", i * 1024, 0, 31) for i in range(4)]
    slots += [("B", o, 0, KVB - 5 if KVB > 15 else 14) for o in (49152, 114688, 57344, 122880)]
    wo_places = [(q >> 1) * 65536 + n * 16384 + (q & 1) * 8192 for q in range(4) for n in range(2)]
    slots += [("C", o, 15, 28) for o in wo_places]
    free = {i: sl[2] for i, sl in enumerate(slots)}
    busy = []
    reads = {t: [] for t in range(32)}; issues = {t: [] for t in range(32)}
    released = {}
    f = 0
    for t in range(32):
        while busy and len(reads[t]) < 2 and t - busy[0][2] >= DIST:
            fr, sl, _ = busy.pop(0); reads[t].append((fr, slots[sl])); free[sl] = t; released[sl] = t
        if t < T0: continue
        cand = [i for i in free if free[i] <= t and t + DIST + 1 <= slots[i][3] + (1 if slots[i][0] == "A" else 0)]
        cand.sort(key=lambda i: slots[i][3])
        for i in cand:
            if f < 32 and len(issues[t]) < 2:
                issues[t].append((f, slots[i])); busy.append((f, i, t)); del free[i]; f += 1
    assert f == 32 and not busy, (f, busy)
    last = {i: max(released.get(i, slots[i][2]), slots[i][2]) for i in range(len(slots))}
    kv = {}; wo = {}
    tt = 0
    for i in sorted(range(4, 8), key=lambda i: last[i]):
        tt = max(tt + (1 if KVB > 15 else 0), last[i]); kv.setdefault(tt, []).append((6 + (i - 4) // 2, (i - 4) & 1))
    assert tt <= KVB - 2, tt
    tt = 0
    for i in sorted(range(8, 16), key=lambda i: last[i]):
        tt = max(tt, last[i], 20)
        if len(wo.get(tt, [])) >= 2: tt += 1
        wo.setdefault(tt, []).append(i - 8)
    assert tt <= 28, tt
    return reads, issues, kv, wo

MISC = {}
for _it in os.environ.get("MISC", "4:t0,9:t6,9:t1,14:t2,14:w0,24:w1,24:w2,26:t3,26:t4,27:t5,27:b1,28:b2").split(","):
    _t, _x = _it.split(":"); MISC.setdefault(int(_t), []).append(_x); assert 2 <= int(_t) <= 29
PRIO = os.environ.get("PRIO", "1") == "1"
BARS = {3: "kv3", 15: "kv5", KVB: "kvL"}
def prio_schedule():
    P = {}
    ends = sorted(BARS) + [32]
    start = 0
    for e in ends:
        n = 2 * (e - start)
        f0, f1, f2 = [float(x) for x in os.environ.get('PF', '0.03,0.12,0.35').split(',')]
        l0 = max(1, round(n * f0)); l1 = max(1, round(n * f1)); l2 = max(1, round(n * f2))
        P[2 * start] = 3
        P[2 * e - l0 - l1 - l2] = 2
        P[2 * e - l0 - l1] = 1
        P[2 * e - l0] = 0
        start = e
    return P

def attention(a, vm0, slow, sal):
    vm = VM(a); vm.ops = list(vm0.ops)
    reads, issues, kvl, wol = bg_schedule()
    vm.wait("kv0"); a("s_barrier")
    stamp(a, 4); stamp(a, 59, True)
    PS = prio_schedule() if PRIO else {0: 1}
    a(f"ds_read_b128 {vr(VK,4)}, v{V_LDSKV}")
    a("s_mov_b64 exec, s[60:61]",
      f"ds_read_b128 {vr(VV,4)}, v{V_LDSKV} offset:1024", f"ds_read_b128 {vr(VV+4,4)}, v{V_LDSKV} offset:768",
      "s_mov_b64 exec, -1")
    a("s_waitcnt lgkmcnt(0)")
    mfma32(a, VS, VK, VQ, None if (slow or CZ) else VC)
    a("s_nop 7", "s_nop 3")
    def w1_issue(fs):
        f, sl = fs
        vm.issue(f"w1_{f}", f"s_add_u32 m0, {'s66' if sl[0] == 'A' else 's10'}, {sl[1]}", f"s_add_u32 s13, s67, {perm32(f)*16*2752}",
                 f"buffer_load_dwordx4 v{V_WG}, s[44:47], s13 offen lds")
    for t in range(32):
        par = t & 1
        if t in BARS: vm.wait(BARS[t]); a("s_barrier")
        if t in (4, 8, 12, 16, 20, 24, 28): stamp(a, 4 + t // 4)
        base = (t + 1) * 2048
        def preA():
            if t < 31:
                a(f"ds_read_b128 {vr(VK+4*(par^1),4)}, v{V_LDSKV} offset:{base}")
            if reads[t]:
                vm.wait(f"w1_{reads[t][-1][0]}")
                for f, sl in reads[t]:
                    if sl[0] == "A": tr_read(a, VW + 4 * f, V_TR, sl[1])
                    else: tr_read(a, VW + 4 * f, V_R0 if sl[1] < 65536 else V_R1, sl[1] & 65535)
        def midA():
            if t < 31:
                a("s_mov_b64 exec, s[60:61]",
                  f"ds_read_b128 {vr(VV+8*(par^1),4)}, v{V_LDSKV} offset:{base+1024}",
                  f"ds_read_b128 {vr(VV+8*(par^1)+4,4)}, v{V_LDSKV} offset:{base+768}",
                  "s_mov_b64 exec, -1")
            if t < 2:
                kv_dma(vm, 2 + t, 0); kv_dma(vm, 2 + t, 1)
            elif 4 <= t < 8:
                kv_dma(vm, 4 + (t - 4) // 2, (t - 4) & 1)
            for item in MISC.get(t, []):
                if item[0] == "w":
                    vm.issue("pf", f"s_add_u32 s13, s62, {int(item[1])}", "s_and_b32 s14, s13, 7", "s_lshr_b32 s13, s13, 3", "s_lshl_b32 s13, s13, 14",
                             "s_lshl_b32 s14, s14, 7", "s_add_u32 s13, s13, s14",
                             f"buffer_load_dword v{V_X}, v{V_W2G}, s[56:59], s13 offen")
                elif item[0] == "t":
                    i = int(item[1])
                    reg = [100, 101, 101, 64, 64, 95, 63][i]
                    off = [0, 0, 1024, 0, 1024, 0, 0][i]
                    vm.issue("pf", f"buffer_load_dword v{V_X}, v{V_L16}, s[52:55], s{reg} offen offset:{off} sc1")
                elif item == "gt":
                    a("v_lshlrev_b32 v36, 7, v1", "v_mov_b32 v37, s100")
                    for lim, reg in ((8, 101), (24, 64), (40, 63), (48, 95)):
                        a(f"s_sub_u32 s14, s{reg}, {lim*128}", f"v_cmp_le_u32 vcc, {lim}, v1", "v_mov_b32 v38, s14", "s_nop 0", "v_cndmask_b32 v37, v37, v38, vcc")
                    a("v_add_u32 v37, v37, v36", "s_mov_b32 exec_hi, 0xffffff")
                    vm.issue("pf", f"buffer_load_dword v{V_X}, v37, s[52:55], 0 offen sc1", "s_mov_b64 exec, -1")
                elif item in ("g1", "g2", "go"):
                    srdn, mult, msk = {"g1": ("s[44:47]", 5504, "0x7ff"), "g2": ("s[56:59]", 5504, "0x7ff"), "go": ("s[48:51]", 2048, None)}[item]
                    a("v_lshlrev_b32 v36, 7, v1", "s_lshr_b32 s14, s2, 3", "s_lshl_b32 s14, s14, 3", "s_add_u32 s14, s14, s3", f"s_mul_i32 s14, s14, {mult}",
                      f"s_mov_b32 exec_hi, {msk}" if msk else "s_mov_b64 exec, 0xffff")
                    vm.issue("pf", f"buffer_load_dword v{V_X}, v36, {srdn}, s14 offen", "s_mov_b64 exec, -1")
                elif item == "po":
                    vm.issue("pf", f"buffer_load_dword v{V_X}, v{V_L16}, s[20:23], s74 offen")
                elif item == "b1":
                    vm.issue("pf", f"buffer_load_dword v{V_X}, v{V_L16}, s[84:87], s67 offen")
                elif item == "b2":
                    vm.issue("pf", f"buffer_load_dword v{V_X}, v{V_L16}, s[88:91], 0 offen")
        def preB():
            if issues[t]:
                w1_issue(issues[t][0])
            if t == 29:
                vm.issue("xcc", f"buffer_load_dword v{V_X}, v{V_L16}, s[52:55], s68 offen sc1")
        def midB():
            if t == 31:
                vm.wait("xcc")
                a(f"v_cmp_ne_u32 vcc, s42, v{V_X}", "s_or_b32 s42, vcc_lo, vcc_hi", "s_and_b32 s42, s42, 0x01010101")
                if os.environ.get("FORCE_SLOW", "0") == "1": a("s_mov_b32 s42, 1")
            if len(issues[t]) > 1:
                w1_issue(issues[t][1])
            for c, hf in kvl.get(t, []):
                kv_dma(vm, c, hf); vm.ops[-1] = "kvL"
            for i in wol.get(t, []):
                q = i >> 1
                ldsoff = (q >> 1) * 65536 + (i & 1) * 16384 + (q & 1) * 8192
                vm.issue("wo", f"s_add_u32 m0, s10, {ldsoff}", f"s_add_u32 s13, s69, {q*8*16384 + (i&1)*64}",
                         f"buffer_load_dwordx4 v{V_W2G}, s[48:51], s13 offen lds")
        if 2 * t in PS: a(f"s_setprio {PS[2*t]}")
        half_body(a, 0, par, preA, midA, slow, t == 0, sal)
        if 2 * t + 1 in PS: a(f"s_setprio {PS[2*t+1]}")
        half_body(a, 1, par, lambda: (preB(), midB()), lambda: None, slow, t == 0, sal, t == 31)
        if t == 1: assert len(sal) <= NLATE
        if t == 12: assert len(sal) <= NLATE - 8
        if t == 30: assert not sal
    a("s_nop 3")

def real_addr(a):
    a(f"v_lshrrev_b32 v{V_X}, 5, v1", f"v_lshlrev_b32 v{V_TR}, 9, v{V_X}",
      f"v_bfe_u32 v{V_X}, v1, 2, 2", f"v_lshl_or_b32 v{V_TR}, v{V_X}, 6, v{V_TR}",
      f"v_bfe_u32 v{V_X}, v1, 4, 1", f"v_lshl_or_b32 v{V_TR}, v{V_X}, 5, v{V_TR}",
      f"v_and_b32 v{V_X}, 1, v1", f"v_lshl_or_b32 v{V_TR}, v{V_X}, 4, v{V_TR}",
      f"v_bfe_u32 v{V_X}, v1, 1, 1", f"v_lshl_or_b32 v{V_TR}, v{V_X}, 3, v{V_TR}",
      f"v_add_u32 v{V_TR}, s66, v{V_TR}",
      f"v_lshrrev_b32 v{V_X}, 2, v1", f"v_lshlrev_b32 v{V_W2G}, 10, v{V_X}",
      f"v_and_b32 v{V_X}, 3, v1", f"v_lshl_or_b32 v{V_W2G}, v{V_X}, 4, v{V_W2G}",
      f"v_lshlrev_b32 v{V_X}, 2, v1")

def handoff(a, tag, word, mask, shadow1=None, shadow2=None, bar=False):
    a("v_mov_b32 v4, 1")
    if shadow1: shadow1()
    a("s_cmp_eq_u32 s42, 0", "s_waitcnt vmcnt(0) lgkmcnt(0)", "s_mov_b64 exec, 1", f"s_cbranch_scc0 L_{tag}_slow")
    a(f"buffer_store_dword v4, v5, s[52:55], s24 offen offset:{word*32}")
    a(f"L_{tag}_set:", f"s_mov_b64 exec, {mask}", f"buffer_load_dword v4, v5, s[52:55], s68 offen offset:{word*32} sc1", "s_mov_b64 exec, -1")
    stamp(a, {1: 25, 2: 26, 3: 37}[word])
    if shadow2: shadow2()
    if bar: a("s_barrier")
    a(f"s_mov_b64 exec, {mask}", "s_mov_b32 s13, 0", "s_waitcnt vmcnt(0)", "v_cmp_eq_u32 vcc, 0, v4", f"s_cbranch_vccz L_{tag}_out")
    PD = int(os.environ.get("PD", "2"))
    regs = [4, 2, 0][:PD] if not STAMP else [4, 2][:PD]
    ld = lambda r: f"buffer_load_dword v{r}, v5, s[52:55], s68 offen offset:{word*32} sc1"
    GAP = os.environ.get("GAP", "")
    for r in regs[:-1]:
        a(ld(r))
        if GAP: a(GAP)
    a(f"L_{tag}_poll:")
    for k in range(len(regs)):
        a(ld(regs[k - 1]), f"s_waitcnt vmcnt({len(regs)-1})", f"v_cmp_eq_u32 vcc, 0, v{regs[k]}", f"s_cbranch_vccz L_{tag}_out")
    a("s_add_u32 s13, s13, 1", f"s_cmp_lt_u32 s13, {SPIN}", f"s_cbranch_scc1 L_{tag}_poll")
    a(f"L_{tag}_out:", "s_mov_b64 exec, -1")
    a("s_cmp_eq_u32 s42, 0", f"s_cbranch_scc0 L_{tag}_inv", f"L_{tag}_go:")
    COLD.append([f"L_{tag}_slow:", "buffer_wbl2 sc1", "s_waitcnt vmcnt(0)", f"buffer_store_dword v4, v5, s[52:55], s24 offen offset:{word*32} sc1",
                 f"s_branch L_{tag}_set", f"L_{tag}_inv:", "buffer_inv sc1", "s_waitcnt vmcnt(0)", f"s_branch L_{tag}_go"])
COLD = []
O16 = os.environ.get('O16', '1') == '1'
PERM = os.environ.get('PERM', '0') == '1'
CZ = os.environ.get('CZ', '0') == '1'
SPR = int(os.environ.get('SPR', '8'))

def gelu_ops(X, T, n, c, st, pk=False):
    K2, K1, IR = st, st + 2, st + 4
    L = []
    if pk:
        P = lambda r: f"v[{r}:{r+1}]"
        if c is not None:
            L += [f"v_pk_add_f32 {P(X+i)}, {P(X+i)}, {P(c+i)}" for i in range(0, n, 2)]
        L += [f"v_pk_mul_f32 {P(T+i)}, {P(X+i)}, {P(X+i)}" for i in range(0, n, 2)]
        L += [f"v_pk_fma_f32 {P(T+i)}, {P(T+i)}, {P(K2)}, {P(K1)} op_sel_hi:[1,0,0]" for i in range(0, n, 2)]
        L += [f"v_pk_mul_f32 {P(T+i)}, {P(T+i)}, {P(X+i)}" for i in range(0, n, 2)]
        L += [f"v_exp_f32 v{T+i}, v{T+i}" for i in range(n)]
        L += [f"v_pk_fma_f32 {P(T+i)}, {P(T+i)}, {P(IR)}, {P(IR)} op_sel_hi:[1,0,0]" for i in range(0, n, 2)]
        L += [f"v_rcp_f32 v{T+i}, v{T+i}" for i in range(n)]
        L += [f"v_pk_mul_f32 {P(X+i)}, {P(X+i)}, {P(T+i)}" for i in range(0, n, 2)]
    else:
        if c is not None:
            L += [f"v_add_f32 v{X+i}, v{X+i}, v{c+i}" for i in range(n)]
        L += [f"v_mul_f32 v{T+i}, v{X+i}, v{X+i}" for i in range(n)]
        L += [f"v_fma_f32 v{T+i}, v{T+i}, v{K2}, v{K1}" for i in range(n)]
        L += [f"v_mul_f32 v{T+i}, v{T+i}, v{X+i}" for i in range(n)]
        L += [f"v_exp_f32 v{T+i}, v{T+i}" for i in range(n)]
        L += [f"v_fma_f32 v{T+i}, v{T+i}, v{IR}, v{IR}" for i in range(n)]
        L += [f"v_rcp_f32 v{T+i}, v{T+i}" for i in range(n)]
        L += [f"v_mul_f32 v{X+i}, v{X+i}, v{T+i}" for i in range(n)]
    L += [f"v_cvt_pk_bf16_f32 v{T+i}, v{X+2*i}, v{X+2*i+1}" for i in range(n // 2)]
    return L

def slot_of(i): return i % 10 if i < 20 else i - 16
def slot_lds(i):
    sl = slot_of(i)
    return sl * 8192 if sl < 4 else (65536 + (sl - 4) * 8192 if sl < 8 else 147456 + (sl - 8) * 8192)
def slot_addr(i):
    sl = slot_of(i)
    return (V_TR, sl * 8192) if sl < 4 else ((V_X, (sl - 4) * 8192) if sl < 8 else (V_WG, (sl - 8) * 8192))
def perm32(n): return 4 * (n % 8) + n // 8
def perm16(n): return 4 * (n % 4) + n // 4
F2ORD = [(r, h) for r in range(9) for h in range(2)] + [(9, 0), (10, 0), (9, 1), (10, 1)]
def w2off(i): return (44 * F2ORD[i][1] + F2ORD[i][0]) * 16384
NA = int(os.environ.get("NA", "4"))
NL = int(os.environ.get("NL", "2"))

def stream(a, vm, lg, steps, window, fillers, sync_stamp=None, on_sync=None):
    synced = set()
    pend = []
    nxt = 0
    def issue_upto(lim):
        nonlocal nxt
        while nxt < min(len(steps), lim):
            st = steps[nxt]
            if st["need"] is not None and st["need"] not in synced:
                vm.wait(st["need"]); a("s_barrier"); synced.add(st["need"])
                if sync_stamp is not None: stamp(a, sync_stamp + len(synced) - 1)
                pend.append(len(synced) - 1)
            for k, ins in enumerate(st["reads"]):
                lg.issue(f"{st['id']}_{k}", ins)
            nxt += 1
            if pend and on_sync is not None and (nxt >= min(len(steps), lim) or (steps[nxt]["need"] not in synced and steps[nxt]["need"] is not None)):
                while pend: on_sync(pend.pop(0))
    for n, st in enumerate(steps):
        issue_upto(n + window)
        if "pre" in st: st["pre"]()
        for k, fn in enumerate(st["mf"]):
            lg.wait(f"{st['id']}_{k}")
            fn()
        issue_upto(n + window + 1)
        fillers(n)

def gen_k2f(name):
    a = A()
    kernel_begin(a, name)
    Lend = "L_k2_end"
    a("s_cmp_ge_u32 s2, 256", f"s_cbranch_scc1 {Lend}")
    stamp(a, 0, True); stamp(a, 1)
    load_ptrs(a)
    if os.environ.get("CPF", "1") == "1":
        a("s_getpc_b64 s[12:13]", "s_bfe_u32 s14, s2, 0x30003", "s_lshl_b32 s14, s14, 13", "v_lshlrev_b32 v2, 7, v0", "v_subrev_u32 v2, 0xe000, v2",
          "v_add_u32 v2, s14, v2", "v_cmp_le_u32 vcc, 448, v0", "s_cmp_lt_u32 s14, 0x8000", "s_cselect_b64 s[14:15], vcc, 0", "s_cmp_eq_u64 s[14:15], 0",
          "s_cbranch_scc1 L_cpf", "global_load_dword v123, v2, s[12:13]", "L_cpf:")
    wg_decode2(a)
    def early():
        srd(a, 44, 28, 512*2752)
    def setup():
        a("s_lshr_b32 s13, s3, 1", "s_add_u32 s13, s13, 2", "s_min_u32 s43, s13, s3",
          "s_mul_i32 s14, s5, 6", "s_mul_i32 s15, s5, 5", "s_add_u32 s15, s15, 3", "s_min_u32 s14, s14, s15",
          "s_add_u32 s65, s14, s43", "s_lshl_b32 s67, s65, 6")
        a(f"v_lshrrev_b32 v{V_WG}, 2, v1", "s_movk_i32 s13, 2752", f"v_mul_u32_u24 v{V_WG}, s13, v{V_WG}",
          f"v_and_b32 v{V_X}, 3, v1", f"v_lshl_add_u32 v{V_WG}, v{V_X}, 4, v{V_WG}")
        real_addr(a)
        a("s_mov_b32 s60, 0xffff0000", "s_mov_b32 s61, 0xffff0000")
        a("s_and_b32 s70, s3, 1", "s_bfe_u32 s71, s3, 0x10001", "s_lshr_b32 s72, s3, 2")
        a("s_lshl_b32 s12, s72, 16", f"v_add_u32 v{V_LDSKV}, s12, v{V_L16}")
        a("v_and_b32 v40, 27, v1", "v_cmp_eq_u32 vcc, 0, v40", "v_mov_b32 v41, 0x3f803f80", "s_nop 0", f"v_cndmask_b32 v{VV}, 0, v41, vcc",
          f"v_mov_b32 v{VV+1}, v{VV}")
        for i in range(2, 16, 2):
            a(f"v_mov_b64 v[{VV+i}:{VV+i+1}], v[{VV}:{VV+1}]")
        for i in range(0, 32, 2):
            a(f"v_mov_b64 v[{VO+i}:{VO+i+1}], 0")
        a(f"v_mov_b32 v{VI}, 0xdddddddd", "s_xor_b32 s12, s66, s10", f"v_xor_b32 v{V_R0}, s12, v{V_TR}", f"v_add_u32 v{V_R1}, 0x10000, v{V_R0}")
    def later_scalars():
        t = A()
        srd(t, 48, 24, 512*1024)
        srd(t, 56, 32, 1376*1024)
        t("s_lshl_b32 s69, s3, 14", "s_lshl_b32 s12, s5, 7", "s_add_u32 s69, s69, s12")
        t("s_lshr_b32 s12, s2, 3", "s_lshl_b32 s12, s12, 3", "s_add_u32 s12, s12, s3", "s_mul_i32 s62, s12, 3")
        t("s_lshl_b32 s63, s4, 1", "s_add_u32 s63, s63, s72", "s_lshl_b32 s63, s63, 5",
          "s_lshl_b32 s12, s5, 2", "s_add_u32 s63, s63, s12", "s_and_b32 s12, s3, 3", "s_add_u32 s63, s63, s12", "s_lshl_b32 s63, s63, 10")
        t("s_lshl_b32 s73, s5, 1", "s_add_u32 s73, s73, s70", "s_lshl_b32 s73, s73, 1", "s_add_u32 s73, s73, s72",
          "s_lshl_b32 s75, s4, 1", "s_add_u32 s75, s75, s71",
          "s_lshl_b32 s74, s75, 15", "s_lshl_b32 s12, s73, 5", "s_add_u32 s74, s74, s12")
        assert OF == 0
        t("s_lshl_b32 s100, s75, 5", "s_add_u32 s100, s100, s73", "s_lshl_b32 s100, s100, 10", f"s_add_u32 s100, s100, {HF:#x}")
        t("s_and_b32 s99, s70, s72",
          "s_lshl_b32 s101, s4, 1", "s_add_u32 s101, s101, s99", "s_mul_i32 s101, s101, 86", "s_lshl_b32 s12, s65, 1", "s_add_u32 s101, s101, s12",
          "s_lshl_b32 s101, s101, 10", f"s_add_u32 s101, s101, {FF:#x}")
        t("s_xor_b32 s64, s72, 1", f"s_mul_i32 s64, s64, {86*1024}", "s_add_u32 s64, s64, s101",
          "s_lshl_b32 s95, s4, 14", "s_lshl_b32 s12, s5, 11", "s_add_u32 s95, s95, s12", "s_lshl_b32 s12, s70, 10", "s_add_u32 s95, s95, s12",
          f"s_add_u32 s95, s95, {STF:#x}")
        global NLATE
        n0 = len(t.lines)
        srd(t, 84, 30, 2752)
        srd(t, 88, 34, 1024)
        srd(t, 20, 36, 2048*1024)
        t("s_lshl_b32 s6, s3, 12", "s_lshl_b32 s7, s4, 16", "s_add_u32 s7, s7, s6",
          "s_lshl_b32 s12, s3, 3", "s_mov_b64 s[8:9], 0xff", "s_lshl_b64 s[8:9], s[8:9], s12")
        t("s_add_u32 s12, s3, 2", "s_lshr_b32 s12, s12, 3", "s_add_u32 s12, s12, s3", "s_max_u32 s15, s12, 1", "s_sub_u32 s15, s15, 1", "s_lshl_b32 s15, s15, 3",
          "s_min_u32 s12, s12, 1", "s_mul_i32 s12, s12, 0xff00", "s_or_b32 s18, s12, 0xff", "s_mov_b32 s19, 0", "s_lshl_b64 s[18:19], s[18:19], s15")
        t("s_lshl_b32 s24, s5, 7", "s_lshl_b32 s12, s3, 2", "s_add_u32 s24, s24, s12", "s_add_u32 s24, s24, s68")
        t("s_lshl_b32 s26, s4, 14", f"s_add_u32 s26, s26, {STF:#x}", "s_lshl_b32 s12, s73, 9", "s_add_u32 s25, s26, s12", "s_lshl_b32 s12, s71, 8", "s_add_u32 s25, s25, s12",
          "s_lshl_b32 s27, s3, 11", "s_add_u32 s26, s26, s27", f"s_add_u32 s27, s27, {L_STG}")
        t("s_mul_i32 s28, s4, 176128", f"s_add_u32 s28, s28, {FF:#x}", "s_mul_i32 s12, s3, 11264", "s_add_u32 s28, s28, s12")
        t("s_lshr_b32 s98, s3, 1", f"s_mul_i32 s97, s98, {11*16384}", "s_lshl_b32 s12, s5, 7", "s_add_u32 s97, s97, s12", "s_lshl_b32 s12, s70, 6", "s_add_u32 s97, s97, s12")
        t("s_lshl_b32 s12, s72, 5", "s_xor_b32 s39, s66, s12", "s_lshl_b32 s12, s72, 16", "s_xor_b32 s38, s39, s12", "s_lshl_b32 s12, s70, 14", "s_xor_b32 s38, s38, s12",
          "s_xor_b32 s39, s39, s10")
        t("s_lshl_b32 s32, s71, 16", "s_lshl_b32 s12, s72, 14", "s_add_u32 s32, s32, s12", "s_add_u32 s32, s32, 32768",
          "s_lshl_b32 s33, s99, 16", "s_add_u32 s33, s33, 32768",
          "s_lshl_b32 s29, s99, 8", f"s_add_u32 s29, s29, {L_STG}", "s_lshl_b32 s96, s99, 12", "s_add_u32 s96, s96, 32768",
          "s_lshl_b32 s16, s71, 13", "s_lshl_b32 s12, s98, 10", "s_add_u32 s16, s16, s12", "s_lshl_b32 s17, s73, 5")
        if O16:
            t("s_lshl_b32 s38, s72, 5", "s_lshl_b32 s12, s70, 14", "s_add_u32 s38, s38, s12", "s_lshl_b32 s32, s71, 16", "s_add_u32 s32, s32, 32768")
        NLATE = len(t.lines) - n0
        return [l.strip() for l in t.lines]
    assert MERGED
    vm = VM(a)
    def after_flags():
        a(f"s_add_u32 s11, s10, {KVF:#x}")
        kv_dma(vm, 0, 0); kv_dma(vm, 0, 1)
    def before_b5():
        kv_dma(vm, 1, 0); kv_dma(vm, 1, 1)
        a("s_cmp_eq_u32 s3, 0", "s_cbranch_scc0 L_fl2", "v_add_u32 v108, 1, v108", "s_mov_b64 exec, 1",
          f"buffer_store_dword v108, v{V_L16}, s[52:55], s82 offen sc1", "s_mov_b64 exec, -1", "L_fl2:")
    prologue_merged(a, early, setup, VQ, after_flags, before_b5)
    a("v_sqrt_f32 v37, v36", "s_waitcnt lgkmcnt(0)", "s_mov_b32 s82, 0x07060302")
    a(f"v_cmp_nge_f32 vcc, {f32(SM_THR)}, v37")
    a("s_cmp_eq_u64 vcc, 0", "s_cbranch_scc0 L_k2_slow")
    for i in range(16):
        a(f"v_sub_f32 v{VC+i}, 0, v37")
    vm_pre = vm
    attention(a, vm_pre, False, later_scalars())
    a("L_k2_done:")
    pv(a, VO + 16, VV + 8 + 4, VS + 24)
    a("s_setprio 0")
    stamp(a, 12)
    def pk(op, d, x, y, z=None, mod=""):
        ops = ", ".join(f"v[{r}:{r+1}]" for r in ([d, x, y] + ([z] if z is not None else [])))
        a(f"v_pk_{op}_f32 {ops} {mod}")
    a(f"v_add_u32 v6, s66, v{V_L16}", "v_xor_b32 v7, 0x4000, v6", "v_lshl_add_u32 v16, v1, 2, s66", "v_xor_b32 v17, 0x4000, v16", "v_and_b32 v5, 7, v1",
      "v_and_b32 v18, 31, v1", "v_lshrrev_b32 v11, 5, v1", "v_lshlrev_b32 v11, 4, v11", "v_lshl_or_b32 v10, v18, 10, v11",
      f"v_xor_b32 v9, s38, v{V_TR}", f"v_add_u32 v8, s32, v{V_L16}", "buffer_load_dwordx4 v[12:15], v10, s[76:79], s74 offen")
    a(f"ds_write_b128 v6, {vr(VO+24,4)}", f"ds_write_b128 v6, {vr(VO+28,4)} offset:1024", f"ds_write_b32 v16, v{VO+16} offset:2048")
    a("v_cmp_eq_u32 vcc, 0, v18", "v_cmp_eq_u32 s[14:15], 17, v18", "s_or_b64 vcc, vcc, s[14:15]", "v_mov_b32 v55, s83",
      f"v_and_b32 v4, 0x380, v{V_L16}", "v_lshl_or_b32 v5, v5, 2, v4")
    a("s_waitcnt lgkmcnt(0)", "s_barrier")
    stamp(a, 13); stamp(a, 60, True)
    a(f"ds_read_b32 v18, v17 offset:2048", f"ds_read_b128 {vr(VS,4)}, v7", f"ds_read_b128 {vr(VS+4,4)}, v7 offset:1024")
    a("v_cndmask_b32 v56, 0, v55, vcc", "v_mov_b32 v57, v56", "v_mov_b64 v[58:59], v[56:57]")
    if O16:
        a("v_lshrrev_b32 v20, 4, v1", "v_lshlrev_b32 v20, 9, v20", "v_and_b32 v21, 15, v1", "v_lshl_or_b32 v8, v21, 4, v20", "v_add_u32 v8, s32, v8",
          "v_bfe_u32 v21, v1, 2, 2", "v_lshl_or_b32 v20, v21, 6, v20", "v_and_b32 v21, 3, v1", "v_lshl_or_b32 v20, v21, 3, v20",
          "v_add_u32 v9, s38, v20", "v_add_u32 v6, 0x10000, v9")
    a("s_waitcnt lgkmcnt(2)", f"v_add_f32 v18, v18, v{VO}", "v_rcp_f32 v18, v18", "s_waitcnt lgkmcnt(0)")
    for i in range(0, 8, 2): pk("add", VO + 8 + i, VO + 8 + i, VS + i)
    for i in range(0, 8, 2): pk("mul", VO + 8 + i, 18, VO + 8 + i, None, "op_sel_hi:[0,1]")
    for i in range(4):
        a(f"v_cvt_pk_bf16_f32 v{VP+i}, v{VO+8+2*i}, v{VO+9+2*i}")
    a(f"buffer_store_dwordx4 {vr(VP,4)}, v{V_L16}, s[52:55], s63 offen")
    stamp(a, 14)
    def cs_part(k0, k1):
        for kt in range(k0, k1):
            mfma16(a, 52, 56, VW + 4 * kt, None if kt == 0 else 52)
    cw = [int(x) for x in os.environ.get("CSW", "4,8,4,0,4,4,8,0").split(",")]
    assert sum(cw) == 32
    cpos = [0]
    def cs_win(k, n=None):
        n = cw[k] if n is None else n
        cs_part(cpos[0], cpos[0] + n); cpos[0] += n
    WS = int(os.environ.get("WS", "0"))
    m_of = lambda p: 2 * (p % 8) + p // 8
    def accinit():
        if O16:
            a("v_permlane16_swap_b32 v12, v14", "v_permlane16_swap_b32 v13, v15", "s_nop 0")
            for i in range(4):
                a(f"v_lshlrev_b32 v{16+2*i}, 16, v{12+i}", f"v_and_b32 v{17+2*i}, 0xffff0000, v{12+i}")
            return
        for i in range(4):
            a(f"v_lshlrev_b32 v{16+2*i}, 16, v{12+i}", f"v_and_b32 v{17+2*i}, 0xffff0000, v{12+i}")
        for i in range(0, 8, 2):
            a(f"v_mov_b64 v[{24+i}:{25+i}], 0")
    def wo_reads(p0, p1, k):
        left = cw[k]
        for p in range(p0, p1):
            if O16: tr_read(a, 60 + 4 * p, 9 if m_of(p) < 8 else 6, (m_of(p) & 7) * 2048)
            else: tr_read(a, 60 + 4 * p, 9, perm16(p) * 1024)
            if left: cs_win(k, 1); left -= 1
        cs_win(k, left)
    def sh1b():
        wo_reads(0, WS, 1)
        if WS == 16: accinit()
    handoff(a, "x1", 1, "s[8:9]", lambda: cs_win(0), sh1b)
    stamp(a, 17)
    vm = VM(a); lg = LG(a)
    for half in range(2):
        for rt in range(2):
            a(f"s_add_u32 m0, s6, {32768 + rt*65536}", f"s_add_u32 s13, s7, {OF + rt*32768}")
            for i in (2 * half, 2 * half + 1):
                vm.issue(f"o{half}", f"buffer_load_dwordx4 v{V_L16}, s[52:55], s13 offen offset:{i*1024} sc1 lds")
    wo_reads(WS, 16, 2)
    if WS < 16: accinit()
    a(f"v_xor_b32 v{V_TR}, s39, v{V_TR}", f"v_add_u32 v{V_X}, 0x10000, v{V_TR}", f"v_add_u32 v{V_WG}, 0x24000, v{V_TR}", "s_waitcnt lgkmcnt(0)")
    steps = []
    for p in range(16):
        steps.append(dict(id=f"o{p}", need=f"o{p//8}", reads=[f"ds_read_b128 {vr(32+4*(p%5),4)}, v8 offset:{perm16(p)*1024}"],
                          mf=[lambda p=p: mfma32(a, 16, 60 + 4 * p, 32 + 4 * (p % 5), 16)]))
    if O16:
        steps = []
        for p in range(16):
            rb = 24 + 8 * (p % 3)
            steps.append(dict(id=f"o{p}", need=f"o{p//8}", reads=[f"ds_read_b128 {vr(rb+4*sb,4)}, v8 offset:{m_of(p)*2048+sb*256}" for sb in range(2)],
                              mf=[lambda p=p, sb=sb, rb=rb: mfma16(a, 16 + 4 * sb, 60 + 4 * p, rb + 4 * sb, 16 + 4 * sb) for sb in range(2)]))
    def fill0(p):
        i = p - (6 if O16 else 4)
        if 0 <= i < NA:
            a(f"s_add_u32 m0, s10, {slot_lds(i)}", f"s_add_u32 s14, s97, {w2off(i)}", f"buffer_load_dwordx4 v{V_W2G}, s[56:59], s14 offen lds")
        if p < cw[3]: cs_win(3, 1)
        if p == 13:
            a("buffer_load_dwordx4 v[80:83], v11, s[84:87], s67 offen", "buffer_load_dwordx4 v[84:87], v11, s[84:87], s67 offen offset:32")
    stream(a, vm, lg, steps, 3 if O16 else 5, fill0, 18)
    stamp(a, 22)
    a("v_mov_b64 v[60:61], 0", "v_lshlrev_b32 v64, 3, v1",
      "v_and_b32 v9, 31, v1", "v_lshlrev_b32 v8, 3, v9", "v_lshl_add_u32 v8, v11, 9, v8", "v_add_u32 v8, s29, v8",
      "v_lshl_add_u32 v9, v9, 4, s96")
    if O16:
        a(f"v_add_u32 v7, s33, v{V_L16}", "v_add_u32 v6, 0x10000, v7")
        for i in range(4):
            a(f"v_cvt_pk_bf16_f32 v{12+i}, v{16+2*i}, v{17+2*i}")
        a("s_nop 1", "v_permlane16_swap_b32 v12, v14", "v_permlane16_swap_b32 v13, v15", "s_nop 0")
        cw[5] += cw[4]
    else:
        a("s_nop 4")
        a("ds_write_b128 v6, v[24:27]", "ds_write_b128 v6, v[28:31] offset:1024")
        cs_win(4)
        a("s_waitcnt lgkmcnt(0)", "s_barrier")
        stamp(a, 23)
        a("ds_read_b128 v[32:35], v7", "ds_read_b128 v[36:39], v7 offset:1024")
        a(f"v_add_u32 v7, s33, v{V_L16}", "v_add_u32 v6, 0x10000, v7")
        a("s_waitcnt lgkmcnt(0)")
        for i in range(0, 8, 2): pk("add", 16 + i, 16 + i, 32 + i)
        for i in range(4):
            a(f"v_cvt_pk_bf16_f32 v{12+i}, v{16+2*i}, v{17+2*i}")
    a(f"buffer_store_dwordx4 v[12:15], v{V_L16}, s[52:55], s100 offen")
    for i in range(4):
        a(f"v_dot2c_f32_bf16 v60, s83, v{12+i}", f"v_dot2c_f32_bf16 v61, v{12+i}, v{12+i}")
    a("s_nop 2", "v_mov_b64 v[62:63], v[60:61]", "s_nop 1",
      "v_permlane32_swap_b32 v60, v62", "v_permlane32_swap_b32 v61, v63", "s_nop 0",
      "v_pk_add_f32 v[60:61], v[60:61], v[62:63]",
      "s_mov_b64 exec, 0xffffffff", "buffer_store_dwordx2 v[60:61], v64, s[52:55], s25 offen", "s_mov_b64 exec, -1")
    stamp(a, 24)
    def sh2b():
        cs_win(6)
        for i in range(8):
            a(f"v_lshlrev_b32 v{64+2*i}, 16, v{80+i}", f"v_and_b32 v{65+2*i}, 0xffff0000, v{80+i}")
    handoff(a, "x2", 2, "s[8:9]", lambda: cs_win(5), sh2b, bar=True)
    stamp(a, 27)
    PK = os.environ.get("PK", "0") == "1"
    BW = 96
    ST0, ST1 = 32, 112
    def P2(r): return f"v[{r}:{r+1}]"
    def stats_fillers(addr, st):
        m, q = st + 6, st + 7
        F = []
        def add2(d, x, y):
            if PK: return [f"v_pk_add_f32 {P2(d)}, {P2(x)}, {P2(y)}"]
            return [f"v_add_f32 v{d}, v{x}, v{y}", f"v_add_f32 v{d+1}, v{x+1}, v{y+1}"]
        for b in range(2):
            F.append(("lds", [(f"st{st}_{b}", f"ds_read2st64_b64 {vr(80+4*i,4)}, v{addr} offset0:{8*b+2*i} offset1:{8*b+2*i+1}") for i in range(4)]))
            F.append(("nop",))
            ops = []
            for i in range(4):
                ops += add2(80 + 4 * i, 80 + 4 * i, 82 + 4 * i)
            F.append(("valu", f"st{st}_{b}", ops))
            ops = add2(80, 80, 84) + add2(88, 88, 92)
            if b == 0:
                ops += add2(m, 80, 88)
                F.append(("valu", None, ops))
            else:
                ops += add2(80, 80, 88) + add2(m, m, 80) + [f"v_mov_b32 v{st}, v{m}", f"v_mov_b32 v{st+1}, v{q}"]
                F.append(("valu", None, ops))
                ops = ["s_nop 1", f"v_permlane32_swap_b32 v{m}, v{st}", f"v_permlane32_swap_b32 v{q}, v{st+1}", "s_nop 1"] + add2(m, m, st) + \
                      [f"v_mul_f32 v{m}, {f32(1/512)}, v{m}", f"v_mul_f32 v{q}, {f32(1/512)}, v{q}",
                       f"v_fma_f32 v{q}, -v{m}, v{m}, v{q}", f"v_max_f32 v{q}, 0, v{q}", f"v_add_f32 v{q}, {f32(1e-5)}, v{q}"]
                F.append(("valu", None, ops))
                ops = [f"v_rsq_f32 v{st+1}, v{q}", f"v_sqrt_f32 v{st+4}, v{q}",
                       f"v_mul_f32 v{st+2}, {f32(GK1)}, v{st+1}",
                       f"v_mul_f32 v{st+3}, v{st+1}, v{st+1}", f"v_mul_f32 v{st+3}, {f32(0.044715)}, v{st+3}",
                       f"v_mul_f32 v{st}, v{st+2}, v{st+3}"]
                F.append(("valu", None, ops))
        return F
    def cinit(dst, st):
        F = []
        for h in range(4):
            if PK:
                ops = [f"v_pk_mul_f32 {P2(dst+i)}, {P2(64+i)}, {P2(st+4)} op_sel_hi:[1,0]" for i in range(4*h, 4*h+4, 2)]
                ops += [f"v_pk_fma_f32 {P2(dst+i)}, {P2(st+6)}, {P2(40+i)}, {P2(dst+i)} op_sel_hi:[0,1,1] neg_lo:[1,0,0] neg_hi:[1,0,0]" for i in range(4*h, 4*h+4, 2)]
            else:
                ops = [f"v_mul_f32 v{dst+i}, v{64+i}, v{st+4}" for i in range(4*h, 4*h+4)]
                ops += [f"v_fma_f32 v{dst+i}, -v{st+6}, v{40+i}, v{dst+i}" for i in range(4*h, 4*h+4)]
            F.append(("valu", None, ops))
        return F
    vm0 = VM(a)
    HS = int(os.environ.get("HS", "12"))
    def h_dma(cs_, vm0=vm0):
        for rt in range(2):
            a(f"s_add_u32 m0, s6, {32768 + rt*65536}", f"s_add_u32 s13, s7, {HF + rt*32768}")
            for c in cs_:
                vm0.issue(f"h{cs_[-1]}", f"buffer_load_dwordx4 v{V_L16}, s[52:55], s13 offen offset:{c*1024} sc1 lds")
    FB = os.environ.get("FB", "1") == "1"
    h_dma([0])
    if FB: a("s_barrier")
    a("s_mov_b32 m0, s27", "s_nop 0")
    for i in range(2):
        vm0.issue("h1", f"buffer_load_dwordx4 v{V_L16}, s[52:55], s26 offen offset:{i*1024} sc1 lds")
    HP = os.environ.get("HP", "1") == "1"
    h_dma([1])
    if not HP: h_dma([2, 3])
    cs_win(7)
    a("s_add_u32 s13, s10, 155648", "v_lshl_add_u32 v48, v1, 2, s13", "v_add_u32 v39, s13, v11", "s_nop 3", "s_mov_b64 exec, 0xffff",
      "ds_write_b32 v48, v52", "ds_write_b32 v48, v53 offset:64", "s_mov_b64 exec, -1")
    for q in range(4):
        a(f"ds_read_b128 {vr(40+4*q,4)}, v39 offset:{32*q}")
    a("s_cmp_ge_u32 s3, 4", "s_cbranch_scc1 L_f1_s")
    SPRIO = int(os.environ.get("SPRIO", "1"))
    for cls in ("L", "S"):
        vm = VM(a); vm.ops = list(vm0.ops); lg = LG(a)
        if cls == "S":
            a("L_f1_s:", f"s_setprio {SPRIO}")
        def w2_dma(i):
            vm.issue(f"w2_{i}", f"s_add_u32 m0, s10, {slot_lds(i)}", f"s_add_u32 s13, s97, {w2off(i)}",
                     f"buffer_load_dwordx4 v{V_W2G}, s[56:59], s13 offen lds")
        def readout(i, wait=True):
            if wait and i >= NA: vm.wait(f"w2_{i}")
            ar, of = slot_addr(i)
            lg.issue(f"r{i}", f"ds_read_b64_tr_b16 {vr(VW+4*i,2)}, v{ar} offset:{of}")
            lg.issue(f"r{i}", f"ds_read_b64_tr_b16 {vr(VW+4*i+2,2)}, v{ar} offset:{of+256}")
        on_sync = (lambda k: h_dma([2, 3], vm) if k == 0 else None) if HP else None
        def run(f):
            if f[0] == "lds":
                for tag, ins in f[1]: lg.issue(tag, ins)
            elif f[0] == "valu":
                if f[1]: lg.wait(f[1])
                a(*f[2])
            elif f[0] == "fn":
                f[1]()
        W1 = int(os.environ.get("W1", "5"))
        bufs = ([96, 100, 104, 108, 120, 60, 56] if cls == "L" else [96, 100, 104, 108, 112, 116, 120])[:W1]
        def mk(n, kt, rt, need):
            acc = 80 if rt else 16
            b = bufs[n % W1]
            return dict(id=f"b{n}", need=need, reads=[f"ds_read_b128 {vr(b,4)}, v{7-rt} offset:{perm32(kt)*1024}"],
                        mf=[lambda: mfma32(a, acc, VW + 4 * kt, b, None if kt == 0 else acc)])
        if cls == "L":
            order = [(kt, rt) for kt in range(HS) for rt in range(2)] + [(kt, 0) for kt in range(HS, 32)] + [(kt, 1) for kt in range(HS, 32)]
            steps = []
            for n, (kt, rt) in enumerate(order):
                need = "h0" if n < 8 + W1 else ("h1" if n < 20 + W1 else "h3")
                assert (kt < 8 or n >= 8 + W1) and (kt < 16 or n >= 20 + W1)
                steps.append(mk(n, kt, rt, need))
            P3 = 32 + HS
            fill = [("lds", [("rc", f"ds_read_b128 {vr(ST0,4)}, v9"), ("rc", f"ds_read_b128 {vr(ST0+4,4)}, v9 offset:512"),
                             ("rc", f"ds_read_b128 {vr(ST1,4)}, v9 offset:4096"), ("rc", f"ds_read_b128 {vr(ST1+4,4)}, v9 offset:4608")]),
                    ("nop",), ("nop",), ("valu", "rc", ["s_nop 0"])]
            for i in range(16):
                fill.append(("valu", None, [f"v_mul_f32 v56, v{64+i}, v{ST1+4}", f"v_mul_f32 v{64+i}, v{64+i}, v{ST0+4}",
                                            f"v_fma_f32 v{64+i}, -v{ST0+6}, v{40+i}, v{64+i}", f"v_fma_f32 v{40+i}, -v{ST1+6}, v{40+i}, v56"]))
            OFFL = os.environ.get("OFFL", "0") == "1"
            if OFFL:
                G = [("v", f"v_add_f32 v{16+i}, v{16+i}, v{64+i}") for i in range(16)] + \
                    [("l", f"ds_write_b128 v8, {vr(16+4*q,4)} offset:{1024*q}") for q in range(4)] + [("b", None)]
                per = 10
            else:
                G = [("v", x) for x in gelu_ops(16, 56, 8, 64, ST0, PK)] + [("st", f"buffer_store_dwordx4 v[56:59], v{V_L16}, s[52:55], s101 offen")] + \
                    [("v", x) for x in gelu_ops(24, 64, 8, 72, ST0, PK)] + [("st", f"buffer_store_dwordx4 v[64:67], v{V_L16}, s[52:55], s101 offen offset:1024")]
                per = -(-len(G) // (64 - P3 - 3))
            a(f"v_add_u32 v8, s66, v{V_L16}")
            r1 = list(range(NA, 10)); r2 = list(range(10, 22 - NL)); ro = list(range(10))
            done_at = {}; iss_at = {}
            def fillers(n):
                if n >= 21 and fill:
                    run(fill.pop(0))
                if n >= 21 and n % 2 == 1 and r1:
                    iss_at[r1[0]] = n; w2_dma(r1.pop(0))
                if n >= 22 and n % 2 == 0 and ro and n >= iss_at.get(ro[0], -99) + 9 and ro[0] not in r1:
                    i = ro.pop(0); assert 2 * i + 1 <= n and i < HS
                    readout(i); done_at[i] = n
                elif n % 2 == 1 and not r1 and r2 and n >= done_at.get(r2[0] - 10, 99) + W1 + 1:
                    w2_dma(r2.pop(0))
                if n >= P3 + 3:
                    assert not fill
                    for _ in range(per):
                        if G:
                            if G[0][0] == "b" and n < P3 + 7: break
                            k, ins = G.pop(0)
                            if k == "v": a(ins)
                            elif k == "l": lg.issue("ow", ins)
                            elif k == "b":
                                lg.wait("ow"); a("s_barrier")
                            else: vm.issue("fst", ins)
                if n == P3 - 1: stamp(a, 34)
            stream(a, vm, lg, steps, W1, fillers, 29, on_sync)
            assert not fill and not G and not r1 and not r2 and not ro
            stamp(a, 35)
            vm.wait(f"w2_{21-NL}")
            for i in range(10, 16): readout(i, False)
            a(*gelu_ops(80, 16, 16, 40, ST1, pk=True))
            vm.issue("fst", f"buffer_store_dwordx4 v[16:19], v{V_L16}, s[52:55], s64 offen")
            vm.issue("fst", f"buffer_store_dwordx4 v[20:23], v{V_L16}, s[52:55], s64 offen offset:1024")
            for i in range(16, 22 - NL): readout(i, False)
            a("s_branch L_f1_done")
        else:
            steps = [mk(kt, kt, 0, "h0" if kt < 8 else ("h1" if kt < 16 else "h3")) for kt in range(32)]
            fill = [f for f in stats_fillers(8, ST0) if f[0] != "nop"] + \
                   [("lds", [("rcw", f"ds_write_b128 v9, {vr(ST0,4)}"), ("rcw", f"ds_write_b128 v9, {vr(ST0+4,4)} offset:512")]),
                    ("fn", lambda: lg.wait("rcw"))]
            fill2 = cinit(64, ST0)
            r1 = list(range(NA, 10))
            def fillers(n):
                if 8 - W1 <= n < 16 - W1:
                    for _ in range(-(-len(fill) // (16 - W1 - n))): run(fill.pop(0))
                elif n >= 13 and fill2: run(fill2.pop(0))
                if n >= 13 and ((n - 13) % 2 == 0 or NA < 4) and r1:
                    w2_dma(r1.pop(0))
                if 27 <= n < 32:
                    if 2 * (n - 27) + 1 >= NA: vm.wait(f"w2_{2*(n-27)+1}")
                    readout(2 * (n - 27), False); readout(2 * (n - 27) + 1, False)
            stream(a, vm, lg, steps, W1, fillers, 29, on_sync)
            assert not fill and not fill2
            stamp(a, 34)
            a("s_setprio 0")
            lg.wait("r9")
            a("s_nop 5")
            gl = gelu_ops(16, 40, 16, 64, ST0, PK)
            r2 = list(range(10, 22 - NL))
            for n, ins in enumerate(gl):
                if n % 12 == 0 and r2: w2_dma(r2.pop(0))
                a(ins)
            assert not r2
            a("s_cmp_eq_u32 s43, 5", "s_cselect_b32 s13, s5, 0", "s_cmp_ge_u32 s13, 3", "s_cselect_b32 s13, s55, s101", "s_cselect_b32 s14, s54, 0", "s_add_u32 s13, s13, s14")
            vm.issue("fst", f"buffer_store_dwordx4 v[40:43], v{V_L16}, s[52:55], s13 offen")
            vm.issue("fst", f"buffer_store_dwordx4 v[44:47], v{V_L16}, s[52:55], s13 offen offset:1024")
            stamp(a, 35)
            if OFFL:
                a("v_and_b32 v9, 0xffffefff, v9", "s_sub_u32 s13, s66, 16384", f"v_add_u32 v8, s13, v{V_L16}")
                a(f"ds_read_b128 {vr(ST0,4)}, v9", f"ds_read_b128 {vr(ST0+4,4)}, v9 offset:512")
                a(f"s_mul_i32 s13, s99, {86*1024}", "s_sub_u32 s15, s101, s13", "s_sub_u32 s13, s43, s3", "s_add_u32 s13, s13, 4", "s_lshl_b32 s13, s13, 11",
                  "s_sub_u32 s15, s15, s13", "s_barrier")
                for q in range(4):
                    a(f"ds_read_b128 {vr(16+4*q,4)}, v8 offset:{1024*q}")
            vm.wait(f"w2_{21-NL}")
            for i in range(10, 22 - NL):
                readout(i, False)
            if OFFL:
                a(f"s_waitcnt lgkmcnt({min(15, 2*(12-NL))})")
                a(*gelu_ops(16, 64, 16, None, ST0, os.environ.get("PK2", "0") == "1"))
                vm.issue("fst", f"buffer_store_dwordx4 v[64:67], v{V_L16}, s[52:55], s15 offen")
                vm.issue("fst", f"buffer_store_dwordx4 v[68:71], v{V_L16}, s[52:55], s15 offen offset:1024")
    a("L_f1_done:")
    stamp(a, 36)
    def sh3():
        a("buffer_load_dwordx4 v[48:51], v11, s[88:91], s17 offen")
        for i in range(22 - NL, 22):
            a(f"s_add_u32 m0, s10, {slot_lds(i)}", f"s_add_u32 s14, s97, {w2off(i)}", f"buffer_load_dwordx4 v{V_W2G}, s[56:59], s14 offen lds")
        a(f"v_add_u32 v52, s16, v{V_L16}", "v_xor_b32 v60, 0x2000, v52")
        for b in (1, 2):
            a(f"v_add_u32 v{52+b}, {b*65536:#x}, v52", f"v_add_u32 v{60+b}, {b*65536:#x}, v60")
        a("s_mul_i32 s13, s3, 6144", "s_add_u32 s13, s13, 16384", f"v_add_u32 v6, s13, v{V_L16}")
        for sg in (1, 2, 3):
            a(f"s_xor_b32 s14, s3, {sg<<1}", "s_mul_i32 s14, s14, 6144", f"s_add_u32 s14, s14, {16384+(sg-1)*2048}", f"v_add_u32 v{6+sg}, s14, v{V_L16}")
    handoff(a, "x3", 3, "s[18:19]", None, sh3, bar=True)
    stamp(a, 38); stamp(a, 61, True)
    vm = VM(a); lg = LG(a)
    def f_dma(c):
        for rt in range(2):
            vm.issue(f"f{c}", f"s_add_u32 m0, s10, {(c%10)*16384 + rt*8192}", f"s_add_u32 s13, s28, {rt*86*1024 + c*1024}",
                     f"buffer_load_dwordx4 v{V_L16}, s[52:55], s13 offen sc1 lds")
    NF0 = int(os.environ.get('NF0', '4'))
    for c in range(NF0):
        f_dma(c)
        if c == 0 and FB: a("s_barrier")
    for i in range(22 - NL, 22):
        tr_read(a, VW + 4 * i, *slot_addr(i))
    for i in range(4):
        a(f"v_lshlrev_b32 v{16+2*i}, 16, v{12+i}", f"v_and_b32 v{17+2*i}, 0xffff0000, v{12+i}",
          f"v_lshlrev_b32 v{24+2*i}, 16, v{48+i}", f"v_and_b32 v{25+2*i}, 0xffff0000, v{48+i}")
    for i in range(0, 8, 2): pk("add", 16 + i, 16 + i, 24 + i)
    for i in range(0, 8, 2): a(f"v_mov_b64 v[{24+i}:{25+i}], 0")
    a("s_waitcnt lgkmcnt(0)")
    if os.environ.get("WB", "0") == "1":
        a("s_cmp_eq_u32 s3, 7", "s_cbranch_scc0 L_wb", "s_cmp_lt_u32 s2, 8", "s_cbranch_scc0 L_wb", "buffer_wbl2 sc1", "L_wb:")
    GR = os.environ.get("GR", "")
    if GR:
        ends = [int(x) for x in GR.split(",")]
        needs = {c: min(e for e in ends if e >= c) for c in range(11)}
        extra = {}
    else:
        needs = {c: c for c in range(11)}
        extra = {k: [k + NF0] for k in range(11 - NF0)}
    pend = [(c, rt) for c in range(NF0, 11) for rt in range(2)]
    RATE = float(os.environ.get("RATE", "1.5"))
    def fill3(n):
        if GR:
            while pend and (2 * (11 - NF0) - len(pend)) < RATE * (n + 1) and (pend[0][0] < 10 or n >= 6):
                c, rt = pend.pop(0)
                vm.issue(f"f{c}", f"s_add_u32 m0, s10, {(c%10)*16384 + rt*8192}", f"s_add_u32 s13, s28, {rt*86*1024 + c*1024}",
                         f"buffer_load_dwordx4 v{V_L16}, s[52:55], s13 offen sc1 lds")
    WIN = int(os.environ.get('WIN', '2'))
    steps = []
    for i in range(22):
        c, h = F2ORD[i]
        sl = c % 10
        off = (sl & 3) * 16384 + h * 4096
        rb = 64 + 8 * (i % (WIN + 1)) if False else 64 + 8 * (i % WIN)
        st = dict(id=f"x{i}", need=f"f{needs[c]}",
                  reads=[f"ds_read_b128 {vr(rb+4*s,4)}, v{(52,60)[s]+sl//4} offset:{off}" for s in range(2)],
                  mf=[lambda i=i, s=s, rb=rb: mfma32(a, 16 + 16 * s, VW + 4 * i, rb + 4 * s, None if (i == 0 and s == 1) else 16 + 16 * s) for s in range(2)])
        if i == 20:
            st["pre"] = lambda: a("s_cmp_eq_u32 s98, 3", "s_cbranch_scc1 L_f2_skip")
        steps.append(st)
    stream(a, vm, lg, steps, WIN, fill3, 40, lambda k: [f_dma(c) for c in extra.get(k, [])])
    a("L_f2_skip:", "s_waitcnt lgkmcnt(0)")
    stamp(a, 51)
    octs = {1: 32, 2: 24, 3: 40}
    a("s_nop 7", "s_nop 1")
    for sg in (2, 1, 3):
        a(f"ds_write_b128 v6, {vr(octs[sg],4)} offset:{(sg-1)*2048}", f"ds_write_b128 v6, {vr(octs[sg]+4,4)} offset:{(sg-1)*2048+1024}")
    a("s_waitcnt lgkmcnt(0)", "s_barrier")
    for sg in (1, 2, 3):
        a(f"ds_read_b128 {vr(56+8*sg,4)}, v{6+sg}", f"ds_read_b128 {vr(60+8*sg,4)}, v{6+sg} offset:1024")
    for sg in (1, 2, 3):
        a(f"s_waitcnt lgkmcnt({2*(3-sg)})")
        for i in range(0, 8, 2): pk("add", 16 + i, 16 + i, 56 + 8 * sg + i)
    for i in range(4):
        a(f"v_cvt_pk_bf16_f32 v{24+i}, v{16+2*i}, v{17+2*i}")
    a("buffer_store_dwordx4 v[24:27], v10, s[20:23], s74 offen")
    stamp(a, 52)
    if STAMP: a("s_waitcnt vmcnt(0)")
    stamp(a, 62); stamp(a, 63, True)
    stamp_flush(a, 0, 8)
    a(f"{Lend}:", "s_endpgm")
    for blk in COLD: a(*blk)
    a("L_k2_slow:")
    a(f"s_mov_b32 s15, {KVF:#x}", f"v_mov_b32 v{VC}, {f32(-3.0e38)}", f"v_mov_b32 v{VC+1}, {f32(-3.0e38)}")
    a("L_k2_mx:")
    a(f"buffer_load_dwordx4 {vr(VK,4)}, v{V_L16}, s[52:55], s15 offen sc1", "s_waitcnt vmcnt(0)")
    mfma32(a, VS, VK, VQ, None)
    mfma32(a, VS + 16, VK, VQ + 4, None)
    a("s_nop 7", "s_nop 4")
    for t in range(2):
        for i in range(8):
            a(f"v_max3_f32 v{VC+t}, v{VS+16*t+2*i}, v{VS+16*t+2*i+1}, v{VC+t}")
    a("s_add_u32 s15, s15, 2048", f"s_cmp_lt_u32 s15, {KVF+64*2048:#x}", "s_cbranch_scc1 L_k2_mx")
    a(f"v_mov_b32 v{VC+2}, v{VC}", f"v_mov_b32 v{VC+3}, v{VC+1}", "s_nop 1",
      f"v_permlane32_swap_b32 v{VC}, v{VC+2}", f"v_permlane32_swap_b32 v{VC+1}, v{VC+3}", "s_nop 1",
      f"v_max_f32 v{VC}, v{VC}, v{VC+2}", f"v_max_f32 v{VC+1}, v{VC+1}, v{VC+3}")
    attention(a, vm_pre, True, later_scalars())
    a("s_branch L_k2_done")
    return a.text() + kernel_desc(name, 256, nsgpr=102), f"; @launch grid=(256,1,1) block=(512,1,1) lds={LDS}"
```

```python
from lib import *
from k1 import load_ptrs
from k1b import wg_decode2
from k2 import SM_THR
from k4 import GK1
import os
import k2m
from k2m import (VM, LG, stream, tr_read, kv_dma, bg_schedule, real_addr, pv, perm32, F2ORD, w2off, LDS, L_STG, STF, SPIN,
                 VQ, VK, VV, VP, VC, VO, VS, VW, V_LDSKV, V_L16, V_TR, V_WG, V_W2G, V_X, VI, V_R0, V_R1)
from pro import prologue_merged
E = os.environ.get
TS = 24
K0 = 2 * TS + (32 - TS)
UNITS = [(q, t) for t in range(TS) for q in range(2)] + [(0, t) for t in range(TS, 32)] + [(1, t) for t in range(TS, 32)]
KM = K0 + 2
UB = {6: "kv3", 30: "kvL", KM: "wo"}
SPR = 8
NL = 2
COLD = []
MISC = {}
for _it in E("MISC", "4:t0,9:t6,9:t1,14:t2,14:w0,24:w1,24:w2,25:t3,26:t4,26:b1,4:t5,27:b2").split(","):
    _t, _x = _it.split(":"); MISC.setdefault(int(_t), []).append(_x); assert 2 <= int(_t) <= 27

def publish(a, tag, word):
    a("v_mov_b32 v4, 1", "s_cmp_eq_u32 s42, 0", "s_waitcnt vmcnt(0)", "s_mov_b64 exec, 1", f"s_cbranch_scc0 L_{tag}_slow")
    a(f"buffer_store_dword v4, v5, s[52:55], s24 offen offset:{word*32}")
    a(f"L_{tag}_set:", "s_mov_b64 exec, -1")
    COLD.append([f"L_{tag}_slow:", "buffer_wbl2 sc1", "s_waitcnt vmcnt(0)", f"buffer_store_dword v4, v5, s[52:55], s24 offen offset:{word*32} sc1",
                 f"s_branch L_{tag}_set"])
def poll_issue(a, word, mask, reg=4):
    a(f"s_mov_b64 exec, {mask}", f"buffer_load_dword v{reg}, v5, s[52:55], s68 offen offset:{word*32} sc1", "s_mov_b64 exec, -1")
def poll_finish(a, tag, word, mask, reg=4):
    ld = f"buffer_load_dword v{reg}, v5, s[52:55], s68 offen offset:{word*32} sc1"
    a(f"s_mov_b64 exec, {mask}", "s_mov_b32 s13, 0", f"s_branch L_{tag}_chk")
    a(f"L_{tag}_poll:", ld, "s_add_u32 s13, s13, 1", f"s_cmp_gt_u32 s13, {SPIN}", f"s_cbranch_scc1 L_{tag}_out")
    a(f"L_{tag}_chk:", "s_waitcnt vmcnt(0)", f"v_cmp_eq_u32 vcc, 0, v{reg}", f"s_cbranch_vccnz L_{tag}_poll")
    a(f"L_{tag}_out:", "s_mov_b64 exec, -1", "s_cmp_eq_u32 s42, 0", f"s_cbranch_scc0 L_{tag}_inv", f"L_{tag}_go:")
    COLD.append([f"L_{tag}_inv:", "buffer_inv sc1", "s_waitcnt vmcnt(0)", f"s_branch L_{tag}_go"])
def pk(a, op, d, x, y, z=None, mod=""):
    ops = ", ".join(f"v[{r}:{r+1}]" for r in ([d, x, y] + ([z] if z is not None else [])))
    a(f"v_pk_{op}_f32 {ops} {mod}")
def dma(a, n, lds, glb, srd="s[52:55]", order=None, vm=None, tags=None):
    cur = None
    for k in (order or range(n)):
        if k // 4 != cur:
            cur = k // 4
            a(f"s_add_u32 m0, {lds[0]}, {lds[1] + cur*4096}", f"s_add_u32 s13, {glb[0]}, {glb[1] + cur*4096}")
        ins = f"buffer_load_dwordx4 v{V_L16}, {srd}, s13 offen offset:{(k%4)*1024} sc1 lds"
        if vm: vm.issue(tags(k), ins)
        else: a(ins)

def prio_schedule():
    P = {}
    start = 0
    for e in sorted(UB) + [64]:
        n = e - start
        l0 = max(1, round(n * 0.03)); l1 = max(1, round(n * 0.12)); l2 = max(1, round(n * 0.35))
        P[start] = 3; P[e - l0 - l1 - l2] = 2; P[e - l0 - l1] = 1; P[e - l0] = 0
        start = e
    return P

def normalise(a, O, T0, T1, TS_, D):
    a(f"v_add_f32 v{TS_}, v{TS_}, v{O}", f"v_rcp_f32 v{TS_}, v{TS_}")
    pk(a, "add", O + 8, O + 8, T0); pk(a, "add", O + 10, O + 10, T0 + 2); pk(a, "add", O + 12, O + 12, T1); pk(a, "add", O + 14, O + 14, T1 + 2)
    for i in range(0, 8, 2): pk(a, "mul", O + 8 + i, TS_, O + 8 + i, None, "op_sel_hi:[0,1]")
    for i in range(4): a(f"v_cvt_pk_bf16_f32 v{D+i}, v{O+8+2*i}, v{O+9+2*i}")

def attention(a, vm0, slow, sal, nlate):
    tg = "s" if slow else "f"
    vm = VM(a); vm.ops = list(vm0.ops)
    reads, issues, kvl, wol = bg_schedule()
    vm.wait("kv0"); a("s_barrier")
    stamp(a, 4); stamp(a, 59, True)
    PS = prio_schedule()
    LI = []
    for k, (q, t) in enumerate(UNITS):
        LI.append(0 if k == 0 else LI[-1] + (UNITS[k - 1][1] != t))
    tile_of = {LI[k]: UNITS[k][1] for k in range(64)}
    def rdK(L): a(f"ds_read_b128 {vr(VK+4*(L&1),4)}, v{V_LDSKV} offset:{tile_of[L]*2048}")
    def rdV(L):
        a("s_mov_b64 exec, s[60:61]", f"ds_read_b128 {vr(VV+8*(L&1),4)}, v{V_LDSKV} offset:{tile_of[L]*2048+1024}",
          f"ds_read_b128 {vr(VV+8*(L&1)+4,4)}, v{V_LDSKV} offset:{tile_of[L]*2048+768}", "s_mov_b64 exec, -1")
    C = None if slow else VC
    rdK(0); rdV(0)
    a("s_waitcnt lgkmcnt(0)")
    mfma32(a, VS, VK, VQ, C)
    a("s_nop 7", "s_nop 3")
    kread = 0
    for k, (q, t) in enumerate(UNITS):
        s, odd = k >> 1, k & 1
        single = k >= 2 * TS
        S = VS + 16 * (k & 1); So = VS + 16 * ((k + 1) & 1)
        def e(i):
            a(f"v_exp_f32 v{S+i}, v{S+i}")
            if sal and (len(sal) > nlate or i % SPR == 0): a(sal.pop(0))
        if k == K0 + 1:
            a("s_cmp_lt_u32 s3, 4", f"s_cbranch_scc1 L_m1{tg}", f"ds_write_b128 v6, {vr(VO+8,4)}", f"ds_write_b128 v6, {vr(VO+12,4)} offset:1024",
              f"ds_write_b32 v7, v{VO} offset:2048", f"L_m1{tg}:")
        if k in UB:
            vm.wait(UB[k], " lgkmcnt(0)" if k == KM else ""); a("s_barrier")
        if k == KM:
            a("s_cmp_ge_u32 s3, 4", f"s_cbranch_scc1 L_m2{tg}", "ds_read_b32 v40, v7 offset:18432", f"ds_read_b128 {vr(VO+4,4)}, v6 offset:16384",
              "ds_read_b128 v[36:39], v6 offset:17408", f"L_m2{tg}:")
        if k == 62: poll_issue(a, 1, "s[30:31]")
        if k == 63:
            poll_finish(a, "q0" + tg, 1, "s[30:31]")
            a("buffer_load_dwordx4 v[12:15], v41, s[76:79], s74 offen")
            dma(a, 4, ("s34", 32768), ("s7", OF))
        if k % 8 == 0 and k: stamp(a, 4 + k // 8)
        if k in PS: a(f"s_setprio {PS[k]}")
        if slow:
            for i in range(16): a(f"v_sub_f32 v{S+i}, v{S+i}, v{VC+q}")
        e(0); e(1)
        if k:
            pv(a, VO + 16 * UNITS[k - 1][0], VV + 8 * (LI[k - 1] & 1) + 4, So + 8)
        if single: a("s_waitcnt lgkmcnt(0)")
        if (k == 0 or LI[k] != LI[k - 1]) and LI[k] + 1 in tile_of: rdV(LI[k] + 1)
        if not odd:
            if s < 2:
                kv_dma(vm, 2 + s, 0); kv_dma(vm, 2 + s, 1)
            elif 4 <= s < 8:
                kv_dma(vm, 4 + (s - 4) // 2, (s - 4) & 1)
            for item in MISC.get(s, []):
                if item[0] == "w":
                    vm.issue("pf", f"s_add_u32 s13, s62, {int(item[1])}", "s_and_b32 s14, s13, 7", "s_lshr_b32 s13, s13, 3", "s_lshl_b32 s13, s13, 14",
                             "s_lshl_b32 s14, s14, 7", "s_add_u32 s13, s13, s14", f"buffer_load_dword v{V_X}, v{V_W2G}, s[56:59], s13 offen")
                elif item[0] == "t":
                    i = int(item[1])
                    vm.issue("pf", f"buffer_load_dword v{V_X}, v{V_L16}, s[52:55], s{[100, 101, 101, 64, 64, 95, 63][i]} offen offset:{[0, 0, 1024, 0, 1024, 0, 0][i]} sc1")
                elif item == "b1": vm.issue("pf", f"buffer_load_dword v{V_X}, v{V_L16}, s[84:87], s67 offen")
                elif item == "b2": vm.issue("pf", f"buffer_load_dword v{V_X}, v{V_L16}, s[88:91], 0 offen")
        e(2); e(3); e(4)
        if odd and not single: a("s_waitcnt lgkmcnt(0)")
        if k < 63:
            mfma32(a, So, VK + 4 * (LI[k + 1] & 1), VQ + 4 * UNITS[k + 1][0], C)
            lim = LI[k] + 1 if k < 2 * TS - 2 else LI[k + 1] + (2 if (k + 2 > 63 or LI[k + 2] != LI[k + 1]) else 1)
            if k < 2 * TS - 2 and odd: lim = kread
            while kread < lim and kread + 1 in tile_of:
                kread += 1; rdK(kread)
        if not odd and reads[s]:
            vm.wait(f"w1_{reads[s][-1][0]}")
            for f, sl in reads[s]:
                if sl[0] == "A": tr_read(a, VW + 4 * f, V_TR, sl[1])
                else: tr_read(a, VW + 4 * f, V_R0 if sl[1] < 65536 else V_R1, sl[1] & 65535)
        if odd:
            for f, sl in issues[s]:
                vm.issue(f"w1_{f}", f"s_add_u32 m0, {'s66' if sl[0] == 'A' else 's10'}, {sl[1]}", f"s_add_u32 s13, s67, {perm32(f)*16*2752}",
                         f"buffer_load_dwordx4 v{V_WG}, s[44:47], s13 offen lds")
            for c, hf in kvl.get(s, []):
                kv_dma(vm, c, hf); vm.ops[-1] = "kvL"
            for i in wol.get(s, []):
                qq = i >> 1
                vm.issue("wo", f"s_add_u32 m0, s10, {(qq >> 1) * 65536 + (i & 1) * 16384 + (qq & 1) * 8192}", f"s_add_u32 s13, s69, {qq*8*16384 + (i&1)*64}",
                         f"buffer_load_dwordx4 v{V_W2G}, s[48:51], s13 offen lds")
            if s == 20:
                vm.issue("xcc", f"buffer_load_dword v40, v{V_L16}, s[52:55], s68 offen sc1")
        if k == K0:
            assert not sal and not any(reads[x] for x in range(s, 32))
            vm.wait("xcc")
            a("v_cmp_ne_u32 vcc, s42, v40", f"v_add_u32 v6, s66, v{V_L16}", "v_lshl_add_u32 v7, v1, 2, s66",
              "s_or_b32 s42, vcc_lo, vcc_hi", "s_and_b32 s42, s42, 0x01010101",
              "v_and_b32 v5, 7, v1", f"v_and_b32 v4, 0x380, v{V_L16}", "v_lshl_or_b32 v5, v5, 2, v4",
              "v_and_b32 v41, 31, v1", "v_lshrrev_b32 v42, 5, v1", "v_lshlrev_b32 v42, 4, v42", "v_lshl_or_b32 v41, v41, 10, v42")
            if E("FORCE_SLOW", "0") == "1": a("s_mov_b32 s42, 1")
        if k == KM:
            a("s_cmp_ge_u32 s3, 4", f"s_cbranch_scc1 L_m3{tg}")
            normalise(a, VO, VO + 4, 36, 40, 36)
            a(f"buffer_store_dwordx4 v[36:39], v{V_L16}, s[52:55], s63 offen", f"L_m3{tg}:")
        if k == KM + 1:
            a("s_cmp_ge_u32 s3, 4", f"s_cbranch_scc1 L_m4{tg}")
            publish(a, "p0" + tg, 1)
            a(f"L_m4{tg}:")
        e(5); e(6); e(7); e(8); e(9)
        pv(a, VO + 16 * q, VV + 8 * (LI[k] & 1), S)
        e(10); e(11); e(12); e(13); e(14); e(15)
        if k == 3: assert len(sal) <= nlate
    a("s_nop 3")
    return VV + 8 * (LI[63] & 1) + 4

def slot_of(i): return i % 10 if i < 20 else i - 14
def slot_lds(i):
    sl = slot_of(i)
    return 49152 + sl * 8192 if sl < 2 else 98304 + (sl - 2) * 8192
def slot_addr(i):
    sl = slot_of(i)
    return (V_TR, 49152 + sl * 8192) if sl < 2 else (V_X, (sl - 2) * 8192)

def gelu_ops(X, T, n, B, CSR, st, pkd=False):
    K2, K1, IR, M = st, st + 2, st + 4, st + 6
    L = []
    if pkd:
        P = lambda r: f"v[{r}:{r+1}]"
        R = range(0, n, 2)
        L += [f"v_pk_fma_f32 {P(X+i)}, {P(B+i)}, {P(IR)}, {P(X+i)} op_sel_hi:[1,0,1]" for i in R]
        L += [f"v_pk_fma_f32 {P(X+i)}, {P(M)}, {P(CSR+i)}, {P(X+i)} op_sel_hi:[0,1,1] neg_lo:[1,0,0] neg_hi:[1,0,0]" for i in R]
        L += [f"v_pk_mul_f32 {P(T+i)}, {P(X+i)}, {P(X+i)}" for i in R]
        L += [f"v_pk_fma_f32 {P(T+i)}, {P(T+i)}, {P(K2)}, {P(K1)} op_sel_hi:[1,0,0]" for i in R]
        L += [f"v_pk_mul_f32 {P(T+i)}, {P(T+i)}, {P(X+i)}" for i in R]
        L += [f"v_exp_f32 v{T+i}, v{T+i}" for i in range(n)]
        L += [f"v_pk_fma_f32 {P(T+i)}, {P(T+i)}, {P(IR)}, {P(IR)} op_sel_hi:[1,0,0]" for i in R]
        L += [f"v_rcp_f32 v{T+i}, v{T+i}" for i in range(n)]
        L += [f"v_pk_mul_f32 {P(X+i)}, {P(X+i)}, {P(T+i)}" for i in R]
    else:
        R = range(n)
        L += [f"v_fma_f32 v{X+i}, v{B+i}, v{IR}, v{X+i}" for i in R]
        L += [f"v_fma_f32 v{X+i}, -v{M}, v{CSR+i}, v{X+i}" for i in R]
        L += [f"v_mul_f32 v{T+i}, v{X+i}, v{X+i}" for i in R]
        L += [f"v_fma_f32 v{T+i}, v{T+i}, v{K2}, v{K1}" for i in R]
        L += [f"v_mul_f32 v{T+i}, v{T+i}, v{X+i}" for i in R]
        L += [f"v_exp_f32 v{T+i}, v{T+i}" for i in R]
        L += [f"v_fma_f32 v{T+i}, v{T+i}, v{IR}, v{IR}" for i in R]
        L += [f"v_rcp_f32 v{T+i}, v{T+i}" for i in R]
        L += [f"v_mul_f32 v{X+i}, v{X+i}, v{T+i}" for i in R]
    L += [f"v_cvt_pk_bf16_f32 v{T+i}, v{X+2*i}, v{X+2*i+1}" for i in range(n // 2)]
    return L

def gen_k5(name):
    a = A()
    kernel_begin(a, name)
    Lend = "L_k2_end"
    a("s_cmp_ge_u32 s2, 256", f"s_cbranch_scc1 {Lend}")
    stamp(a, 0, True); stamp(a, 1)
    load_ptrs(a)
    a("s_getpc_b64 s[12:13]", "s_bfe_u32 s14, s2, 0x30003", "s_lshl_b32 s14, s14, 13", "v_lshlrev_b32 v2, 7, v0", "v_subrev_u32 v2, 0xe000, v2",
      "v_add_u32 v2, s14, v2", "v_cmp_le_u32 vcc, 448, v0", "s_cmp_lt_u32 s14, 0x8000", "s_cselect_b64 s[14:15], vcc, 0", "s_cmp_eq_u64 s[14:15], 0",
      "s_cbranch_scc1 L_cpf", "global_load_dword v123, v2, s[12:13]", "L_cpf:")
    wg_decode2(a)
    def early():
        srd(a, 44, 28, 512*2752)
    def setup():
        a("s_lshr_b32 s13, s3, 1", "s_add_u32 s13, s13, 2", "s_min_u32 s43, s13, s3",
          "s_mul_i32 s14, s5, 6", "s_mul_i32 s15, s5, 5", "s_add_u32 s15, s15, 3", "s_min_u32 s14, s14, s15",
          "s_add_u32 s65, s14, s43", "s_lshl_b32 s67, s65, 6")
        a(f"v_lshrrev_b32 v{V_WG}, 2, v1", "s_movk_i32 s13, 2752", f"v_mul_u32_u24 v{V_WG}, s13, v{V_WG}",
          f"v_and_b32 v{V_X}, 3, v1", f"v_lshl_add_u32 v{V_WG}, v{V_X}, 4, v{V_WG}")
        real_addr(a)
        a("s_mov_b32 s60, 0xffff0000", "s_mov_b32 s61, 0xffff0000")
        a("s_and_b32 s70, s3, 1", "s_bfe_u32 s71, s3, 0x10001", "s_lshr_b32 s72, s3, 2")
        a("s_lshl_b32 s12, s72, 16", f"v_add_u32 v{V_LDSKV}, s12, v{V_L16}")
        a("v_and_b32 v40, 27, v1", "v_cmp_eq_u32 vcc, 0, v40", "v_mov_b32 v41, 0x3f803f80", "s_nop 0", f"v_cndmask_b32 v{VV}, 0, v41, vcc",
          f"v_mov_b32 v{VV+1}, v{VV}")
        for i in range(2, 16, 2): a(f"v_mov_b64 v[{VV+i}:{VV+i+1}], v[{VV}:{VV+1}]")
        for i in range(0, 32, 2): a(f"v_mov_b64 v[{VO+i}:{VO+i+1}], 0")
        a(f"v_mov_b32 v{VI}, 0xdddddddd", "s_xor_b32 s12, s66, s10", f"v_xor_b32 v{V_R0}, s12, v{V_TR}", f"v_add_u32 v{V_R1}, 0x10000, v{V_R0}")
    def later_scalars():
        t = A()
        srd(t, 48, 24, 512*1024)
        srd(t, 56, 32, 1376*1024)
        t("s_lshl_b32 s69, s3, 14", "s_lshl_b32 s12, s5, 7", "s_add_u32 s69, s69, s12")
        t("s_lshr_b32 s12, s2, 3", "s_lshl_b32 s12, s12, 3", "s_add_u32 s12, s12, s3", "s_mul_i32 s62, s12, 3")
        t("s_lshl_b32 s63, s4, 1", "s_add_u32 s63, s63, s72", "s_lshl_b32 s63, s63, 5",
          "s_lshl_b32 s12, s5, 2", "s_add_u32 s63, s63, s12", "s_and_b32 s12, s3, 3", "s_add_u32 s63, s63, s12", "s_lshl_b32 s63, s63, 10")
        t("s_lshl_b32 s73, s5, 1", "s_add_u32 s73, s73, s70", "s_lshl_b32 s73, s73, 1", "s_add_u32 s73, s73, s72",
          "s_lshl_b32 s75, s4, 1", "s_add_u32 s75, s75, s71",
          "s_lshl_b32 s74, s75, 15", "s_lshl_b32 s12, s73, 5", "s_add_u32 s74, s74, s12")
        assert OF == 0
        t("s_lshl_b32 s100, s75, 5", "s_add_u32 s100, s100, s73", "s_lshl_b32 s100, s100, 10", f"s_add_u32 s100, s100, {HF:#x}")
        t("s_and_b32 s99, s70, s72",
          "s_lshl_b32 s101, s4, 1", "s_add_u32 s101, s101, s99", "s_mul_i32 s101, s101, 86", "s_lshl_b32 s12, s65, 1", "s_add_u32 s101, s101, s12",
          "s_lshl_b32 s101, s101, 10", f"s_add_u32 s101, s101, {FF:#x}")
        t("s_xor_b32 s64, s72, 1", f"s_mul_i32 s64, s64, {86*1024}", "s_add_u32 s64, s64, s101",
          "s_lshl_b32 s95, s75, 13", "s_lshl_b32 s12, s5, 10", "s_add_u32 s95, s95, s12", f"s_add_u32 s95, s95, {STF:#x}")
        n0 = len(t.lines)
        srd(t, 84, 30, 2752)
        srd(t, 88, 34, 1024)
        srd(t, 20, 36, 2048*1024)
        t("s_lshl_b32 s6, s3, 12", "s_lshl_b32 s7, s4, 16", "s_mov_b32 s35, s7", "s_add_u32 s7, s7, s6",
          "s_lshl_b32 s12, s3, 3", "s_mov_b64 s[30:31], 0xf", "s_lshl_b64 s[30:31], s[30:31], s12",
          "s_and_b32 s34, s6, 0x3000", "s_lshl_b32 s12, s72, 16", "s_add_u32 s34, s34, s12")
        t("s_lshl_b32 s15, s72, 1", "s_add_u32 s15, s15, s70", "s_lshl_b32 s36, s15, 13", "s_add_u32 s35, s35, s36",
          "s_lshl_b32 s12, s15, 4", "s_mov_b64 s[8:9], 0xf0f0", "s_lshl_b64 s[8:9], s[8:9], s12",
          "s_mov_b64 s[40:41], 0x3333", "s_lshl_b64 s[40:41], s[40:41], s12",
          "s_lshl_b32 s37, s70, 13", "s_lshl_b32 s12, s72, 16", "s_add_u32 s37, s37, s12",
          "s_lshl_b32 s27, s15, 11", "s_lshl_b32 s26, s4, 14", f"s_add_u32 s26, s26, {STF:#x}")
        t("s_add_u32 s12, s3, 2", "s_lshr_b32 s12, s12, 3", "s_add_u32 s12, s12, s3", "s_max_u32 s15, s12, 1", "s_sub_u32 s15, s15, 1", "s_lshl_b32 s15, s15, 3",
          "s_min_u32 s12, s12, 1", "s_mul_i32 s12, s12, 0xff00", "s_or_b32 s18, s12, 0xff", "s_mov_b32 s19, 0", "s_lshl_b64 s[18:19], s[18:19], s15")
        t("s_lshl_b32 s24, s5, 7", "s_lshl_b32 s12, s3, 2", "s_add_u32 s24, s24, s12", "s_add_u32 s24, s24, s68")
        t("s_and_b32 s12, s73, 3", "s_lshl_b32 s12, s12, 8", "s_add_u32 s25, s95, s12")
        t("s_mul_i32 s28, s4, 176128", f"s_add_u32 s28, s28, {FF:#x}", "s_mul_i32 s12, s3, 11264", "s_add_u32 s28, s28, s12")
        t("s_lshr_b32 s98, s3, 1", f"s_mul_i32 s97, s98, {11*16384}", "s_lshl_b32 s12, s5, 7", "s_add_u32 s97, s97, s12", "s_lshl_b32 s12, s70, 6", "s_add_u32 s97, s97, s12")
        t("s_lshl_b32 s32, s72, 16", "s_lshl_b32 s12, s71, 13", "s_add_u32 s32, s32, s12",
          "s_lshl_b32 s12, s72, 5", "s_xor_b32 s39, s66, s12", "s_xor_b32 s38, s39, s32", "s_lshl_b32 s12, s70, 14", "s_xor_b32 s38, s38, s12",
          "s_xor_b32 s39, s39, s10", "s_add_u32 s32, s32, 32768")
        t("s_lshl_b32 s33, s99, 16", "s_lshl_b32 s16, s71, 13", "s_lshl_b32 s12, s98, 10", "s_add_u32 s16, s16, s12", "s_lshl_b32 s17, s73, 5")
        return [l.strip() for l in t.lines], len(t.lines) - n0
    vm = VM(a)
    def after_flags():
        a(f"s_add_u32 s11, s10, {KVF:#x}")
        kv_dma(vm, 0, 0); kv_dma(vm, 0, 1)
    def before_b5():
        kv_dma(vm, 1, 0); kv_dma(vm, 1, 1)
        a("s_cmp_eq_u32 s3, 0", "s_cbranch_scc0 L_fl2", "v_add_u32 v108, 1, v108", "s_mov_b64 exec, 1",
          f"buffer_store_dword v108, v{V_L16}, s[52:55], s82 offen sc1", "s_mov_b64 exec, -1", "L_fl2:")
        a("v_and_b32 v110, 0xffffbfff, v17")
    prologue_merged(a, early, setup, VQ, after_flags, before_b5, both=True)
    a("v_sqrt_f32 v37, v36", "s_waitcnt lgkmcnt(0)")
    a(f"v_cmp_nge_f32 vcc, {f32(SM_THR)}, v37")
    a("s_cmp_eq_u64 vcc, 0", "s_cbranch_scc0 L_k2_slow")
    for i in range(16):
        a(f"v_sub_f32 v{VC+i}, 0, v37")
    vm_pre = vm
    vlast = attention(a, vm_pre, False, *later_scalars())
    a("L_k2_done:")
    pv(a, VO + 16, vlast, VS + 24)
    a("s_setprio 0")
    stamp(a, 12)
    O1, AF, AC, BF = VO + 16, 92, 60, 20
    a(f"v_xor_b32 v9, s38, v{V_TR}", f"v_add_u32 v8, s32, v{V_L16}", "v_mov_b64 v[10:11], v[41:42]" if False else "v_mov_b32 v10, v41", "v_mov_b32 v11, v42")
    for p in range(4): tr_read(a, AF + 4 * p, 9, p * 1024)
    a("s_cmp_ge_u32 s3, 4", "s_cbranch_scc1 L_a1", f"ds_write_b128 v6, {vr(O1+8,4)}", f"ds_write_b128 v6, {vr(O1+12,4)} offset:1024",
      f"ds_write_b32 v7, v{O1} offset:2048", "L_a1:")
    for p in range(4, 8): tr_read(a, AF + 4 * p, 9, p * 1024)
    a("v_and_b32 v18, 31, v1", "v_cmp_eq_u32 vcc, 0, v18", "v_cmp_eq_u32 s[14:15], 17, v18", "s_or_b64 vcc, vcc, s[14:15]", "v_mov_b32 v55, s83",
      "v_xor_b32 v16, 0x4000, v6", "v_xor_b32 v17, 0x4000, v7", "v_cndmask_b32 v56, 0, v55, vcc", "v_mov_b32 v57, v56", "v_mov_b64 v[58:59], v[56:57]")
    a("s_waitcnt vmcnt(0) lgkmcnt(0)", "s_barrier")
    stamp(a, 13); stamp(a, 60, True)
    a("s_cmp_lt_u32 s3, 4", "s_cbranch_scc1 L_a2")
    a(f"ds_read_b32 v{O1+2}, v17 offset:2048", f"ds_read_b128 {vr(O1+4,4)}, v16", "ds_read_b128 v[16:19], v16 offset:1024", "L_a2:")
    def breads(off):
        for p in range(8): a(f"ds_read_b128 {vr(BF+4*p,4)}, v8 offset:{off+p*1024}")
    def omfma():
        for p in range(8):
            a(f"s_waitcnt lgkmcnt({7-p})")
            mfma32(a, AC, AF + 4 * p, BF + 4 * p, None if p == 0 else AC)
    breads(0)
    a("s_cmp_lt_u32 s3, 4", "s_cbranch_scc1 L_a3", "s_waitcnt lgkmcnt(8)")
    normalise(a, O1, O1 + 4, 16, O1 + 2, 16)
    a(f"buffer_store_dwordx4 v[16:19], v{V_L16}, s[52:55], s63 offen", "L_a3:")
    omfma()
    a("s_cmp_lt_u32 s3, 4", "s_cbranch_scc1 L_a4")
    publish(a, "p1", 1)
    a("L_a4:")
    cpos = [0]
    def cs(n):
        for kt in range(cpos[0], cpos[0] + n): mfma16(a, 52, 56, VW + 4 * kt, None if kt == 0 else 52)
        cpos[0] += n
    def exchange(r, base_s, base_c):
        a(f"s_add_u32 s13, {base_s}, {base_c}", f"v_add_u32 v76, s13, v{V_L16}", "v_xor_b32 v77, 0x4000, v76", "v_xor_b32 v78, 0x2000, v76", "v_xor_b32 v79, 0x6000, v76",
          "v_mov_b64 v[80:81], 0", "v_lshlrev_b32 v84, 3, v1", "s_nop 4")
        a(f"ds_write_b128 v76, {vr(AC+8,4)} offset:2048", f"ds_write_b128 v76, {vr(AC+12,4)} offset:3072")
        a(f"s_cmp_eq_u32 s71, {r}", f"s_cbranch_scc1 L_e{r}a", f"ds_write_b128 v76, {vr(AC,4)}", f"ds_write_b128 v76, {vr(AC+4,4)} offset:1024")
    def finish(r):
        for i in range(4):
            a(f"v_lshlrev_b32 v82, 16, v{12+i}", f"v_and_b32 v83, 0xffff0000, v{12+i}")
            pk(a, "add", AC + 2 * i, AC + 2 * i, 82)
        a("s_waitcnt lgkmcnt(0)", "s_barrier")
        for n, (reg, off) in enumerate(((77, 2048), (78, 0), (79, 2048))):
            a(f"ds_read_b128 {vr(BF+8*n,4)}, v{reg} offset:{off}", f"ds_read_b128 {vr(BF+8*n+4,4)}, v{reg} offset:{off+1024}")
        for n in range(3):
            a(f"s_waitcnt lgkmcnt({4-2*n})")
            for i in range(0, 8, 2): pk(a, "add", AC + i, AC + i, BF + 8 * n + i)
        for i in range(4): a(f"v_cvt_pk_bf16_f32 v{12+i}, v{AC+2*i}, v{AC+1+2*i}")
        a(f"buffer_store_dwordx4 v[12:15], v{V_L16}, s[52:55], s100 offen")
        for i in range(4): a(f"v_dot2c_f32_bf16 v80, s83, v{12+i}", f"v_dot2c_f32_bf16 v81, v{12+i}, v{12+i}")
        a("s_nop 2", "v_mov_b64 v[82:83], v[80:81]", "s_nop 1", "v_permlane32_swap_b32 v80, v82", "v_permlane32_swap_b32 v81, v83", "s_nop 0",
          "v_pk_add_f32 v[80:81], v[80:81], v[82:83]",
          "s_mov_b64 exec, 0xffffffff", "buffer_store_dwordx2 v[80:81], v84, s[52:55], s25 offen", "s_mov_b64 exec, -1")
        publish(a, f"ph{r}", 2)
    exchange(0, "s6", 65536)
    poll_issue(a, 1, "s[8:9]")
    a("s_waitcnt lgkmcnt(0)", "s_barrier")
    poll_finish(a, "q1", 1, "s[8:9]")
    dma(a, 8, ("s37", 49152), ("s35", OF + 32768))
    a("s_branch L_e0b", "L_e0a:")
    finish(0)
    a("L_e0b:")
    stamp(a, 17)
    a("buffer_load_dwordx4 v[80:83], v11, s[84:87], s67 offen", "buffer_load_dwordx4 v[84:87], v11, s[84:87], s67 offen offset:32")
    CW = [int(x) for x in E("CW", "14,6").split(",")]
    cs(CW[0])
    a(f"v_xor_b32 v{V_TR}, s39, v{V_TR}", f"v_add_u32 v{V_X}, 0x18000, v{V_TR}")
    a("s_waitcnt vmcnt(0)", "s_barrier")
    stamp(a, 18)
    breads(16384)
    for i in range(4): a(f"v_mov_b64 v[{16+2*i if i < 2 else 88+2*(i-2)}:{17+2*i if i < 2 else 89+2*(i-2)}], v[{80+2*i}:{81+2*i}]")
    omfma()
    cs(CW[1])
    a("s_cmp_eq_u32 s71, 0", "s_cbranch_scc0 L_e1p")
    poll_issue(a, 2, "s[40:41]")
    a("L_e1p:")
    exchange(1, "s66", 0)
    vm0 = VM(a)
    poll_finish(a, "q2", 2, "s[40:41]")
    dma(a, 8, ("s36", 0), ("s35", HF), order=[0, 1, 4, 5], vm=vm0, tags=lambda k: "h0")
    a("s_waitcnt lgkmcnt(0)", "s_barrier")
    dma(a, 8, ("s36", 0), ("s35", HF), order=[2, 3, 6, 7], vm=vm0, tags=lambda k: "h1")
    a("s_add_u32 m0, s27, 32768", "s_add_u32 s13, s26, s27")
    for i in range(2): vm0.issue("h1", f"buffer_load_dwordx4 v{V_L16}, s[52:55], s13 offen offset:{i*1024} sc1 lds")
    a("s_branch L_e1b", "L_e1a:")
    finish(1)
    a("L_e1b:")
    stamp(a, 27)
    cs(32 - cpos[0])
    ST0, ST1 = 32, 112
    for i in range(8):
        src = 16 + i if i < 4 else 84 + i
        a(f"v_lshlrev_b32 v{64+2*i}, 16, v{src}", f"v_and_b32 v{65+2*i}, 0xffff0000, v{src}")
    a(f"v_add_u32 v7, s33, v{V_L16}", "v_add_u32 v6, 0x10000, v7",
      "v_and_b32 v9, 31, v1", "v_lshlrev_b32 v8, 3, v9", "v_lshl_add_u32 v8, v11, 4, v8", "v_lshlrev_b32 v9, 4, v9")
    a("s_add_u32 s13, s10, 98304", "v_lshl_add_u32 v48, v1, 2, s13", "v_add_u32 v39, s13, v11", "s_mov_b64 exec, 0xffff",
      "ds_write_b32 v48, v52", "ds_write_b32 v48, v53 offset:64", "s_mov_b64 exec, -1")
    for q in range(4): a(f"ds_read_b128 {vr(40+4*q,4)}, v39 offset:{32*q}")
    def stats_fillers(rt, st):
        m, q = st + 6, st + 7
        F = []
        add2 = lambda d, x, y: [f"v_add_f32 v{d}, v{x}, v{y}", f"v_add_f32 v{d+1}, v{x+1}, v{y+1}"]
        o = 64 + 16 * rt
        for b in range(2):
            F.append(("lds", [(f"st{rt}_{b}", f"ds_read2st64_b64 {vr(80+4*i,4)}, v8 offset0:{o+8*b+2*i} offset1:{o+8*b+2*i+1}") for i in range(4)]))
            F.append(("valu", f"st{rt}_{b}", sum([add2(80 + 4 * i, 80 + 4 * i, 82 + 4 * i) for i in range(4)], [])))
            ops = add2(80, 80, 84) + add2(88, 88, 92)
            if b == 0:
                F.append(("valu", None, ops + add2(m, 80, 88)))
            else:
                F.append(("valu", None, ops + add2(80, 80, 88) + add2(m, m, 80) + [f"v_mov_b32 v{st}, v{m}", f"v_mov_b32 v{st+1}, v{q}"]))
                F.append(("valu", None, ["s_nop 1", f"v_permlane32_swap_b32 v{m}, v{st}", f"v_permlane32_swap_b32 v{q}, v{st+1}", "s_nop 1"] + add2(m, m, st) +
                          [f"v_mul_f32 v{m}, {f32(1/512)}, v{m}", f"v_mul_f32 v{q}, {f32(1/512)}, v{q}",
                           f"v_fma_f32 v{q}, -v{m}, v{m}, v{q}", f"v_max_f32 v{q}, 0, v{q}", f"v_add_f32 v{q}, {f32(1e-5)}, v{q}"]))
                F.append(("valu", None, [f"v_rsq_f32 v{st+1}, v{q}", f"v_sqrt_f32 v{st+4}, v{q}", f"v_mul_f32 v{st+2}, {f32(GK1)}, v{st+1}",
                                         f"v_mul_f32 v{st+3}, v{st+1}, v{st+1}", f"v_mul_f32 v{st+3}, {f32(0.044715)}, v{st+3}", f"v_mul_f32 v{st}, v{st+2}, v{st+3}"]))
        F.append(("lds", [("rcw", f"ds_write_b128 v9, {vr(st,4)} offset:{4096*rt}"), ("rcw", f"ds_write_b128 v9, {vr(st+4,4)} offset:{4096*rt+512}")]))
        return F
    a("s_cmp_lt_u32 s3, 4", "s_cbranch_scc1 L_f1_L", "s_cmp_eq_u32 s70, 0", "s_cbranch_scc1 L_f1_S0")
    W1 = 5
    for cls in ("S1", "S0", "L"):
        vm = VM(a); vm.ops = list(vm0.ops); lg = LG(a)
        a(f"L_f1_{cls}:")
        def w2_dma(i):
            vm.issue(f"w2_{i}", f"s_add_u32 m0, s10, {slot_lds(i)}", f"s_add_u32 s13, s97, {w2off(i)}", f"buffer_load_dwordx4 v{V_W2G}, s[56:59], s13 offen lds")
        def readout(i, wait=True):
            if wait: vm.wait(f"w2_{i}")
            ar, of = slot_addr(i)
            lg.issue(f"r{i}", f"ds_read_b64_tr_b16 {vr(VW+4*i,2)}, v{ar} offset:{of}")
            lg.issue(f"r{i}", f"ds_read_b64_tr_b16 {vr(VW+4*i+2,2)}, v{ar} offset:{of+256}")
        def run(f):
            if f[0] == "lds":
                for tag, ins in f[1]: lg.issue(tag, ins)
            elif f[0] == "valu":
                if f[1]: lg.wait(f[1])
                a(*f[2])
        bufs = [96, 100, 104, 108, 120]
        def mk(n, kt, second, need):
            acc = 80 if second else 16
            b = bufs[n % W1]
            return dict(id=f"b{n}", need=need, reads=[f"ds_read_b128 {vr(b,4)}, v{6 if second else 7} offset:{perm32(kt)*1024}"],
                        mf=[lambda: mfma32(a, acc, VW + 4 * kt, b, None if kt == 0 else acc)])
        rcread = lambda st, rt: [lg.issue("rc", f"ds_read_b128 {vr(st,4)}, v9 offset:{4096*rt}"), lg.issue("rc", f"ds_read_b128 {vr(st+4,4)}, v9 offset:{4096*rt+512}")]
        def s_tail(f4):
            lg.wait("r9")
            a("s_nop 5")
            gl = gelu_ops(16, 80, 16, 64, 40, ST0, cls == "S1" and E("PKS", "1") == "1")
            r2 = list(range(10, 22 - NL))
            for n, ins in enumerate(gl):
                if n % 9 == 0 and r2: w2_dma(r2.pop(0))
                a(ins)
            assert not r2
            a("s_cmp_eq_u32 s43, 5", "s_cselect_b32 s13, s5, 0", "s_cmp_ge_u32 s13, 3", "s_cselect_b32 s13, s55, s101", "s_cselect_b32 s14, s54, 0", "s_add_u32 s13, s13, s14")
            vm.issue("fst", f"buffer_store_dwordx4 v[80:83], v{V_L16}, s[52:55], s13 offen")
            vm.issue("fst", f"buffer_store_dwordx4 v[84:87], v{V_L16}, s[52:55], s13 offen offset:1024")
            if f4: a("s_barrier")
            vm.wait(f"w2_{21-NL}")
            for i in range(10, 22 - NL): readout(i, False)
            a("s_branch L_f1_done")
        def s_stage(n, n0):
            if n0 <= n < n0 + 10: w2_dma(n - n0)
            if 27 <= n < 32:
                vm.wait(f"w2_{2*(n-27)+1}"); readout(2 * (n - 27), False); readout(2 * (n - 27) + 1, False)
        if cls == "S1":
            vm.wait("h0"); a("s_barrier"); vm.wait("h1"); a("s_barrier")
            a("s_lshl_b32 s12, s71, 5", "s_mov_b32 s14, 0xcccccccc", "s_mov_b32 s15, 0", "s_lshl_b64 s[40:41], s[14:15], s12",
              "s_lshl_b32 s36, s71, 14", "s_lshl_b32 s35, s4, 16", "s_add_u32 s35, s35, s36", "s_lshl_b32 s27, s71, 12", "s_add_u32 s26, s26, s27")
            for f in stats_fillers(0, ST0): run(f)
            poll_issue(a, 2, "s[40:41]")
            poll_finish(a, "q3", 2, "s[40:41]")
            dma(a, 16, ("s36", 65536), ("s35", HF + 32768))
            dma(a, 4, ("s27", 40960), ("s26", 8192))
            a("s_setprio 1", "s_waitcnt vmcnt(0) lgkmcnt(0)", "s_barrier")
            stamp(a, 31)
            vm = VM(a)
            fill = stats_fillers(1, ST0)
            def fillers(n):
                if fill: run(fill.pop(0))
                elif n == 10:
                    lg.wait("rcw"); a("s_barrier")
                s_stage(n, 11)
            stream(a, vm, lg, [mk(kt, kt, False, None) for kt in range(32)], W1, fillers)
            a("s_setprio 0")
            stamp(a, 34)
            s_tail(False)
        elif cls == "S0":
            def fillers(n):
                s_stage(n, 12)
            stream(a, vm, lg, [mk(kt, kt, False, "h0" if kt < 16 else "h1") for kt in range(32)], W1, fillers, 29)
            a("s_barrier")
            stamp(a, 31)
            rcread(ST0, 0); lg.wait("rc")
            s_tail(True)
        else:
            steps = [mk(n, n, False, "h0" if n < 16 else "h1") for n in range(32)] + [mk(32 + n, n, True, "bar") for n in range(32)]
            vm.ops.insert(0, "bar")
            G = [("v", x) for x in gelu_ops(16, 56, 8, 64, 40, ST0)] + [("st", f"buffer_store_dwordx4 v[56:59], v{V_L16}, s[52:55], s101 offen")] + \
                [("v", x) for x in gelu_ops(24, 16, 8, 72, 48, ST0)] + [("st", f"buffer_store_dwordx4 v[16:19], v{V_L16}, s[52:55], s101 offen offset:1024")]
            per = -(-len(G) // 28)
            F4 = int(E("F4", "48"))
            r2 = list(range(10, 22 - NL))
            def fillers(n):
                if 12 <= n < 22: w2_dma(n - 12)
                if n == 28: rcread(ST0, 0)
                kt = n - 32
                if 0 <= kt < 10: readout(kt, kt == 0 or kt == 9 or kt == 5) if False else readout(kt)
                if kt >= W1 + 1 and kt % 2 == 0 and r2:
                    assert r2[0] - 10 <= kt - W1 - 1
                    w2_dma(r2.pop(0))
                if n == F4:
                    a("s_barrier"); rcread(ST1, 1)
                if kt >= 3:
                    if kt == 3: lg.wait("rc")
                    for _ in range(per):
                        if G:
                            k, ins = G.pop(0)
                            if k == "v": a(ins)
                            else: vm.issue("fst", ins)
                if n == 31: stamp(a, 34)
            stream(a, vm, lg, steps, W1, fillers, 29)
            assert not G and not r2
            stamp(a, 35)
            vm.wait(f"w2_{21-NL}")
            for i in range(10, 16): readout(i, False)
            a(*gelu_ops(80, 96, 16, 64, 40, ST1, True))
            vm.issue("fst", f"buffer_store_dwordx4 v[96:99], v{V_L16}, s[52:55], s64 offen")
            vm.issue("fst", f"buffer_store_dwordx4 v[100:103], v{V_L16}, s[52:55], s64 offen offset:1024")
            for i in range(16, 22 - NL): readout(i, False)
    a("L_f1_done:")
    stamp(a, 36)
    a("s_waitcnt lgkmcnt(0)")
    publish(a, "x3", 3)
    poll_issue(a, 3, "s[18:19]", 2)
    stamp(a, 37)
    a("buffer_load_dwordx4 v[48:51], v11, s[88:91], s17 offen")
    for i in range(22 - NL, 22):
        a(f"s_add_u32 m0, s10, {slot_lds(i)}", f"s_add_u32 s14, s97, {w2off(i)}", f"buffer_load_dwordx4 v{V_W2G}, s[56:59], s14 offen lds")
    a(f"v_add_u32 v52, s16, v{V_L16}", "v_xor_b32 v60, 0x2000, v52")
    for b in (1, 2): a(f"v_add_u32 v{52+b}, {b*65536:#x}, v52", f"v_add_u32 v{60+b}, {b*65536:#x}, v60")
    a("s_mul_i32 s13, s3, 6144", "s_add_u32 s13, s13, 16384", f"v_add_u32 v6, s13, v{V_L16}")
    for sg in (1, 2, 3):
        a(f"s_xor_b32 s14, s3, {sg<<1}", "s_mul_i32 s14, s14, 6144", f"s_add_u32 s14, s14, {16384+(sg-1)*2048}", f"v_add_u32 v{6+sg}, s14, v{V_L16}")
    a("s_barrier")
    poll_finish(a, "x3", 3, "s[18:19]", 2)
    stamp(a, 38); stamp(a, 61, True)
    vm = VM(a); lg = LG(a)
    def f_dma(c):
        for rt in range(2):
            vm.issue(f"f{c}", f"s_add_u32 m0, s10, {(c%10)*16384 + rt*8192}", f"s_add_u32 s13, s28, {rt*86*1024 + c*1024}",
                     f"buffer_load_dwordx4 v{V_L16}, s[52:55], s13 offen sc1 lds")
    NF0 = 4
    for c in range(NF0):
        f_dma(c)
        if c == 0: a("s_barrier")
    for i in range(22 - NL, 22): tr_read(a, VW + 4 * i, *slot_addr(i))
    for i in range(4):
        a(f"v_lshlrev_b32 v{16+2*i}, 16, v{12+i}", f"v_and_b32 v{17+2*i}, 0xffff0000, v{12+i}",
          f"v_lshlrev_b32 v{24+2*i}, 16, v{48+i}", f"v_and_b32 v{25+2*i}, 0xffff0000, v{48+i}")
    for i in range(0, 8, 2): pk(a, "add", 16 + i, 16 + i, 24 + i)
    for i in range(0, 8, 2): a(f"v_mov_b64 v[{24+i}:{25+i}], 0")
    a("s_waitcnt lgkmcnt(0)")
    WIN = 2
    steps = []
    for i in range(22):
        c, h = F2ORD[i]
        sl = c % 10
        off = (sl & 3) * 16384 + h * 4096
        rb = 64 + 8 * (i % WIN)
        st = dict(id=f"x{i}", need=f"f{c}",
                  reads=[f"ds_read_b128 {vr(rb+4*s,4)}, v{(52,60)[s]+sl//4} offset:{off}" for s in range(2)],
                  mf=[lambda i=i, s=s, rb=rb: mfma32(a, 16 + 16 * s, VW + 4 * i, rb + 4 * s, None if (i == 0 and s == 1) else 16 + 16 * s) for s in range(2)])
        if i == 20: st["pre"] = lambda: a("s_cmp_eq_u32 s98, 3", "s_cbranch_scc1 L_f2_skip")
        steps.append(st)
    stream(a, vm, lg, steps, WIN, lambda n: None, 40, lambda k: f_dma(k + NF0) if k + NF0 < 11 else None)
    a("L_f2_skip:", "s_waitcnt lgkmcnt(0)")
    stamp(a, 51)
    octs = {1: 32, 2: 24, 3: 40}
    a("s_nop 7", "s_nop 1")
    for sg in (2, 1, 3):
        a(f"ds_write_b128 v6, {vr(octs[sg],4)} offset:{(sg-1)*2048}", f"ds_write_b128 v6, {vr(octs[sg]+4,4)} offset:{(sg-1)*2048+1024}")
    a("s_waitcnt lgkmcnt(0)", "s_barrier")
    for sg in (1, 2, 3):
        a(f"ds_read_b128 {vr(56+8*sg,4)}, v{6+sg}", f"ds_read_b128 {vr(60+8*sg,4)}, v{6+sg} offset:1024")
    for sg in (1, 2, 3):
        a(f"s_waitcnt lgkmcnt({2*(3-sg)})")
        for i in range(0, 8, 2): pk(a, "add", 16 + i, 16 + i, 56 + 8 * sg + i)
    for i in range(4): a(f"v_cvt_pk_bf16_f32 v{24+i}, v{16+2*i}, v{17+2*i}")
    a("buffer_store_dwordx4 v[24:27], v10, s[20:23], s74 offen")
    stamp(a, 52)
    if STAMP: a("s_waitcnt vmcnt(0)")
    stamp(a, 62); stamp(a, 63, True)
    stamp_flush(a, 0, 8)
    a(f"{Lend}:", "s_endpgm")
    a("L_k2_slow:")
    a(f"s_mov_b32 s15, {KVF:#x}", f"v_mov_b32 v{VC}, {f32(-3.0e38)}", f"v_mov_b32 v{VC+1}, {f32(-3.0e38)}")
    a("L_k2_mx:")
    a(f"buffer_load_dwordx4 {vr(VK,4)}, v{V_L16}, s[52:55], s15 offen sc1", "s_waitcnt vmcnt(0)")
    mfma32(a, VS, VK, VQ, None)
    mfma32(a, VS + 16, VK, VQ + 4, None)
    a("s_nop 7", "s_nop 4")
    for t in range(2):
        for i in range(8):
            a(f"v_max3_f32 v{VC+t}, v{VS+16*t+2*i}, v{VS+16*t+2*i+1}, v{VC+t}")
    a("s_add_u32 s15, s15, 2048", f"s_cmp_lt_u32 s15, {KVF+64*2048:#x}", "s_cbranch_scc1 L_k2_mx")
    a(f"v_mov_b32 v{VC+2}, v{VC}", f"v_mov_b32 v{VC+3}, v{VC+1}", "s_nop 1",
      f"v_permlane32_swap_b32 v{VC}, v{VC+2}", f"v_permlane32_swap_b32 v{VC+1}, v{VC+3}", "s_nop 1",
      f"v_max_f32 v{VC}, v{VC}, v{VC+2}", f"v_max_f32 v{VC+1}, v{VC+1}, v{VC+3}")
    attention(a, vm_pre, True, *later_scalars())
    a("s_branch L_k2_done")
    for blk in COLD: a(*blk)
    return a.text() + kernel_desc(name, 256, nsgpr=102), f"; @launch grid=(256,1,1) block=(512,1,1) lds={LDS}"
```

```python
from lib import *
from k1 import sigma_lane, QSCALE
from k1b import rstd, halves_sum
import os
FSH = int(os.environ.get('FSH', '5'))
KFL = 0x240000
L_STG = 131072
SPIN = 1 << 20

def prologue_merged(a, early, setup, VQ, after_flags, before_b5, both=False):
    NW = int(os.environ.get("NW", "3")); NE = int(os.environ.get("NE", "1")); NM = int(os.environ.get("NM", "2"))
    a("v_lshrrev_b32 v4, 3, v1", "v_and_b32 v5, 7, v1",
      "v_lshrrev_b32 v10, 1, v4", "v_xor_b32 v10, v10, v5", "v_lshlrev_b32 v10, 4, v10", "v_lshl_or_b32 v6, v4, 10, v10",
      "v_xor_b32 v7, 64, v6",
      "v_bfe_u32 v10, v4, 1, 1", "v_lshlrev_b32 v10, 2, v10", "v_xor_b32 v10, v10, v5", "v_lshlrev_b32 v10, 4, v10",
      "v_lshl_or_b32 v8, v4, 10, v10",
      "v_lshlrev_b32 v3, 4, v1", f"v_lshlrev_b32 v111, {FSH}, v1")
    a("s_and_b32 s96, s5, 6",
      "s_lshl_b32 s7, s4, 16", "s_lshl_b32 s8, s3, 7", "s_add_u32 s7, s7, s8",
      "s_lshl_b32 s8, s3, 13",
      "s_lshl_b32 s66, s3, 12", f"s_add_u32 s66, s66, {L_STG}",
      "s_lshl_b32 s9, s5, 7", "s_lshr_b32 s6, s2, 6", "s_lshl_b32 s6, s6, 4", "s_add_u32 s6, s6, s3", "s_add_u32 s6, s6, 63",
      "s_lshl_b32 s10, s3, 10", "s_lshl_b32 s11, s3, 11",
      "s_lshl_b32 s68, s4, 10", f"s_add_u32 s68, s68, {FLAGS:#x}",
      "s_getreg_b32 s42, hwreg(HW_REG_XCC_ID)", "s_and_b32 s42, s42, 15", "s_add_u32 s42, s42, 1",
      "s_mov_b32 m0, s66", f"s_mov_b32 s90, {512*32}", "s_mov_b32 s91, 0x00020000", f"s_mov_b32 s78, {2048*1024}", "s_mov_b32 s79, 0x00020000")
    a("s_bitcmp1_b32 s5, 0", "s_cbranch_scc1 L_p_wv", "s_waitcnt lgkmcnt(0)", "s_mov_b32 s88, s20", "s_and_b32 s89, s21, 0xffff", "s_branch L_p_w")
    a("L_p_wv:", "s_waitcnt lgkmcnt(0)", "s_mov_b32 s88, s22", "s_and_b32 s89, s23, 0xffff")
    a("L_p_w:")
    stamp(a, 2)
    def x_dma(i):
        a(f"s_xor_b32 s13, s96, {i}", "s_lshl_b32 s14, s13, 10", "s_add_u32 m0, s8, s14", "s_lshl_b32 s13, s13, 13", "s_add_u32 s13, s13, s7",
          f"buffer_load_dwordx4 v{6+(i&1)}, s[76:79], s13 offen lds")
    def wq_dma(i):
        a(f"s_add_u32 s13, s6, {7*i}", "s_and_b32 s13, s13, 63", "s_lshl_b32 s14, s13, 10", "s_add_u32 m0, s14, 65536",
          "s_lshl_b32 s13, s13, 13", "s_add_u32 s13, s13, s9", "buffer_load_dwordx4 v8, s[84:87], s13 offen lds")
    a("buffer_load_dwordx4 v3, s[88:91], s11 offen lds", "buffer_load_dwordx4 v3, s[88:91], s11 offen offset:1024 lds")
    a("s_mov_b32 s76, s16", "s_and_b32 s77, s17, 0xffff")
    x_dma(0); x_dma(1)
    srd(a, 52, 40, WS_BYTES)
    srd(a, 84, 18, 512*1024)
    if os.environ.get("CPF", "1") == "2":
        a("s_getpc_b64 s[12:13]", "s_lshl_b32 s14, s3, 7", "s_add_u32 s12, s12, s14", "s_addc_u32 s13, s13, 0")
        for i in range(8):
            a(f"s_load_dword s99, s[12:13], {i*1024}")
        a("s_mul_i32 s14, s5, 3072", "s_add_u32 s12, s12, s14", "s_addc_u32 s13, s13, 0")
        for i in range(3):
            a(f"s_load_dword s99, s[12:13], {8192+i*1024}")
    a("s_barrier")
    a("s_cmp_eq_u32 s3, 0", "s_cbranch_scc1 L_p_m0", "s_cmp_lt_u32 s3, 3", "s_cbranch_scc1 L_p_m1", "s_cmp_eq_u32 s3, 3", "s_cbranch_scc1 L_p_m3")
    a("s_sub_u32 s82, s3, 4", f"s_lshl_b32 s82, s82, {6+FSH}", f"s_add_u32 s82, s82, {KFL:#x}",
      "buffer_load_dword v108, v111, s[52:55], s82 offen sc1", "s_branch L_p_m1")
    a("L_p_m3:", "v_lshlrev_b32 v11, 2, v1", "v_mov_b32 v108, 0", "s_lshl_b32 s13, s5, 7", "s_add_u32 s13, s13, s68", "v_writelane_b32 v108, s42, 0",
      "s_mov_b64 exec, 0xffffffff", "buffer_store_dword v108, v11, s[52:55], s13 offen sc1", "s_mov_b64 exec, -1")
    a("L_p_m1:")
    for i in range(NE): wq_dma(i)
    a("s_branch L_p_md")
    a("L_p_m0:", f"s_lshl_b32 s82, s2, {FSH}", f"s_add_u32 s82, s82, {KFL:#x}", "s_mov_b64 exec, 1",
      "buffer_load_dword v108, v3, s[52:55], s82 offen sc1", "s_mov_b64 exec, -1", "s_setprio 3")
    for i in range(5, 5 + NE): x_dma(i)
    assert NW == 3
    a("L_p_md:")
    KW, KX, KA = 128, 136, 144
    a("v_and_b32 v12, 15, v1", "v_lshrrev_b32 v13, 4, v1",
      "s_lshl_b32 s13, s96, 3", "v_add_u32 v14, s13, v12",
      "v_bfe_u32 v15, v14, 1, 3", "v_xor_b32 v15, v15, v13", "v_lshlrev_b32 v14, 7, v14", "v_lshl_or_b32 v14, v15, 4, v14",
      "v_add_u32 v14, s8, v14", "v_xor_b32 v15, 64, v14",
      "v_lshlrev_b32 v16, 3, v12", "v_lshl_or_b32 v16, v13, 8, v16", "v_add_u32 v16, s66, v16",
      "v_add_u32 v17, s66, v3",
      f"v_mov_b64 v[{KA+4}:{KA+5}], 0", f"v_mov_b64 v[{KA+6}:{KA+7}], 0", "s_mov_b32 s83, 0x3f803f80",
      "v_lshlrev_b32 v18, 4, v13", "v_mov_b32 v109, 0")
    a("s_lshl_b32 s13, s4, 1", "s_lshr_b32 s14, s5, 2", "s_add_u32 s13, s13, s14", "s_lshl_b32 s13, s13, 11", f"s_add_u32 s97, s13, {KVF:#x}",
      "s_bfe_u32 s14, s5, 0x10001", "s_lshl_b32 s14, s14, 8", "s_bitcmp1_b32 s5, 0", "s_cbranch_scc1 L_p_av")
    a("s_add_u32 s97, s97, s14",
      "v_lshrrev_b32 v19, 1, v13", "v_lshlrev_b32 v19, 9, v19", "v_lshl_or_b32 v19, v12, 4, v19", "v_and_b32 v10, 1, v13", "v_lshl_or_b32 v19, v10, 3, v19",
      "s_branch L_p_ad", "L_p_av:")
    sigma_lane(a, 19, 12, 10)
    a("s_xor_b32 s14, s14, 256", "s_add_u32 s97, s97, s14", "s_add_u32 s97, s97, 1024",
      "v_lshlrev_b32 v19, 4, v19", "v_and_b32 v10, 1, v13", "v_lshl_or_b32 v19, v10, 3, v19", "v_lshrrev_b32 v10, 1, v13", "v_lshl_or_b32 v19, v10, 9, v19")
    a("L_p_ad:")
    XA, WA = 112, 116
    early()
    setup()
    a("v_and_b32 v4, 31, v1", "v_lshrrev_b32 v5, 5, v1", "v_bfe_u32 v11, v4, 1, 3", "v_xor_b32 v11, v11, v5",
      "s_mul_i32 s12, s72, 4160", "s_lshl_b32 s15, s70, 15", "s_add_u32 s12, s12, s15",
      "v_lshlrev_b32 v11, 4, v11", "v_lshl_or_b32 v11, v4, 7, v11", f"v_xor_b32 v{XA}, s12, v11")
    for j in range(1, 4):
        a(f"v_xor_b32 v{XA+j}, {32*j}, v{XA}")
    a("v_bfe_u32 v10, v1, 4, 1", "v_and_b32 v11, 1, v1", "v_lshl_or_b32 v10, v10, 1, v11",
      "v_bfe_u32 v11, v1, 3, 1", "v_lshl_or_b32 v10, v11, 2, v10", "v_lshlrev_b32 v10, 4, v10",
      "v_bfe_u32 v11, v1, 1, 1", "v_lshl_or_b32 v10, v11, 3, v10",
      "v_bfe_u32 v11, v1, 2, 2", "v_lshl_or_b32 v10, v11, 7, v10", "v_lshl_or_b32 v10, v5, 10, v10",
      "s_lshl_b32 s13, s70, 5", "s_add_u32 s15, s15, s13", "s_lshl_b32 s13, s71, 6", "s_add_u32 s15, s15, s13",
      "s_lshl_b32 s13, s72, 12", "s_add_u32 s15, s15, s13", "s_add_u32 s15, s15, 65536", f"v_xor_b32 v{WA}, s15, v10")
    for j in range(1, 4):
        a(f"v_xor_b32 v{WA+j}, {2048*j}, v{WA}")
    a("s_lshl_b32 s13, s72, 8", f"s_add_u32 s13, s13, {L_STG}", "v_lshl_add_u32 v104, v4, 3, s13",
      "v_lshl_add_u32 v106, v1, 2, s66",
      "s_lshl_b32 s13, s71, 13", "s_lshl_b32 s14, s70, 6", "s_add_u32 s13, s13, s14", f"s_add_u32 s13, s13, {L_STG}", "v_lshl_add_u32 v105, v5, 4, s13",
      "v_xor_b32 v107, 64, v105",
      "v_xor_b32 v110, 0x4000, v17", "v_xor_b32 v103, 0x1000, v17", "v_xor_b32 v102, 0x4000, v106", "v_lshl_add_u32 v101, v1, 3, s66",
      "v_bfe_u32 v9, v1, 1, 3", "v_lshlrev_b32 v9, 4, v9", "v_lshl_or_b32 v9, v1, 7, v9", "v_add_u32 v9, s8, v9",
      "s_lshl_b32 s13, s3, 4", f"s_add_u32 s13, s13, {L_STG+640-64}", "v_lshl_add_u32 v100, v13, 2, s13",
      f"s_mov_b32 s13, {L_STG+640}", "v_lshl_add_u32 v95, v12, 2, s13",
      "v_cmp_eq_u32 vcc, 0, v4", "v_cmp_eq_u32 s[12:13], 17, v4", "s_or_b64 vcc, vcc, s[12:13]", "v_mov_b32 v10, s83", "v_mov_b64 v[96:97], 0",
      "v_cndmask_b32 v120, 0, v10, vcc", "v_mov_b32 v121, v120", "v_mov_b32 v122, v120",
      "v_mov_b64 v[98:99], 0", "v_mov_b32 v36, 0")
    stamp(a, 3)
    a("s_cmp_eq_u32 s3, 0", "s_cbranch_scc1 L_p_r0")
    for i in range(NE, NW): wq_dma(i)
    a("s_branch L_p_r1", "L_p_r0:")
    for i in range(5 + NE, 8): x_dma(i)
    a("L_p_r1:")
    a("s_sub_u32 s13, s3, 1", "s_cmp_lt_u32 s13, 2", "s_cbranch_scc0 L_p_w3", f"s_waitcnt vmcnt({NW})", "L_p_w3:", f"s_waitcnt vmcnt({NW+1})")
    stamp(a, 56)
    for kt in range(2):
        for e in range(2):
            a(f"ds_read_b64_tr_b16 {vr(KW+4*kt+2*e,2)}, v16 offset:{kt*1024+e*128}")
    a(f"ds_read_b128 {vr(KX,4)}, v14", f"ds_read_b128 {vr(KX+4,4)}, v15")
    for i in range(2, 5): x_dma(i)
    a("v_mov_b32 v123, v120", "s_waitcnt lgkmcnt(0)")
    a("s_bitcmp1_b32 s5, 0", "s_cbranch_scc1 L_p_mv")
    mfma16(a, KA, KW, KX, None); mfma16(a, KA, KW + 4, KX + 4, KA)
    a("s_branch L_p_mk", "L_p_mv:")
    mfma16(a, KA, KX, KW, None); mfma16(a, KA, KX + 4, KW + 4, KA)
    a("L_p_mk:")
    for e in range(8):
        a(f"v_dot2c_f32_bf16 v{KA+4}, s83, v{KX+e}", f"v_dot2c_f32_bf16 v{KA+5}, v{KX+e}, v{KX+e}", f"v_dot2c_f32_bf16 v{KA+6}, s83, v{KW+e}")
    a(f"ds_write_b128 v17, {vr(KA,4)} offset:2048", "s_nop 1", f"ds_write_b128 v17, {vr(KA+4,4)} offset:3072")
    a(f"s_waitcnt vmcnt({NW+3}) lgkmcnt(0)", "s_barrier")
    stamp(a, 57)
    a("s_cmp_eq_u32 s3, 0", "s_cbranch_scc1 L_p_fin")
    for i in range(5, 8): x_dma(i)
    for i in range(NW, NW + NM): wq_dma(i)
    a("s_barrier")
    for i in range(NW + NM, 9): wq_dma(i)
    a("s_cmp_eq_u32 s3, 1", "s_cbranch_scc0 L_p_n9")
    wq_dma(9)
    a("L_p_n9:", f"s_waitcnt vmcnt({9-NW})", "s_branch L_p_q")
    a("L_p_fin:")
    for w in range(1, 8):
        a(f"ds_read_b128 {vr(KA+8*w,4)}, v17 offset:{w*4096+2048}", f"ds_read_b128 {vr(KA+4+8*w,4)}, v17 offset:{w*4096+3072}")
    a("v_add_u32 v108, 1, v108")
    for w in range(1, 8):
        a(f"s_waitcnt lgkmcnt({2*(7-w)})")
        for i in range(0, 8, 2):
            a(f"v_pk_add_f32 v[{KA+i}:{KA+1+i}], v[{KA+i}:{KA+1+i}], v[{KA+8*w+i}:{KA+1+8*w+i}]")
    M, R, C, T = KA + 4, KA + 5, KA + 6, KA + 8
    for swp in ("v_permlane32_swap_b32", "v_permlane16_swap_b32"):
        a(f"v_mov_b32 v{T}, v{M}", f"v_mov_b32 v{T+1}, v{R}", f"v_mov_b32 v{T+2}, v{C}", "s_nop 0",
          f"{swp} v{M}, v{T}", f"{swp} v{R}, v{T+1}", f"{swp} v{C}, v{T+2}", "s_nop 0",
          f"v_add_f32 v{M}, v{M}, v{T}", f"v_add_f32 v{R}, v{R}, v{T+1}", f"v_add_f32 v{C}, v{C}, v{T+2}")
    a("s_bitcmp1_b32 s5, 0", "s_cbranch_scc1 L_p_fv")
    for i in range(4):
        a(f"ds_bpermute_b32 v{T+i}, v18, v{C} offset:{4*i}")
    rstd(a, M, R)
    a("s_waitcnt lgkmcnt(0)")
    for i in range(4):
        a(f"v_fma_f32 v{KA+i}, -v{M}, v{T+i}, v{KA+i}")
    for i in range(4):
        a(f"v_mul_f32 v{KA+i}, v{R}, v{KA+i}")
    a(f"v_cvt_pk_bf16_f32 v12, v{KA}, v{KA+1}", f"v_cvt_pk_bf16_f32 v13, v{KA+2}, v{KA+3}")
    a("buffer_store_dwordx2 v[12:13], v19, s[52:55], s97 offen sc1", "s_barrier")
    a("v_dot2c_f32_bf16 v109, v12, v12", "v_dot2c_f32_bf16 v109, v13, v13", "s_nop 2")
    halves_sum(a, 109, 11)
    a("v_mov_b32 v11, v109", "s_nop 1", "v_permlane16_swap_b32 v109, v11", "s_nop 1", "v_add_f32 v109, v109, v11")
    for sh in (8, 4, 2, 1):
        a("s_nop 1", f"v_max_f32_dpp v109, v109, v109 row_ror:{sh} row_mask:0xf bank_mask:0xf")
    a("s_branch L_p_pub")
    a("L_p_fv:")
    rstd(a, M, R)
    a("s_nop 0")
    for i in range(4):
        a(f"ds_bpermute_b32 v{T+i}, v18, v{M} offset:{4*i}", f"ds_bpermute_b32 v{T+4+i}, v18, v{R} offset:{4*i}")
    a("s_waitcnt lgkmcnt(0)")
    for i in range(4):
        a(f"v_fma_f32 v{KA+i}, -v{T+i}, v{C}, v{KA+i}")
    for i in range(4):
        a(f"v_mul_f32 v{KA+i}, v{T+4+i}, v{KA+i}")
    a(f"v_cvt_pk_bf16_f32 v12, v{KA}, v{KA+1}", f"v_cvt_pk_bf16_f32 v13, v{KA+2}, v{KA+3}")
    a("buffer_store_dwordx2 v[12:13], v19, s[52:55], s97 offen sc1", "s_barrier")
    a("L_p_pub:")
    stamp(a, 16)
    a("s_waitcnt vmcnt(1)")
    a("L_p_q:")
    stamp(a, 15)
    for i in range(8):
        if i: a(f"v_xor_b32 v10, {16*i}, v9")
        a(f"ds_read_b128 {vr(128+4*i,4)}, v{10 if i else 9}")
    for i in range(8):
        a(f"s_waitcnt lgkmcnt({7-i})")
        for e in range(4):
            r = 128 + 4 * i + e
            a(f"v_dot2c_f32_bf16 v{96+2*(e&1)}, s83, v{r}", f"v_dot2c_f32_bf16 v{97+2*(e&1)}, v{r}, v{r}")
    a("s_nop 2", "v_pk_add_f32 v[96:97], v[96:97], v[98:99]", "ds_write_b64 v101, v[96:97]")
    DF = int(os.environ.get("DF", "-1"))
    def flag_store():
        a("s_cmp_eq_u32 s3, 0", "s_cbranch_scc0 L_p_f1", "s_waitcnt vmcnt(0)", "s_mov_b64 exec, 1",
          "buffer_store_dwordx2 v[108:109], v3, s[52:55], s82 offen sc1", "s_mov_b64 exec, -1", "s_setprio 0")
        stamp(a, 58)
        a("L_p_f1:")
    if DF < 0:
        a("s_waitcnt vmcnt(0)")
        flag_store()
    else:
        a("s_cmp_eq_u32 s3, 0", "s_cbranch_scc1 L_p_b3", "s_waitcnt vmcnt(0)", "L_p_b3:")
    a("s_waitcnt lgkmcnt(0)", "s_barrier")
    stamp(a, 55)
    B0, AC = 128, 44
    PP = int(os.environ.get("PP", "10"))
    lgq = []
    def rd(tag, ins): a(ins); lgq.append(tag)
    def wt(tag):
        idx = max(i for i, t in enumerate(lgq) if t == tag)
        a(f"s_waitcnt lgkmcnt({min(15, len(lgq)-1-idx)})")
    def issue(p):
        grp, j = p >> 2, p & 3
        b = B0 + 8 * p
        rd(p, f"ds_read_b128 {vr(b,4)}, v{XA+j} offset:{grp*8192}")
        rd(p, f"ds_read_b64_tr_b16 {vr(b+4,2)}, v{WA+j} offset:{grp*8192}")
        rd(p, f"ds_read_b64_tr_b16 {vr(b+6,2)}, v{WA+j} offset:{grp*8192+512}")
    def pk(op, d, x, y, z=None, mod=""):
        ops = ", ".join(f"v[{r}:{r+1}]" for r in ([d, x, y] + ([z] if z is not None else [])))
        a(f"v_pk_{op}_f32 {ops} {mod}")
    ST = 128
    QW = int(os.environ.get('QW', '4'))
    if os.environ.get('QP', '0') == '1': a('s_cmp_lt_u32 s3, 4', 's_cbranch_scc1 L_p_qp', 's_setprio 1', 'L_p_qp:')
    for p in range(QW): issue(p)
    for p in range(16):
        wt(p)
        b = B0 + 8 * p
        mfma32(a, AC, b + 4, b, None if p == 0 else AC)
        if p + QW < 16: issue(p + QW)
        if (p & 3) < 2:
            mfma16(a, 96, 120, b + 4, None if p == 0 else 96)
        if p == DF: flag_store()
        if p == PP:
            a("s_cmp_lt_u32 s3, 4", "s_cbranch_scc1 L_p_e1", "buffer_load_dwordx2 v[14:15], v111, s[52:55], s82 offen sc1", "L_p_e1:")
        if p == 6:
            for s_ in range(4):
                rd("st", f"ds_read2st64_b64 {vr(ST+4*s_,4)}, v104 offset0:{16*s_} offset1:{16*s_+8}")
        if p == 12:
            wt('st')
            for i in range(8): a(f"v_add_f32 v{ST+i}, v{ST+i}, v{ST+8+i}")
        if p == 13:
            for st_ in (4, 2):
                for i in range(st_): a(f"v_add_f32 v{ST+i}, v{ST+i}, v{ST+st_+i}")
        if p == 14:
            rstd(a, ST, ST + 1)
    a("s_nop 3", "s_mov_b64 exec, 0xffff", "ds_write_b32 v106, v96 offset:512", "ds_write_b32 v106, v97 offset:576", "s_mov_b64 exec, -1")
    a(f"v_mul_f32 v{ST+2}, {f32(QSCALE)}, v{ST+1}", "s_nop 2")
    a(f"ds_write_b128 v17, {vr(AC+8,4)} offset:2048", f"ds_write_b128 v17, {vr(AC+12,4)} offset:3072")
    stamp(a, 54)
    a("s_cmp_lt_u32 s3, 4", "s_cbranch_scc1 L_p_np")
    a("s_mov_b32 s13, 0", "s_branch L_p_chk")
    a("L_p_poll:", "buffer_load_dwordx2 v[14:15], v111, s[52:55], s82 offen sc1",
      "s_add_u32 s13, s13, 1", f"s_cmp_gt_u32 s13, {SPIN}", "s_cbranch_scc1 L_p_out",
      "L_p_chk:", "s_waitcnt vmcnt(0)", "v_cmp_eq_u32 vcc, v14, v108", "s_cbranch_vccnz L_p_poll")
    a("L_p_out:", "s_waitcnt vmcnt(0)")
    for sh in (8, 4, 2, 1):
        a(f"v_max_f32_dpp v15, v15, v15 row_ror:{sh} row_mask:0xf bank_mask:0xf", "s_nop 1")
    a("ds_write_b32 v100, v15")
    a("L_p_np:")
    a("s_waitcnt lgkmcnt(0)", "s_barrier")
    stamp(a, 53)
    E, CS = 136, 144
    a(f"ds_read_b128 {vr(E,4)}, v103 offset:2048", f"ds_read_b128 {vr(E+4,4)}, v103 offset:3072")
    for s_, (reg, o) in enumerate(((105, 0), (107, 4096), (105, 16384), (107, 20480))):
        a(f"ds_read_b128 {vr(CS+8*s_,4)}, v{reg} offset:{512+o}", f"ds_read_b128 {vr(CS+4+8*s_,4)}, v{reg} offset:{512+o+32}")
    a("ds_read_b32 v38, v95")
    after_flags()
    a("s_waitcnt lgkmcnt(9)")
    for i in range(0, 8, 2): pk("add", AC + i, AC + i, E + i)
    a("s_waitcnt lgkmcnt(5)")
    for i in range(0, 8, 2): pk("add", CS + i, CS + i, CS + 8 + i)
    a("s_waitcnt lgkmcnt(0)")
    for i in range(0, 8, 2): pk("add", CS + 16 + i, CS + 16 + i, CS + 24 + i)
    for i in range(0, 8, 2): pk("add", CS + i, CS + i, CS + 16 + i)
    for i in range(0, 8, 2): pk("fma", AC + i, ST, CS + i, AC + i, "op_sel_hi:[0,1,1] neg_lo:[1,0,0] neg_hi:[1,0,0]")
    for i in range(0, 8, 2): pk("mul", AC + i, ST + 2, AC + i, None, "op_sel_hi:[0,1]")
    for i in range(4):
        a(f"v_cvt_pk_bf16_f32 v{VQ+i}, v{AC+2*i}, v{AC+1+2*i}")
    a(f"ds_write_b128 v17, {vr(VQ,4)} offset:1024")
    for i in range(4):
        a(f"v_dot2c_f32_bf16 v36, v{VQ+i}, v{VQ+i}")
    for sh in (8, 4):
        a(f"v_max_f32_dpp v38, v38, v38 row_ror:{sh} row_mask:0xf bank_mask:0xf", "s_nop 1")
    a("v_mov_b32 v37, v36", "v_max_f32_dpp v38, v38, v38 row_ror:2 row_mask:0xf bank_mask:0xf", "s_nop 0",
      "v_permlane32_swap_b32 v36, v37", "v_max_f32_dpp v38, v38, v38 row_ror:1 row_mask:0xf bank_mask:0xf", "v_add_f32 v36, v36, v37",
      "s_nop 0", "ds_write_b32 v106, v36 offset:768")
    before_b5()
    a("s_waitcnt lgkmcnt(0)", "s_barrier")
    if both:
        a("ds_read_b32 v37, v102 offset:768", f"ds_read_b128 {vr(VQ,4)}, v110 offset:1024", f"ds_read_b128 {vr(VQ+4,4)}, v110 offset:17408", "s_waitcnt lgkmcnt(2)")
    else:
        a("ds_read_b32 v37, v102 offset:768", f"ds_read_b128 {vr(VQ+4,4)}, v110 offset:1024", "s_waitcnt lgkmcnt(1)")
    a("v_max_f32 v36, v36, v37", "v_mul_f32 v36, v36, v38")
```

```python
from lib import *
from k1 import sigma_lane, QSCALE
from k1b import rstd, halves_sum
import os
FSH = int(os.environ.get('FSH', '5'))
KFL = 0x240000
L_STG = 131072
SPIN = 1 << 20

def prologue_merged(a, early, setup, VQ, after_flags, before_b5):
    TH = int(os.environ.get("TH", "9")); NF = int(os.environ.get("NF", "5"))
    SYNC = L_STG + 16384 + 1024
    a("v_lshrrev_b32 v4, 3, v1", "v_and_b32 v5, 7, v1",
      "v_lshrrev_b32 v10, 1, v4", "v_xor_b32 v10, v10, v5", "v_lshlrev_b32 v10, 4, v10", "v_lshl_or_b32 v6, v4, 10, v10",
      "v_xor_b32 v7, 64, v6",
      "v_bfe_u32 v10, v4, 1, 1", "v_lshlrev_b32 v10, 2, v10", "v_xor_b32 v10, v10, v5", "v_lshlrev_b32 v10, 4, v10",
      "v_lshl_or_b32 v8, v4, 10, v10",
      "v_lshlrev_b32 v3, 4, v1", f"v_lshlrev_b32 v111, {FSH}, v1")
    a("s_and_b32 s96, s5, 6", "s_and_b32 s98, s3, 3",
      "s_lshl_b32 s7, s4, 16", "s_lshl_b32 s8, s98, 8", "s_add_u32 s7, s7, s8",
      "s_lshl_b32 s8, s98, 14",
      "s_lshl_b32 s66, s3, 12", "s_mov_b32 s11, s66", f"s_add_u32 s66, s66, {L_STG}",
      "s_lshl_b32 s9, s5, 7", "s_lshr_b32 s6, s2, 6", "s_lshl_b32 s6, s6, 4", "s_add_u32 s6, s6, s98",
      "s_lshl_b32 s10, s3, 10",
      "s_lshl_b32 s68, s4, 10", f"s_add_u32 s68, s68, {FLAGS:#x}",
      "s_getreg_b32 s42, hwreg(HW_REG_XCC_ID)", "s_and_b32 s42, s42, 15", "s_add_u32 s42, s42, 1",
      "s_mov_b32 m0, s66", f"s_mov_b32 s90, {512*32}", "s_mov_b32 s91, 0x00020000", f"s_mov_b32 s78, {2048*1024}", "s_mov_b32 s79, 0x00020000",
      f"s_lshl_b32 s12, s3, 2", f"s_add_u32 s12, s12, {SYNC}", "v_mov_b32 v93, s12", "v_mov_b32 v92, 0", "ds_write_b32 v93, v92")
    a("s_bitcmp1_b32 s5, 0", "s_cbranch_scc1 L_p_wv", "s_waitcnt lgkmcnt(0)", "s_mov_b32 s88, s20", "s_and_b32 s89, s21, 0xffff", "s_branch L_p_w")
    a("L_p_wv:", "s_waitcnt lgkmcnt(0)", "s_mov_b32 s88, s22", "s_and_b32 s89, s23, 0xffff")
    a("L_p_w:")
    stamp(a, 2)
    def x_dma(i, pre=None):
        a(f"s_xor_b32 s13, s96, {i}", "s_lshl_b32 s14, s13, 10", "s_add_u32 m0, s8, s14", "s_lshl_b32 s13, s13, 13", "s_add_u32 s13, s13, s7")
        if pre: a(pre)
        a(f"buffer_load_dwordx4 v{6+(i&1)}, s[76:79], s13 offen lds", f"s_add_u32 m0, m0, {8192-128}", pre or "s_nop 0",
          f"buffer_load_dwordx4 v{6+(i&1)}, s[76:79], s13 offen offset:128 lds")
    def wq_dma(n, pre=None):
        a(f"s_add_u32 s13, s6, {4*n}", "s_and_b32 s13, s13, 63", "s_lshl_b32 s14, s13, 10", "s_add_u32 m0, s14, 65536",
          "s_lshl_b32 s13, s13, 13", "s_add_u32 s13, s13, s9")
        if pre: a(pre)
        a("buffer_load_dwordx4 v8, s[84:87], s13 offen lds")
    a("s_mov_b32 s76, s16", "s_and_b32 s77, s17, 0xffff", "s_cmp_ge_u32 s3, 4", "s_cbranch_scc1 L_p_a0")
    for i in range(4):
        a(f"buffer_load_dwordx4 v3, s[88:91], s11 offen offset:{1024*i} lds")
    x_dma(0); x_dma(1)
    a("L_p_a0:")
    srd(a, 52, 40, WS_BYTES)
    srd(a, 84, 18, 512*1024)
    a("s_barrier")
    a("s_cmp_lt_u32 s3, 4", "s_cbranch_scc1 L_p_m0", "s_cmp_eq_u32 s3, 4", "s_cbranch_scc0 L_p_m4")
    a("v_lshlrev_b32 v11, 2, v1", "v_mov_b32 v12, 0", "s_lshl_b32 s13, s5, 7", "s_add_u32 s13, s13, s68", "v_writelane_b32 v12, s42, 0",
      "s_mov_b64 exec, 0xffffffff", "buffer_store_dword v12, v11, s[52:55], s13 offen sc1", "s_mov_b64 exec, -1")
    a("L_p_m4:", f"s_lshl_b32 s82, s98, {6+FSH}", f"s_add_u32 s82, s82, {KFL:#x}", "buffer_load_dword v108, v111, s[52:55], s82 offen sc1")
    for n in range(NF): wq_dma(n)
    a("s_branch L_p_md")
    a("L_p_m0:", f"s_lshl_b32 s82, s2, {FSH}", f"s_add_u32 s82, s82, {KFL:#x}", "s_mov_b64 exec, 1",
      "buffer_load_dword v108, v3, s[52:55], s82 offen sc1", "s_mov_b64 exec, -1", "s_setprio 2")
    a("L_p_md:")
    KW, KX, KA = 128, 144, 160
    a("v_and_b32 v12, 15, v1", "v_lshrrev_b32 v13, 4, v1",
      "s_lshl_b32 s13, s96, 3", "v_add_u32 v14, s13, v12",
      "v_bfe_u32 v15, v14, 1, 3", "v_xor_b32 v15, v15, v13", "v_lshlrev_b32 v14, 7, v14", "v_lshl_or_b32 v14, v15, 4, v14",
      "v_add_u32 v14, s8, v14", "v_xor_b32 v15, 64, v14",
      "v_lshlrev_b32 v16, 3, v12", "v_lshl_or_b32 v16, v13, 8, v16", "v_add_u32 v16, s66, v16",
      "v_add_u32 v17, s66, v3",
      f"v_mov_b64 v[{KA+4}:{KA+5}], 0", f"v_mov_b64 v[{KA+6}:{KA+7}], 0", "s_mov_b32 s83, 0x3f803f80",
      "v_lshlrev_b32 v18, 4, v13", "v_mov_b32 v109, 0")
    a("s_lshl_b32 s13, s4, 1", "s_lshr_b32 s14, s5, 2", "s_add_u32 s13, s13, s14", "s_lshl_b32 s13, s13, 11", f"s_add_u32 s97, s13, {KVF:#x}",
      "s_bfe_u32 s14, s5, 0x10001", "s_lshl_b32 s14, s14, 8", "s_bitcmp1_b32 s5, 0", "s_cbranch_scc1 L_p_av")
    a("s_add_u32 s97, s97, s14",
      "v_lshrrev_b32 v19, 1, v13", "v_lshlrev_b32 v19, 9, v19", "v_lshl_or_b32 v19, v12, 4, v19", "v_and_b32 v10, 1, v13", "v_lshl_or_b32 v19, v10, 3, v19",
      "s_branch L_p_ad", "L_p_av:")
    sigma_lane(a, 19, 12, 10)
    a("s_xor_b32 s14, s14, 256", "s_add_u32 s97, s97, s14", "s_add_u32 s97, s97, 1024",
      "v_lshlrev_b32 v19, 4, v19", "v_and_b32 v10, 1, v13", "v_lshl_or_b32 v19, v10, 3, v19", "v_lshrrev_b32 v10, 1, v13", "v_lshl_or_b32 v19, v10, 9, v19")
    a("L_p_ad:")
    XA, WA = 112, 116
    early()
    setup()
    a("v_and_b32 v4, 31, v1", "v_lshrrev_b32 v5, 5, v1", "v_bfe_u32 v11, v4, 1, 3", "v_xor_b32 v11, v11, v5",
      "s_mul_i32 s12, s72, 4160", "s_lshl_b32 s15, s70, 15", "s_add_u32 s12, s12, s15",
      "v_lshlrev_b32 v11, 4, v11", "v_lshl_or_b32 v11, v4, 7, v11", f"v_xor_b32 v{XA}, s12, v11")
    for j in range(1, 4):
        a(f"v_xor_b32 v{XA+j}, {32*j}, v{XA}")
    a("v_bfe_u32 v10, v1, 4, 1", "v_and_b32 v11, 1, v1", "v_lshl_or_b32 v10, v10, 1, v11",
      "v_bfe_u32 v11, v1, 3, 1", "v_lshl_or_b32 v10, v11, 2, v10", "v_lshlrev_b32 v10, 4, v10",
      "v_bfe_u32 v11, v1, 1, 1", "v_lshl_or_b32 v10, v11, 3, v10",
      "v_bfe_u32 v11, v1, 2, 2", "v_lshl_or_b32 v10, v11, 7, v10", "v_lshl_or_b32 v10, v5, 10, v10",
      "s_lshl_b32 s13, s70, 5", "s_add_u32 s15, s15, s13", "s_lshl_b32 s13, s71, 6", "s_add_u32 s15, s15, s13",
      "s_lshl_b32 s13, s72, 12", "s_add_u32 s15, s15, s13", "s_add_u32 s15, s15, 65536", f"v_xor_b32 v{WA}, s15, v10")
    for j in range(1, 4):
        a(f"v_xor_b32 v{WA+j}, {2048*j}, v{WA}")
    a("s_lshl_b32 s13, s72, 8", f"s_add_u32 s13, s13, {L_STG+16384}", "v_lshl_add_u32 v104, v4, 3, s13",
      "s_and_b32 s13, s66, 0xffffbfff", "s_lshl_b32 s14, s72, 8", "s_add_u32 s13, s13, s14", "v_lshl_add_u32 v106, v1, 2, s13",
      "s_lshl_b32 s13, s71, 13", "s_lshl_b32 s14, s70, 6", "s_add_u32 s13, s13, s14", f"s_add_u32 s13, s13, {L_STG}", "v_lshl_add_u32 v105, v5, 4, s13",
      "v_xor_b32 v107, 64, v105",
      "v_xor_b32 v110, 0x4000, v17", "v_xor_b32 v103, 0x1000, v17", "v_xor_b32 v102, 0x100, v106", "v_lshlrev_b32 v101, 3, v1",
      "v_bfe_u32 v9, v1, 1, 3", "v_lshlrev_b32 v9, 4, v9", "v_lshl_or_b32 v9, v1, 7, v9",
      "s_lshl_b32 s13, s3, 4", f"s_add_u32 s13, s13, {L_STG+128-64}", "v_lshl_add_u32 v100, v13, 2, s13",
      f"s_mov_b32 s13, {L_STG+128}", "v_lshl_add_u32 v95, v12, 2, s13",
      "v_cmp_eq_u32 vcc, 0, v4", "v_cmp_eq_u32 s[12:13], 17, v4", "s_or_b64 vcc, vcc, s[12:13]", "v_mov_b32 v10, s83", "v_mov_b64 v[96:97], 0",
      "v_cndmask_b32 v120, 0, v10, vcc", "v_mov_b32 v121, v120", "v_mov_b32 v122, v120", f"s_mov_b32 s13, {SYNC}", "v_lshl_add_u32 v94, v1, 2, s13",
      "v_mov_b64 v[98:99], 0", "v_mov_b32 v36, 0")
    stamp(a, 3)
    def spin(tag, mask, lvl):
        a(f"s_mov_b64 exec, {mask}", "s_mov_b32 s13, 0", f"L_sp{tag}:", "ds_read_b32 v92, v94", "s_add_u32 s13, s13, 1", f"s_cmp_gt_u32 s13, {SPIN}",
          f"s_cbranch_scc1 L_so{tag}", "s_waitcnt lgkmcnt(0)", f"v_cmp_gt_u32 vcc, {lvl}, v92", f"s_cbranch_vccnz L_sp{tag}",
          f"L_so{tag}:", "s_mov_b64 exec, -1")
    a("s_cmp_lt_u32 s3, 4", "s_cbranch_scc1 L_p_kv")
    x_dma(2); x_dma(3)
    a(f"s_waitcnt vmcnt({NF+4})", "v_mov_b32 v92, 1", "v_mov_b32 v123, v120", "ds_write_b32 v93, v92")
    thr = f"s_waitcnt vmcnt({TH})"
    for i in range(4, 8): x_dma(i, thr)
    NXW = int(os.environ.get("NXW", "5"))
    for n in range(NF, 16):
        wq_dma(n, thr)
        if n == NF + NXW - 1:
            a(f"s_waitcnt vmcnt({NXW})", "v_mov_b32 v92, 2", "ds_write_b32 v93, v92")
    a("s_waitcnt vmcnt(0)", "s_branch L_p_b3")
    a("L_p_kv:", "v_mov_b32 v123, v120", "s_waitcnt vmcnt(1)")
    stamp(a, 56)
    for kt in range(4):
        for e in range(2):
            a(f"ds_read_b64_tr_b16 {vr(KW+4*kt+2*e,2)}, v16 offset:{kt*1024+e*128}")
        a(f"ds_read_b128 {vr(KX+4*kt,4)}, v{14+(kt&1)} offset:{(kt>>1)*8192}")
    a("s_bitcmp1_b32 s5, 0", "s_cbranch_scc1 L_p_mv")
    for which in range(2):
        for kt in range(4):
            a(f"s_waitcnt lgkmcnt({3*(3-kt)})")
            if which == 0: mfma16(a, KA, KW + 4 * kt, KX + 4 * kt, None if kt == 0 else KA)
            else: mfma16(a, KA, KX + 4 * kt, KW + 4 * kt, None if kt == 0 else KA)
        if which == 0: a("s_branch L_p_mk", "L_p_mv:")
    a("L_p_mk:")
    for e in range(16):
        a(f"v_dot2c_f32_bf16 v{KA+4}, s83, v{KX+e}", f"v_dot2c_f32_bf16 v{KA+5}, v{KX+e}, v{KX+e}", f"v_dot2c_f32_bf16 v{KA+6}, s83, v{KW+e}")
    a(f"ds_write_b128 v110, {vr(KA,4)} offset:2048", "v_mov_b32 v92, 1", "s_nop 0", f"ds_write_b128 v110, {vr(KA+4,4)} offset:3072", "ds_write_b32 v93, v92")
    stamp(a, 57)
    a("s_cmp_eq_u32 s3, 0", "s_cbranch_scc1 L_p_fin")
    a("s_setprio 0")
    spin("a", "0xf", 1); spin("b", "0xf0", 2)
    a("s_sub_u32 s15, s3, 1")
    a("L_p_xs:", "s_lshl_b32 s13, s15, 13", "v_add_u32 v11, s13, v9")
    for i in range(8):
        if i: a(f"v_xor_b32 v10, {16*i}, v11")
        a(f"ds_read_b128 {vr(128+4*i,4)}, v{10 if i else 11}")
    a("v_mov_b64 v[96:97], 0", "v_mov_b64 v[98:99], 0",
      "s_lshr_b32 s13, s15, 1", "s_lshl_b32 s13, s13, 12", "s_and_b32 s14, s15, 1", "s_lshl_b32 s14, s14, 9", "s_add_u32 s13, s13, s14",
      f"s_add_u32 s13, s13, {L_STG+16384}", "v_add_u32 v11, s13, v101")
    for i in range(8):
        a(f"s_waitcnt lgkmcnt({7-i})")
        for e in range(4):
            r = 128 + 4 * i + e
            a(f"v_dot2c_f32_bf16 v{96+2*(e&1)}, s83, v{r}", f"v_dot2c_f32_bf16 v{97+2*(e&1)}, v{r}, v{r}")
    a("s_add_u32 s15, s15, 3", "s_cmp_lt_u32 s15, 8", "s_nop 0", "v_pk_add_f32 v[96:97], v[96:97], v[98:99]", "ds_write_b64 v11, v[96:97]",
      "s_cbranch_scc1 L_p_xs", "s_branch L_p_b3")
    a("L_p_fin:")
    spin("c", "0xe", 1)
    for w in range(1, 4):
        a(f"ds_read_b128 {vr(KA+8*w,4)}, v110 offset:{w*4096+2048}", f"ds_read_b128 {vr(KA+4+8*w,4)}, v110 offset:{w*4096+3072}")
    for w in range(1, 4):
        a(f"s_waitcnt lgkmcnt({2*(3-w)})")
        for i in range(0, 8, 2):
            a(f"v_pk_add_f32 v[{KA+i}:{KA+1+i}], v[{KA+i}:{KA+1+i}], v[{KA+8*w+i}:{KA+1+8*w+i}]")
    M, R, C, T = KA + 4, KA + 5, KA + 6, KA + 8
    for swp in ("v_permlane32_swap_b32", "v_permlane16_swap_b32"):
        a(f"v_mov_b32 v{T}, v{M}", f"v_mov_b32 v{T+1}, v{R}", f"v_mov_b32 v{T+2}, v{C}", "s_nop 0",
          f"{swp} v{M}, v{T}", f"{swp} v{R}, v{T+1}", f"{swp} v{C}, v{T+2}", "s_nop 0",
          f"v_add_f32 v{M}, v{M}, v{T}", f"v_add_f32 v{R}, v{R}, v{T+1}", f"v_add_f32 v{C}, v{C}, v{T+2}")
    a("s_bitcmp1_b32 s5, 0", "s_cbranch_scc1 L_p_fv")
    for i in range(4):
        a(f"ds_bpermute_b32 v{T+i}, v18, v{C} offset:{4*i}")
    rstd(a, M, R)
    a("s_waitcnt lgkmcnt(0)")
    for i in range(4):
        a(f"v_fma_f32 v{KA+i}, -v{M}, v{T+i}, v{KA+i}")
    for i in range(4):
        a(f"v_mul_f32 v{KA+i}, v{R}, v{KA+i}")
    a(f"v_cvt_pk_bf16_f32 v12, v{KA}, v{KA+1}", f"v_cvt_pk_bf16_f32 v13, v{KA+2}, v{KA+3}")
    a("buffer_store_dwordx2 v[12:13], v19, s[52:55], s97 offen sc1")
    a("v_dot2c_f32_bf16 v109, v12, v12", "v_dot2c_f32_bf16 v109, v13, v13", "s_nop 2")
    halves_sum(a, 109, 11)
    a("v_mov_b32 v11, v109", "s_nop 1", "v_permlane16_swap_b32 v109, v11", "s_nop 1", "v_add_f32 v109, v109, v11")
    for sh in (8, 4, 2, 1):
        a("s_nop 1", f"v_max_f32_dpp v109, v109, v109 row_ror:{sh} row_mask:0xf bank_mask:0xf")
    a("s_branch L_p_pub")
    a("L_p_fv:")
    rstd(a, M, R)
    a("s_nop 0")
    for i in range(4):
        a(f"ds_bpermute_b32 v{T+i}, v18, v{M} offset:{4*i}", f"ds_bpermute_b32 v{T+4+i}, v18, v{R} offset:{4*i}")
    a("s_waitcnt lgkmcnt(0)")
    for i in range(4):
        a(f"v_fma_f32 v{KA+i}, -v{T+i}, v{C}, v{KA+i}")
    for i in range(4):
        a(f"v_mul_f32 v{KA+i}, v{T+4+i}, v{KA+i}")
    a(f"v_cvt_pk_bf16_f32 v12, v{KA}, v{KA+1}", f"v_cvt_pk_bf16_f32 v13, v{KA+2}, v{KA+3}")
    a("buffer_store_dwordx2 v[12:13], v19, s[52:55], s97 offen sc1")
    a("L_p_pub:")
    stamp(a, 16)
    spin("d", "0xf0", 1)
    DF = int(os.environ.get("DF", "-1"))
    def flag_store():
        a("s_cmp_eq_u32 s3, 0", "s_cbranch_scc0 L_p_f1", "s_waitcnt vmcnt(0)", "v_add_u32 v108, 1, v108", "s_mov_b64 exec, 1",
          "buffer_store_dwordx2 v[108:109], v3, s[52:55], s82 offen sc1", "s_mov_b64 exec, -1", "s_setprio 0")
        stamp(a, 58)
        a("L_p_f1:")
    if DF < 0:
        flag_store()
    a("L_p_b3:")
    a("s_waitcnt lgkmcnt(0)", "s_barrier")
    stamp(a, 55)
    B0, AC = 128, 44
    PP = int(os.environ.get("PP", "10"))
    lgq = []
    def rd(tag, ins): a(ins); lgq.append(tag)
    def wt(tag):
        idx = max(i for i, t in enumerate(lgq) if t == tag)
        a(f"s_waitcnt lgkmcnt({min(15, len(lgq)-1-idx)})")
    def issue(p):
        grp, j = p >> 2, p & 3
        b = B0 + 8 * p
        rd(p, f"ds_read_b128 {vr(b,4)}, v{XA+j} offset:{grp*8192}")
        rd(p, f"ds_read_b64_tr_b16 {vr(b+4,2)}, v{WA+j} offset:{grp*8192}")
        rd(p, f"ds_read_b64_tr_b16 {vr(b+6,2)}, v{WA+j} offset:{grp*8192+512}")
    def pk(op, d, x, y, z=None, mod=""):
        ops = ", ".join(f"v[{r}:{r+1}]" for r in ([d, x, y] + ([z] if z is not None else [])))
        a(f"v_pk_{op}_f32 {ops} {mod}")
    ST = 128
    QW = int(os.environ.get('QW', '4'))
    if os.environ.get('QP', '0') == '1': a('s_cmp_lt_u32 s3, 4', 's_cbranch_scc1 L_p_qp', 's_setprio 1', 'L_p_qp:')
    for p in range(QW): issue(p)
    for p in range(16):
        wt(p)
        b = B0 + 8 * p
        mfma32(a, AC, b + 4, b, None if p == 0 else AC)
        if p + QW < 16: issue(p + QW)
        if (p & 3) < 2:
            mfma16(a, 96, 120, b + 4, None if p == 0 else 96)
        if p == DF: flag_store()
        if p == PP:
            a("s_cmp_lt_u32 s3, 4", "s_cbranch_scc1 L_p_e1", "buffer_load_dwordx2 v[14:15], v111, s[52:55], s82 offen sc1", "L_p_e1:")
        if p == 6:
            for s_ in range(4):
                rd("st", f"ds_read2st64_b64 {vr(ST+4*s_,4)}, v104 offset0:{8*s_} offset1:{8*s_+1}")
        if p == 12:
            wt('st')
            for i in range(8): a(f"v_add_f32 v{ST+i}, v{ST+i}, v{ST+8+i}")
        if p == 13:
            for st_ in (4, 2):
                for i in range(st_): a(f"v_add_f32 v{ST+i}, v{ST+i}, v{ST+st_+i}")
        if p == 14:
            rstd(a, ST, ST + 1)
    a("s_nop 3", "s_mov_b64 exec, 0xffff", "ds_write_b32 v106, v96", "ds_write_b32 v106, v97 offset:64", "s_mov_b64 exec, -1")
    a(f"v_mul_f32 v{ST+2}, {f32(QSCALE)}, v{ST+1}", "s_nop 2")
    a(f"ds_write_b128 v17, {vr(AC+8,4)} offset:2048", f"ds_write_b128 v17, {vr(AC+12,4)} offset:3072")
    stamp(a, 54)
    a("s_cmp_lt_u32 s3, 4", "s_cbranch_scc1 L_p_np")
    a("s_mov_b32 s13, 0", "s_branch L_p_chk")
    a("L_p_poll:", "buffer_load_dwordx2 v[14:15], v111, s[52:55], s82 offen sc1",
      "s_add_u32 s13, s13, 1", f"s_cmp_gt_u32 s13, {SPIN}", "s_cbranch_scc1 L_p_out",
      "L_p_chk:", "s_waitcnt vmcnt(0)", "v_cmp_eq_u32 vcc, v14, v108", "s_cbranch_vccnz L_p_poll")
    a("L_p_out:", "s_waitcnt vmcnt(0)")
    for sh in (8, 4, 2, 1):
        a(f"v_max_f32_dpp v15, v15, v15 row_ror:{sh} row_mask:0xf bank_mask:0xf", "s_nop 1")
    a("ds_write_b32 v100, v15")
    a("L_p_np:")
    a("s_waitcnt lgkmcnt(0)", "s_barrier")
    stamp(a, 53)
    E, CS = 136, 144
    a(f"ds_read_b128 {vr(E,4)}, v103 offset:2048", f"ds_read_b128 {vr(E+4,4)}, v103 offset:3072")
    for s_, (reg, o) in enumerate(((105, 0), (107, 4096), (105, 256), (107, 4352))):
        a(f"ds_read_b128 {vr(CS+8*s_,4)}, v{reg} offset:{o}", f"ds_read_b128 {vr(CS+4+8*s_,4)}, v{reg} offset:{o+32}")
    a("ds_read_b32 v38, v95")
    after_flags()
    a("s_waitcnt lgkmcnt(9)")
    for i in range(0, 8, 2): pk("add", AC + i, AC + i, E + i)
    a("s_waitcnt lgkmcnt(5)")
    for i in range(0, 8, 2): pk("add", CS + i, CS + i, CS + 8 + i)
    a("s_waitcnt lgkmcnt(0)")
    for i in range(0, 8, 2): pk("add", CS + 16 + i, CS + 16 + i, CS + 24 + i)
    for i in range(0, 8, 2): pk("add", CS + i, CS + i, CS + 16 + i)
    for i in range(0, 8, 2): pk("fma", AC + i, ST, CS + i, AC + i, "op_sel_hi:[0,1,1] neg_lo:[1,0,0] neg_hi:[1,0,0]")
    for i in range(0, 8, 2): pk("mul", AC + i, ST + 2, AC + i, None, "op_sel_hi:[0,1]")
    for i in range(4):
        a(f"v_cvt_pk_bf16_f32 v{VQ+i}, v{AC+2*i}, v{AC+1+2*i}")
    a(f"ds_write_b128 v17, {vr(VQ,4)} offset:1024")
    for i in range(4):
        a(f"v_dot2c_f32_bf16 v36, v{VQ+i}, v{VQ+i}")
    for sh in (8, 4):
        a(f"v_max_f32_dpp v38, v38, v38 row_ror:{sh} row_mask:0xf bank_mask:0xf", "s_nop 1")
    a("v_mov_b32 v37, v36", "v_max_f32_dpp v38, v38, v38 row_ror:2 row_mask:0xf bank_mask:0xf", "s_nop 0",
      "v_permlane32_swap_b32 v36, v37", "v_max_f32_dpp v38, v38, v38 row_ror:1 row_mask:0xf bank_mask:0xf", "v_add_f32 v36, v36, v37",
      "s_nop 0", "ds_write_b32 v106, v36 offset:512")
    before_b5()
    a("s_waitcnt lgkmcnt(0)", "s_barrier")
    a("ds_read_b32 v37, v102 offset:512", f"ds_read_b128 {vr(VQ+4,4)}, v110 offset:1024", "s_waitcnt lgkmcnt(1)",
      "v_max_f32 v36, v36, v37", "v_mul_f32 v36, v36, v38")
```

```python
import sys
from lib import *
import os
if os.environ.get('K5', '0') == '1':
    from k5 import gen_k5 as gen_k2f
else:
    from k2m import gen_k2f
NAME = "sequential_preLN__grouped_kv_mqa__dense_activation_gelu__prompt"
ref = open(f"cdna_kernels/{NAME}.s.ref").read().split("\n")
head = [l for l in ref if l.startswith(";") and "@launch" not in l and "Override launch" not in l and "grid=ceil" not in l]
body, launch = gen_k2f(NAME + "_kernel")
out = "\n".join(head) + "\n" + launch + "\n" + '.amdgcn_target "amdgcn-amd-amdhsa--gfx950"\n' + body
dst = sys.argv[1] if len(sys.argv) > 1 else f"cdna_kernels/{NAME}.s"
open(dst, "w").write(out)
print("wrote", dst, len(out))
```

```python
class A:
    def __init__(self):
        self.lines = []
        self.uid = 0
    def __call__(self, s, *more):
        for t in (s,) + more:
            for l in t.split("\n"):
                l = l.rstrip()
                if l.strip() == "":
                    continue
                if l.strip().endswith(":") or l.startswith("."):
                    self.lines.append(l.strip())
                else:
                    self.lines.append("    " + l.strip())
    def c(self, s):
        self.lines.append("    ; " + s)
    def label(self, base):
        self.uid += 1
        return f"L_{base}_{self.uid}"
    def text(self):
        return "\n".join(self.lines) + "\n"

def vr(a, n):
    return f"v[{a}:{a+n-1}]" if n > 1 else f"v{a}"
def sr(a, n):
    return f"s[{a}:{a+n-1}]" if n > 1 else f"s{a}"

def kernel_begin(a, name):
    a(".text", f".globl {name}", ".p2align 8", f".type {name},@function", f"{name}:")

def kernel_desc(name, nvgpr, nsgpr=96, accum=None):
    if accum is None:
        accum = (nvgpr + 3) // 4 * 4
    return f""".section .rodata,"a"
.p2align 6
.amdhsa_kernel {name}
  .amdhsa_next_free_vgpr {nvgpr}
  .amdhsa_next_free_sgpr {nsgpr}
  .amdhsa_accum_offset {accum}
  .amdhsa_group_segment_fixed_size 0
  .amdhsa_kernarg_size 104
  .amdhsa_user_sgpr_count 2
  .amdhsa_user_sgpr_kernarg_segment_ptr 1
  .amdhsa_system_sgpr_workgroup_id_x 1
.end_amdhsa_kernel
"""

def srd(a, d, base, nbytes):
    a(f"s_mov_b32 s{d}, s{base}", f"s_and_b32 s{d+1}, s{base+1}, 0xffff",
      f"s_mov_b32 s{d+2}, {nbytes:#x}", f"s_mov_b32 s{d+3}, 0x00020000")

def mfma32(a, d, A_, B_, c):
    cs = "0" if c is None else vr(c, 16)
    a(f"v_mfma_f32_32x32x16_bf16 {vr(d,16)}, {vr(A_,4)}, {vr(B_,4)}, {cs}")
def mfma16(a, d, A_, B_, c):
    cs = "0" if c is None else vr(c, 4)
    a(f"v_mfma_f32_16x16x32_bf16 {vr(d,4)}, {vr(A_,4)}, {vr(B_,4)}, {cs}")

import struct
def f32(x):
    return "0x%08x" % struct.unpack("<I", struct.pack("<f", x))[0]

QF   = 0x000000
KVF  = 0x200000
KMAX = 0x220000
WOF  = 0x240000
W1F  = 0x2C0000
W2F  = 0x440000
OF   = 0x000000
HF   = 0x800000
FF   = 0xA00000
WS_BYTES = 0x1000000
KA = dict(x=0, wq=8, wk=16, wv=24, wo=32, bx=40, w1=48, b1=56, w2=64, b2=72, out=80, dbg=88, ws=96)

import os
STAMP = os.environ.get("STAMP", "0") == "1"
STAMP_BASE = 0xF80000
NSTAMP = 8
STAMP_NAMES = {}
def stamp(a, idx, real=False, name=None):
    if not STAMP:
        return
    keep = os.environ.get("KEEP")
    if keep and idx not in (0, 1, 59, 60, 61, 62, 63) and idx not in [int(x) for x in keep.split(",")]:
        return
    op = "s_memrealtime" if real else "s_memtime"
    a(f"{op} s[92:93]", "s_waitcnt lgkmcnt(0)")
    if idx < 2:
        a(f"s_mov_b32 s{80+idx}, s92")
    else:
        a(f"v_writelane_b32 v0, s92, {idx}")
def stamp_flush(a, kidx, vt=0, wave="s3", srdreg=52):
    if not STAMP:
        return
    if os.environ.get("DBGOUT"):
        ids = [int(x) for x in os.environ["DBGOUT"].split(",")]
        a("s_cmp_eq_u32 s3, 0", "s_cbranch_scc0 L_dbg_end", "s_and_b32 s94, s2, 127", "s_cmp_eq_u32 s94, 77", "s_cbranch_scc0 L_dbg_end")
        a("s_load_dwordx2 s[84:85], s[0:1], 88", "s_waitcnt lgkmcnt(0)", "s_and_b32 s85, s85, 0xffff", "s_mov_b32 s86, 256", "s_mov_b32 s87, 0x00020000",
          "s_lshr_b32 s94, s2, 7", "s_lshl_b32 s94, s94, 5", "s_mov_b64 exec, 1", f"v_mov_b32 v{vt}, 0")
        for n, i in enumerate(ids):
            base = 80 if i >= 59 and i != 62 else 81
            a(f"v_readlane_b32 s92, v0, {i}", "s_nop 3", f"s_sub_u32 s92, s92, s{base}", f"v_mov_b32 v{vt+1}, s92",
              f"buffer_store_dword v{vt+1}, v{vt}, s[84:87], s94 offen offset:{4*n}", "s_nop 1")
        a("L_dbg_end:")
        return
    a("s_mov_b64 exec, -1", "v_writelane_b32 v0, s80, 0", "v_writelane_b32 v0, s81, 1")
    a(f"s_lshl_b32 s94, s2, 4", f"s_add_u32 s94, s94, {wave}", "s_lshl_b32 s94, s94, 8",
      f"s_add_u32 s94, s94, {0x1000000 + kidx*0x100000:#x}", f"v_lshlrev_b32 v{vt}, 2, v1")
    a(f"buffer_store_dword v0, v{vt}, s[{srdreg}:{srdreg+3}], s94 offen")
if STAMP and not os.environ.get('DBGOUT'):
    WS_BYTES = 0x1200000
FLAGS = 0x230000
```
